```python
import torch

def _softmax(x, axis=-1):
    return torch.softmax(x, dim=axis)
def _gelu(x):
    return torch.nn.functional.gelu(x, approximate="tanh")
def _silu(x):
    return torch.nn.functional.silu(x)
def _sigmoid(x):
    return torch.sigmoid(x)
def _layernorm(x, axis=-1, eps=1e-5):
    m = x.mean(dim=axis, keepdim=True)
    v = x.var(dim=axis, keepdim=True, unbiased=False)
    return (x - m) / torch.sqrt(v + eps)
def _scatter_add(tgt, idx, src, axis=0):
    return tgt.clone().index_add_(axis, idx, src)
def _segment_sum(src, seg, n):
    out = torch.zeros((n,) + src.shape[1:], dtype=src.dtype)
    return out.index_add_(0, seg, src)
def _pad(x, pw):
    flat = tuple(v for pair in reversed(pw) for v in pair)
    return torch.nn.functional.pad(x, flat)

kernel_name = 'gated_mix__sliding_local_dilated__linear_attn_block__prompt'

def setup_inputs():

    _w = (lambda a: (lambda t: t.to(torch.bfloat16) if t.is_floating_point() else t)(torch.as_tensor(a)))
    def _A_setup():
        B, S, D = 1, 2048, 448
        return {
            "x": _w((lambda *s: torch.randn(*s, dtype=torch.bfloat16) * 0.05)(B, S, D)),
            "wqkv": _w((lambda *s: torch.randn(*s, dtype=torch.bfloat16) * 0.8)(D, 3 * D)),
            "wo": _w((lambda *s: torch.randn(*s, dtype=torch.bfloat16) * 0.05)(D, D)),
        }
    _A_in = _A_setup()

    def _B_setup():
        B, S, D = 1, 2048, 448
        return {
            "x": _w((lambda *s: torch.randn(*s, dtype=torch.bfloat16) * 0.05)(B, S, D)),
            "wqkv": _w((lambda *s: torch.randn(*s, dtype=torch.bfloat16) * 1.6)(D, 3 * D)),
            "wo": _w((lambda *s: torch.randn(*s, dtype=torch.bfloat16) * 0.4)(D, D)),
        }
    _B_in = _B_setup()

    return {
        "A_x": _A_in["x"],
        "A_wqkv": _A_in["wqkv"],
        "A_wo": _A_in["wo"],
        "B_x": _B_in["x"],
        "B_wqkv": _B_in["wqkv"],
        "B_wo": _B_in["wo"],
        "gate_w": _w((lambda *s: torch.randn(*s, dtype=torch.bfloat16) * 0.05)(448) * 16.0),
    }

def reference(A_x, A_wqkv, A_wo, B_x, B_wqkv, B_wo, gate_w):
    def _A_ref(x, wqkv, wo):
        B, S, D = x.shape
        H = 16; Dh = D // H
        W, dil = 8, 2
        qkv = (lambda x, *d: x.permute(*d))((x @ wqkv).reshape(B, S, 3, H, Dh), 2, 0, 3, 1, 4)
        q, k, v = qkv[0], qkv[1], qkv[2]
        scale = Dh ** -0.5
        pos = torch.arange(S)
        off = torch.arange(W) * dil
        idx = pos[:, None] - off[None, :]
        mask = idx >= 0
        idx_c = torch.where(mask, idx, 0).reshape(-1)
        kg = k[:, :, idx_c, :].reshape(B, H, S, W, Dh)
        vg = v[:, :, idx_c, :].reshape(B, H, S, W, Dh)
        logits = torch.einsum("bhsd,bhswd->bhsw", q, kg) * scale
        logits = torch.where(mask[None, None, :, :], logits, -1e9)
        attn = _softmax(logits, axis=-1)
        o = torch.einsum("bhsw,bhswd->bhsd", attn, vg)
        return (lambda x, *d: x.permute(*d))(o, 0, 2, 1, 3).reshape(B, S, D) @ wo

    def _B_ref(x, wqkv, wo):
        B, S, D = x.shape
        H = 16; Dh = D // H
        qkv = (lambda x, *d: x.permute(*d))((x @ wqkv).reshape(B, S, 3, H, Dh), 2, 0, 3, 1, 4)
        q, k, v = qkv[0], qkv[1], qkv[2]
        phi = lambda t: torch.where(t > 0, t + 1, torch.exp(t)) + 1e-6
        pq, pk = phi(q), phi(k)
        kv = torch.einsum("bhsd,bhse->bhde", pk, v)
        z = torch.einsum("bhsd->bhd", pk)
        num = torch.einsum("bhqd,bhde->bhqe", pq, kv)
        den = torch.einsum("bhqd,bhd->bhq", pq, z)[..., None] + 1e-6
        o = num / den
        return (lambda x, *d: x.permute(*d))(o, 0, 2, 1, 3).reshape(B, S, D) @ wo

    x = A_x
    g = _sigmoid((x * gate_w).sum(-1, keepdims=True))
    a = _A_ref(x, A_wqkv, A_wo)
    b = _B_ref(x, B_wqkv, B_wo)
    return g * a + (1 - g) * b
```

```python
import re

REG_RE = re.compile(r'\b([vas])\[(\d+):(\d+)\]|\b([vas])(\d+)\b|\b(vcc|exec|m0|scc|vcc_lo|vcc_hi|exec_lo|exec_hi)\b')
TRANS = ('v_exp_f32', 'v_rcp_f32', 'v_rsq_f32', 'v_log_f32', 'v_sqrt_f32', 'v_sin_f32', 'v_cos_f32')


def regs_of(tok):
    out = []
    for m in REG_RE.finditer(tok):
        if m.group(1):
            out += [(m.group(1), k) for k in range(int(m.group(2)), int(m.group(3)) + 1)]
        elif m.group(4):
            out.append((m.group(4), int(m.group(5))))
        else:
            n = m.group(6)
            if n.startswith('vcc'): n = 'vcc'
            if n.startswith('exec'): n = 'exec'
            out.append((n, 0))
    return out


def split_ops(s):
    ops, depth, cur = [], 0, ''
    for ch in s:
        if ch == '[': depth += 1
        if ch == ']': depth -= 1
        if ch == ',' and depth == 0:
            ops.append(cur.strip()); cur = ''
        else:
            cur += ch
    if cur.strip(): ops.append(cur.strip())
    return ops


class Em:
    def __init__(self):
        self.lines = []
        self.t = 0
        self.w = {}
        self.cread = {}
        self.stread = {}
        self.vm_issued = 0
        self.vm_done = 0
        self.lg_issued = 0
        self.lg_done = 0
        self.ninstr = 0
        self.nnop = 0

    def raw(self, s):
        self.lines.append(s)

    def label(self, name):
        self.lines.append(f'{name}:')

    def comment(self, s):
        self.lines.append(f'  ; {s}')

    def nop(self, n):
        while n > 0:
            k = min(n, 16)
            self.lines.append(f'  s_nop {k-1}')
            self.t += k
            self.nnop += k
            n -= k

    def fence(self, n=8):
        self.nop(n)

    def classify(self, text):
        mn, _, rest = text.partition(' ')
        ops = split_ops(rest)
        rd, wr = [], []
        kind = 'other'
        info = {}
        if mn.startswith('v_mfma'):
            kind = 'mfma'
            wr = regs_of(ops[0]); info['A'] = regs_of(ops[1]); info['B'] = regs_of(ops[2]); info['C'] = regs_of(ops[3])
            rd = info['A'] + info['B'] + info['C']
        elif mn.startswith('buffer_') or mn.startswith('global_'):
            kind = 'vmem'
            is_lds = re.search(r'\blds\b', rest) is not None
            if is_lds:
                info['dma'] = True
                for o in ops: rd += regs_of(o)
                rd.append(('m0', 0))
            elif '_load' in mn:
                wr = regs_of(ops[0])
                for o in ops[1:]: rd += regs_of(o)
            else:
                for o in ops: rd += regs_of(o)
                if 'atomic' in mn and re.search(r'\bsc0\b', rest): wr = regs_of(ops[0])
                if mn.endswith('x4') or mn.endswith('x3'): info['wide'] = regs_of(ops[0])
        elif mn.startswith('ds_'):
            kind = 'ds'
            if 'read' in mn or 'permute' in mn or 'swizzle' in mn:
                wr = regs_of(ops[0])
                for o in ops[1:]: rd += regs_of(o)
            else:
                for o in ops: rd += regs_of(o)
        elif mn.startswith('v_'):
            kind = 'valu'
            base = mn.replace('_e32', '').replace('_e64', '').replace('_dpp', '')
            if base in TRANS: info['trans'] = True
            if 'permlane' in mn:
                info['perm'] = True
                wr = regs_of(ops[0]) + regs_of(ops[1]); rd = list(wr)
            elif mn.startswith('v_cmp'):
                wr = regs_of(ops[0])
                for o in ops[1:]: rd += regs_of(o)
            elif mn.startswith('v_readfirstlane') or mn.startswith('v_readlane'):
                info['rl'] = True
                wr = regs_of(ops[0])
                for o in ops[1:]: rd += regs_of(o)
            elif '_co_' in mn:
                wr = regs_of(ops[0]) + regs_of(ops[1])
                for o in ops[2:]: rd += regs_of(o)
            else:
                wr = regs_of(ops[0])
                for o in ops[1:]: rd += regs_of(o)
                if base in ('v_fmac_f32', 'v_pk_fmac_f16'): rd += wr
                if '_dpp' in mn or 'row_' in rest:
                    info['dpp'] = regs_of(ops[1].split(' ')[0]); rd += wr
        elif mn.startswith('s_'):
            kind = 'salu'
            if mn.startswith('s_cmp') or mn.startswith('s_cbranch') or mn in ('s_branch', 's_barrier', 's_waitcnt', 's_nop', 's_endpgm', 's_sleep', 's_setprio', 's_bitcmp1_b32', 's_bitcmp0_b32'):
                for o in ops: rd += regs_of(o)
                if 'vcc' in mn: rd.append(('vcc', 0))
            elif mn.startswith('s_load') or mn.startswith('s_mem'):
                kind = 'smem'
                wr = regs_of(ops[0])
                for o in ops[1:]: rd += regs_of(o)
            else:
                wr = regs_of(ops[0])
                for o in ops[1:]: rd += regs_of(o)
                if 'saveexec' in mn: wr.append(('exec', 0))
        return mn, kind, rd, wr, info

    def I(self, text):
        text = text.strip()
        mn, kind, rd, wr, info = self.classify(text)
        need = 0

        def req(tp, n):
            nonlocal need
            d = self.t - tp - 1
            if d < n: need = max(need, n - d)

        for r in rd:
            if r not in self.w: continue
            tp, k, ex = self.w[r]
            isv = r[0] in ('v', 'a')
            if k == 'valu' and isv:
                if kind == 'mfma': req(tp, 2)
                if kind == 'valu' and info.get('perm'): req(tp, 2)
                if kind == 'valu' and r in info.get('dpp', []): req(tp, 2)
                if kind == 'valu' and info.get('rl'): req(tp, 1)
                if ex == 'trans' and kind == 'valu' and not info.get('trans'): req(tp, 1)
                if ex == 'trans' and kind in ('vmem', 'ds'): req(tp, 1)
            if k == 'valu' and not isv:
                if kind == 'valu': req(tp, 2)
                if kind == 'vmem': req(tp, 5)
                if kind in ('salu', 'smem'): req(tp, 2)
            if k == 'mfma':
                if kind == 'mfma':
                    if r in info['A'] or r in info['B']: req(tp, 8)
                    elif r in info['C']:
                        if ex != tuple(info['C']): req(tp, 6)
                else:
                    req(tp, 8)
            if k == 'salu' and r == ('m0', 0) and info.get('dma'): req(tp, 1)
            if k == 'salu' and r == ('exec', 0): pass
        for r in wr:
            if r in self.w:
                tp, k, ex = self.w[r]
                if k == 'mfma' and kind != 'mfma': req(tp, 8)
                if k == 'mfma' and kind == 'mfma' and ex != tuple(wr): req(tp, 8)
            if r in self.cread and kind == 'valu': req(self.cread[r], 3)
            if r in self.stread: req(self.stread[r], 2 if kind == 'valu' else 1)
        if need: self.nop(need)
        self.lines.append('  ' + text)
        for r in wr:
            ex = None
            if kind == 'mfma': ex = tuple(wr)
            if info.get('trans'): ex = 'trans'
            self.w[r] = (self.t, kind, ex)
        if kind == 'mfma':
            for r in info['C']: self.cread[r] = self.t
        for r in info.get('wide', []): self.stread[r] = self.t
        self.t += 1
        self.ninstr += 1
        if kind == 'vmem':
            self.vm_issued += 1
            return self.vm_issued
        if kind == 'ds':
            self.lg_issued += 1
            return self.lg_issued
        return None

    def Ix(self, text):
        vi, li = self.vm_issued, self.lg_issued
        self.I(text)
        self.vm_issued, self.lg_issued = vi, li

    def need_vm(self, tag):
        if tag is None or tag <= self.vm_done: return
        n = self.vm_issued - tag
        assert n <= 63, n
        self.I(f's_waitcnt vmcnt({n})')
        self.vm_done = tag

    def need_lg(self, tag):
        if tag is None or tag <= self.lg_done: return
        n = self.lg_issued - tag
        if n > 15:
            n = 15
            tag = self.lg_issued - 15
        self.I(f's_waitcnt lgkmcnt({n})')
        self.lg_done = tag

    def all_vm(self):
        self.I('s_waitcnt vmcnt(0)'); self.vm_done = self.vm_issued

    def all_lg(self):
        self.I('s_waitcnt lgkmcnt(0)'); self.lg_done = self.lg_issued

    def text(self):
        return '\n'.join(self.lines) + '\n'
```

```python
import sys, copy, math
sys.path.insert(0, 'work')
from asmlib import Em

KNAME = 'gated_mix__sliding_local_dilated__linear_attn_block__prompt_kernel'
DEBUG = '--dbg' in sys.argv
OUT = [a for a in sys.argv[1:] if not a.startswith('--')][0]

WS_O = 0
WS_KV = 4 << 20
WS_CNT = WS_KV + 65536
WS_G = WS_KV + 131072
WS_DBG = 6 << 20
WS_SIZE = 8 << 20
P1 = 0; P2 = 100352; DUMMY = 150528; EXCH = 151552; GW = 159744; LDS_SIZE = 163840
SX, SW, SWS, SWOA, SWOB, SOUT, SDBG, SGW = 4, 8, 12, 16, 20, 24, 28, 32
sType, sI, sJ, sWave, sRot, sP, sU, sC, sR = 56, 57, 58, 59, 60, 61, 62, 63, 78
sWo = 64
sXo = 71
sM0 = 79
sM0B = 83
sMul3 = 84; sMulB = 85
sT0, sT1, sT2, sT3 = 86, 87, 88, 89
sCur = 90
sScale = 98
sSave = 100
sSpin = 3
SPIN_MAX = 1 << 19
sStamp = 36

def srd(n): return f's[{n}:{n+3}]'
def v4(n): return f'v[{n}:{n+3}]'
def v2(n): return f'v[{n}:{n+1}]'
def a4(n): return f'a[{n}:{n+3}]'

vLane = 1
vT = [2, 3, 4, 5, 6, 7, 8, 9]
vW1 = 10
vW2 = 14
vX0, vX1, vXh = 16, 17, 18
vLa, vLb = 19, 20
vBias = 21; vBias0 = 25
vMC01, vMC23, vMP01, vMP23, vPad = 29, 30, 31, 32, 33
vL16 = 34
vEw = 35
vEr = 38
vF = 40
vA1 = 72
vA2 = 144
vQp = 184
vKp = 200
vKh = 216
vKx = 220
vG = 228
vOne = 232
vFlag = 236
vMisc = 237

e = Em()
I = e.I
nstamp = [0]
def stamp():
    if DEBUG:
        k = nstamp[0]; nstamp[0] += 1
        assert k < 10
        e.Ix(f's_memtime s[{sStamp+2*k}:{sStamp+2*k+1}]')

e.raw(f"""; fused gated-mix kernel: QKV GEMM + local attention / linear attention + out projection
; @launch grid=(256,1,1) block=(256,1,1) lds={LDS_SIZE}
.amdgcn_target "amdgcn-amd-amdhsa--gfx950"
.text
.globl {KNAME}
.p2align 8
.type {KNAME},@function
{KNAME}:""")
I('s_cmp_ge_u32 s2, 0x100')
I('s_cbranch_scc1 L_end')
if DEBUG: I('s_memtime s[98:99]')
I('s_load_dwordx16 s[36:51], s[0:1], 0')
I('s_load_dwordx4 s[52:55], s[0:1], 64')
I(f'v_and_b32 v{vLane}, 63, v0')
I(f'v_lshrrev_b32 v2, 6, v0')
I(f's_and_b32 s{sC}, s2, 7')
I(f's_lshr_b32 s{sR}, s2, 3')
I(f'v_readfirstlane_b32 s{sWave}, v2')
I(f's_and_b32 s{sType}, s{sC}, 1')
I(f's_lshr_b32 s{sT0}, s{sC}, 2')
I(f's_lshl_b32 s{sI}, s{sT0}, 3')
I(f's_and_b32 s{sT1}, s{sR}, 7')
I(f's_add_u32 s{sI}, s{sI}, s{sT1}')
I(f's_bfe_u32 s{sT0}, s{sC}, 0x10001')
I(f's_lshl_b32 s{sJ}, s{sT0}, 2')
I(f's_lshr_b32 s{sT2}, s{sR}, 3')
I(f's_add_u32 s{sJ}, s{sJ}, s{sT2}')
I(f's_lshl_b32 s{sT2}, s{sT2}, 1')
I(f's_add_u32 s{sRot}, s{sT1}, s{sT2}')
I(f's_and_b32 s{sT0}, s{sC}, 3')
I(f's_add_u32 s{sRot}, s{sRot}, s{sT0}')
for _ in range(2):
    I(f's_sub_u32 s{sT0}, s{sRot}, 7')
    I(f's_cmp_ge_u32 s{sRot}, 7')
    I(f's_cselect_b32 s{sRot}, s{sT0}, s{sRot}')
I(f's_and_b32 s{sP}, s{sWave}, 1')
I(f's_lshr_b32 s{sU}, s{sWave}, 1')
I(f's_lshl_b32 s{sXo}, s{sRot}, 7')
for p in range(1, 7):
    I(f's_add_u32 s{sXo+p}, s{sXo+p-1}, 128')
    I(f's_cmp_eq_u32 s{sXo+p}, 896')
    I(f's_cselect_b32 s{sXo+p}, 0, s{sXo+p}')
for p in range(7):
    I(f's_mul_i32 s{sWo+p}, s{sXo+p}, 1344')
q, g = vT[0], vT[1]
I(f'v_and_b32 v{q}, 15, v{vLane}')
I(f'v_lshrrev_b32 v{g}, 4, v{vLane}')
I(f's_lshl_b32 s{sT0}, s{sI}, 7')
I(f's_add_u32 s{sT0}, s{sT0}, s{sP}')
I(f's_lshl_b32 s{sT1}, s{sU}, 6')
I(f's_add_u32 s{sT1}, s{sT1}, s{sT0}')
I(f'v_lshl_add_u32 v{vT[2]}, v{q}, 1, s{sT1}')
I(f'v_mul_u32_u24 v{vT[2]}, 896, v{vT[2]}')
I(f'v_lshl_add_u32 v{vX0}, v{g}, 4, v{vT[2]}')
I(f'v_add_u32 v{vX1}, 28672, v{vX0}')
I(f'v_max_u32 v{vT[2]}, 9, v{q}')
I(f'v_lshl_add_u32 v{vT[2]}, v{vT[2]}, 1, s{sT0}')
I(f'v_mul_u32_u24 v{vT[2]}, 896, v{vT[2]}')
I(f'v_lshl_add_u32 v{vXh}, v{g}, 4, v{vT[2]}')
I(f'v_add_u32 v{vXh}, 0xffff9000, v{vXh}')
I(f's_mul_i32 s{sT3}, s{sJ}, 112')
I(f's_mul_i32 s{sT2}, s{sType}, 896')
I(f's_add_u32 s{sT2}, s{sT2}, s{sT3}')
I(f'v_mov_b32 v{vT[7]}, 2688')

def woff(dst, s_u0, s_base):
    a, b, c, d = vT[2], vT[3], vT[4], vT[5]
    I(f'v_add_u32 v{a}, s{s_u0}, v{vLane}')
    I(f'v_mul_u32_u24 v{b}, 9363, v{a}')
    I(f'v_lshrrev_b32 v{b}, 16, v{b}')
    I(f'v_mad_i32_i24 v{a}, v{b}, -7, v{a}')
    I(f'v_bfe_u32 v{c}, v{b}, 1, 2')
    I(f'v_and_b32 v{d}, 1, v{b}')
    I(f'v_lshl_or_b32 v{c}, v{d}, 2, v{c}')
    I(f'v_and_or_b32 v{c}, v{b}, 56, v{c}')
    I(f'v_mad_u32_u24 v{c}, v{c}, v{vT[7]}, s{s_base}')
    I(f'v_lshl_add_u32 v{dst}, v{a}, 4, v{c}')

sA, sB = 96, 97
for s in range(4):
    I(f's_add_u32 s{sA}, s{sWave}, {4*s}')
    I(f's_lshl_b32 s{sM0+s}, s{sA}, 10')
    I(f's_add_u32 s{sB}, s{sT2}, 896')
    I(f's_cmp_ge_u32 s{sA}, 7')
    I(f's_cselect_b32 s{sB}, s{sB}, s{sT2}')
    I(f's_cselect_b32 s{sT0}, 7, 0')
    if s == 3:
        I(f's_cmp_ge_u32 s{sA}, 14')
        I(f's_cselect_b32 s{sB}, 0x80000000, s{sB}')
        I(f's_cselect_b32 s{sM0+3}, {DUMMY}, s{sM0+3}')
        I(f's_cselect_b32 s{sMul3}, 0, 1')
        I(f's_cselect_b32 s{sT0}, 14, s{sT0}')
    I(f's_sub_u32 s{sA}, s{sA}, s{sT0}')
    I(f's_lshl_b32 s{sA}, s{sA}, 6')
    woff(vW1 + s, sA, sB)
I(f's_add_u32 s{sT2}, s{sT3}, 1792')
I(f's_cmp_eq_u32 s{sType}, 0')
I(f's_cselect_b32 s{sT2}, s{sT2}, s{sT3}')
I(f's_lshl_b32 s{sA}, s{sWave}, 6')
woff(vW2, sA, sT2)
I(f's_add_u32 s{sA}, s{sWave}, 4')
I(f's_cmp_ge_u32 s{sA}, 7')
I(f's_cselect_b32 s{sB}, 0x80000000, s{sT2}')
I(f's_cselect_b32 s{sM0B}, {DUMMY}, s{sM0+1}')
I(f's_cselect_b32 s{sMulB}, 0, 1')
I(f's_cselect_b32 s{sA}, 0, s{sA}')
I(f's_lshl_b32 s{sA}, s{sA}, 6')
woff(vW2 + 1, sA, sB)
I(f'v_lshlrev_b32 v{vL16}, 4, v{vLane}')
I('s_waitcnt lgkmcnt(0)')
def mksrd(n, lo, size):
    I(f's_mov_b32 s{n}, s{lo}'); I(f's_mov_b32 s{n+1}, s{lo+1}'); I(f's_mov_b32 s{n+2}, {size}'); I(f's_mov_b32 s{n+3}, 0x20000')
mksrd(SX, 36, 1835008)
I(f's_cmp_eq_u32 s{sType}, 0')
I(f's_cselect_b32 s{SW}, s38, s44')
I(f's_cselect_b32 s{SW+1}, s39, s45')
I(f's_mov_b32 s{SW+2}, 1204224'); I(f's_mov_b32 s{SW+3}, 0x20000')
mksrd(SWS, 54, WS_SIZE)
mksrd(SWOA, 40, 401408); mksrd(SWOB, 46, 401408); mksrd(SOUT, 50, 1835008); mksrd(SDBG, 52, 256); mksrd(SGW, 48, 896)
if DEBUG:
    I(f's_mov_b32 s{sStamp}, s98'); I(f's_mov_b32 s{sStamp+1}, s99'); nstamp[0] = 1
I('s_cmp_ge_u32 s2, 8')
I('s_cbranch_scc1 L_nozero')
for k in range(4): I(f'v_mov_b32 v{vF+k}, 0')
I(f'v_lshlrev_b32 v{vT[2]}, 4, v0')
I(f's_lshl_b32 s{sT0}, s2, 13')
I(f's_add_u32 s{sT0}, s{sT0}, {WS_KV}')
e.Ix(f'buffer_store_dwordx4 {v4(vF)}, v{vT[2]}, {srd(SWS)}, s{sT0} offen sc1')
I(f's_add_u32 s{sT0}, s{sT0}, 4096')
e.Ix(f'buffer_store_dwordx4 {v4(vF)}, v{vT[2]}, {srd(SWS)}, s{sT0} offen sc1')
I(f's_cmp_lg_u32 s{sWave}, 0')
I('s_cbranch_scc1 L_nozero')
I(f's_lshl_b32 s{sT0}, s2, 10')
I(f's_add_u32 s{sT0}, s{sT0}, {WS_CNT}')
e.Ix(f'buffer_store_dwordx4 {v4(vF)}, v{vT[2]}, {srd(SWS)}, s{sT0} offen sc1')
e.label('L_nozero')
I(f's_cmp_lg_u32 s{sType}, 0')
I('s_cbranch_scc1 L_typeB')

ISSUE_AT = {0: -1, 1: -1, 2: 0, 3: 1, 4: 2, 5: 3, 6: 4, 7: 5, 8: 5, 9: 6, 10: 6, 11: 7, 12: 7, 13: 8}

def xreg(tile, t):
    return (tile * 14 + t) * 4

def stage_loads(stage, ntile):
    ops = []
    pos = stage % 7
    if stage < 7:
        for tile in range(ntile):
            for ks in range(2):
                ops.append(lambda tile=tile, ks=ks: I(
                    f'buffer_load_dwordx4 {a4(xreg(tile, 2*pos+ks))}, v{vX0+tile}, {srd(SX)}, s{sXo+pos} offen offset:{64*ks}'))
        for s in range(4):
            def f(s=s):
                base = P1 + pos * 14336
                if s == 3:
                    I(f's_mul_i32 m0, s{sMul3}, {base}')
                    I(f's_add_u32 m0, m0, s{sM0+3}')
                else:
                    I(f's_add_u32 m0, s{sM0+s}, {base}')
                return I(f'buffer_load_dwordx4 v{vW1+s}, {srd(SW)}, s{sWo+pos} offen lds')
            ops.append(f)
    else:
        for s in range(2):
            def f(s=s):
                base = P2 + pos * 7168
                if s == 1:
                    I(f's_mul_i32 m0, s{sMulB}, {base}')
                    I(f's_add_u32 m0, m0, s{sM0B}')
                else:
                    I(f's_add_u32 m0, s{sM0}, {base}')
                return I(f'buffer_load_dwordx4 v{vW2+s}, {srd(SW)}, s{sWo+pos} offen lds')
            ops.append(f)
    return ops

def frag_addr(t, f):
    stage, ks = t // 2, t & 1
    pos = stage % 7
    if stage < 7:
        sec, hl, ct = f >> 2, (f >> 1) & 1, f & 1
        off = P1 + pos * 14336 + sec * 7168
    else:
        hl, ct = (f >> 1) & 1, f & 1
        off = P2 + pos * 7168
    off += ks * 32 * 112 + ct * 32
    return (vLa if hl == 0 else vLb), off

class LB:
    base = 0

def issue_frag(t, f):
    va, off = frag_addr(t, f)
    while off - LB.base + 112 > 65535:
        I(f'v_add_u32 v{vLa}, 57344, v{vLa}')
        I(f'v_add_u32 v{vLb}, 57344, v{vLb}')
        LB.base += 57344
    o = off - LB.base
    assert o >= 0
    I(f'ds_read_b64_tr_b16 {v2(vF+4*f)}, v{va} offset:{o}')
    return I(f'ds_read_b64_tr_b16 {v2(vF+4*f+2)}, v{va} offset:{o+112}')

def run_gemm(ntile, mfmas, fillers, hooks, extra_reads=None):
    LB.base = 0
    tags = {}
    for st in (0, 1):
        for op in stage_loads(st, ntile): tags[st] = op()
    e.need_vm(tags[0])
    I('s_barrier')
    if ('bar', 0) in hooks: hooks[('bar', 0)]()
    ftag = {}
    for f in range(8): ftag[(0, f)] = issue_frag(0, f)
    fq = []
    for t in range(28):
        stage = t // 2
        nf = 8 if t < 14 else 4
        nfn = 0 if t == 27 else (8 if t + 1 < 14 else 4)
        if ('pre', t) in hooks: hooks[('pre', t)]()
        if (t & 1) and stage + 1 <= 13:
            if ('prebar', stage + 1) in hooks: hooks[('prebar', stage + 1)]()
            e.need_vm(tags[stage + 1])
            I('s_barrier')
            if ('bar', stage + 1) in hooks: hooks[('bar', stage + 1)]()
        vops = []
        for st, at in ISSUE_AT.items():
            if at == stage:
                ops = stage_loads(st, ntile)
                h = (len(ops) + 1) // 2
                vops += [(st, o) for o in (ops[:h] if (t & 1) == 0 else ops[h:])]
        fq += fillers.get(t, [])
        if extra_reads: extra_reads(t, 'issue')
        for f in range(nf):
            e.need_lg(ftag[(t, f)])
            ms = mfmas(t, f)
            for m in ms:
                I(m)
                for _ in range(2):
                    if fq: fq.pop(0)()
            if f < nfn: ftag[(t + 1, f)] = issue_frag(t + 1, f)
            nv = (len(vops) + nf - f - 1) // (nf - f)
            for _ in range(nv):
                st, o = vops.pop(0); tags[st] = o()
        if extra_reads: extra_reads(t, 'use')
        if ('post', t) in hooks: hooks[('post', t)]()
    while fq: fq.pop(0)()

def mf(d, a, b, first):
    return f'v_mfma_f32_16x16x32_bf16 {v4(d)}, {a}, {b}, {"0" if first else v4(d)}'

def flag_store_hook():
    I('s_cmp_ge_u32 s2, 8')
    I('s_cbranch_scc1 L_nf' + cur)
    I(f's_cmp_lg_u32 s{sWave}, 0')
    I('s_cbranch_scc1 L_nf' + cur)
    I(f's_lshl_b32 s{sT0}, s2, 2')
    I(f'v_mov_b32 v{vFlag}, 1')
    I(f's_mov_b64 exec, 1')
    e.Ix(f'buffer_store_dword v{vFlag}, off, {srd(SDBG)}, s{sT0} sc1')
    I(f's_mov_b64 exec, -1')
    e.label('L_nf' + cur)

def flag_load_hook():
    I(f'v_lshlrev_b32 v{vMisc}, 2, v{vLane}')
    I(f's_cmp_lg_u32 s{sWave}, 0')
    I('s_cbranch_scc1 L_nl' + cur)
    I(f's_mov_b64 exec, 0xff')
    e.Ix(f'buffer_load_dword v{vFlag}, v{vMisc}, {srd(SDBG)}, 0 offen sc1')
    I(f's_mov_b64 exec, -1')
    e.label('L_nl' + cur)

def flag_check_hook():
    I(f's_cmp_lg_u32 s{sWave}, 0')
    I('s_cbranch_scc1 L_nc' + cur)
    I(f's_mov_b64 exec, 0xff')
    I(f's_mov_b32 s{sSpin}, 0')
    e.label('L_fc' + cur)
    I(f'v_cmp_eq_u32 vcc, 0, v{vFlag}')
    e.nop(4)
    I('s_cbranch_vccz L_fok' + cur)
    I(f's_add_u32 s{sSpin}, s{sSpin}, 1')
    I(f's_cmp_ge_u32 s{sSpin}, {SPIN_MAX}')
    I('s_cbranch_scc1 L_fok' + cur)
    I('s_sleep 2')
    e.Ix(f'buffer_load_dword v{vFlag}, v{vMisc}, {srd(SDBG)}, 0 offen sc1')
    I('s_waitcnt vmcnt(0)')
    I('s_branch L_fc' + cur)
    e.label('L_fok' + cur)
    I(f's_mov_b64 exec, -1')
    e.label('L_nc' + cur)

def lane_tr_addr():
    a, b = vT[2], vT[3]
    I(f'v_bfe_u32 v{a}, v{vLane}, 2, 2')
    I(f'v_lshrrev_b32 v{b}, 4, v{vLane}')
    I(f'v_lshl_add_u32 v{a}, v{b}, 2, v{a}')
    I(f'v_mul_u32_u24 v{a}, 224, v{a}')
    I(f'v_and_b32 v{b}, 3, v{vLane}')
    I(f'v_lshl_add_u32 v{vLa}, v{b}, 3, v{a}')

def xlane(op, m, m2, out):
    out.append(lambda: I(f'v_mov_b32 v{m2}, v{m}'))
    out.append(lambda: I(f'v_permlane16_swap_b32 v{m}, v{m2}'))
    out.append(lambda: I(f'{op} v{m}, v{m}, v{m2}'))
    out.append(lambda: I(f'v_mov_b32 v{m2}, v{m}'))
    out.append(lambda: I(f'v_permlane32_swap_b32 v{m}, v{m2}'))
    out.append(lambda: I(f'{op} v{m}, v{m}, v{m2}'))

snap = copy.deepcopy({k: getattr(e, k) for k in ('t', 'w', 'cread', 'stread', 'vm_issued', 'vm_done', 'lg_issued', 'lg_done')})
snap_stamp = nstamp[0]

sOa = 92
def o_offsets(regs, swap):
    I(f's_lshl_b32 s{sT0}, s{sI}, 3')
    I(f's_lshl_b32 s{sT1}, s{sU}, 2')
    I(f's_add_u32 s{sT0}, s{sT0}, s{sT1}')
    I(f's_add_u32 s{sT0}, s{sT0}, s{sP}')
    I(f's_lshl_b32 s{sT0}, s{sT0}, 5')
    I(f's_lshl_b32 s{sT1}, s{sType}, 4')
    I(f's_add_u32 s{sT0}, s{sT0}, s{sT1}')
    I(f's_lshl_b32 s{sT1}, s{sJ}, 1')
    I(f's_add_u32 s{sT0}, s{sT0}, s{sT1}')
    if swap:
        I(f's_add_u32 s{regs[0][0]}, s{sT0}, s{sU}')
        I(f's_sub_u32 s{regs[0][1]}, s{sT0}, s{sU}')
        I(f's_add_u32 s{regs[0][1]}, s{regs[0][1]}, 1')
    else:
        I(f's_mov_b32 s{regs[0][0]}, s{sT0}')
        I(f's_add_u32 s{regs[0][1]}, s{sT0}, 1')
    for h in range(2):
        I(f's_lshl_b32 s{regs[0][h]}, s{regs[0][h]}, 10')
        I(f's_add_u32 s{regs[1][h]}, s{regs[0][h]}, 65536')

cur = 'A'
def setupA():
    lane_tr_addr()
    I(f's_mul_i32 s{sT0}, s{sU}, 56')
    I(f's_sub_u32 s{sT1}, 56, s{sT0}')
    I(f'v_add_u32 v{vLb}, s{sT1}, v{vLa}')
    I(f'v_add_u32 v{vLa}, s{sT0}, v{vLa}')
    q, g, c, d, mk = vT[0], vT[1], vT[2], vT[3], vT[4]
    I(f'v_and_b32 v{q}, 15, v{vLane}')
    I(f'v_lshrrev_b32 v{g}, 4, v{vLane}')
    I(f'v_mov_b32 v{vT[5]}, 0xff800000')
    I(f's_or_b32 s{sT2}, s{sI}, s{sU}')
    for r in range(4):
        I(f'v_lshl_add_u32 v{c}, v{g}, 2, {r}')
        I(f'v_cmp_le_u32 s[{sCur+2*r}:{sCur+2*r+1}], v{c}, v{q}')
        I(f'v_sub_u32 v{d}, v{q}, v{c}')
        I(f'v_and_b32 v{d}, 15, v{d}')
        I(f'v_cmp_gt_u32 vcc, 8, v{d}')
        I(f'v_cndmask_b32 v{vBias+r}, v{vT[5]}, 0, vcc')
        I(f's_and_b64 s[{sSave}:{sSave+1}], vcc, s[{sCur+2*r}:{sCur+2*r+1}]')
        I(f's_cmp_eq_u32 s{sT2}, 0')
        I(f's_cselect_b64 s[{sSave}:{sSave+1}], s[{sSave}:{sSave+1}], vcc')
        I(f'v_cndmask_b32 v{vBias0+r}, v{vT[5]}, 0, s[{sSave}:{sSave+1}]')
    for (mc, mp, r) in ((vMC01, vMP01, 0), (vMC23, vMP23, 2)):
        I(f'v_mov_b32 v{c}, 0xffff')
        I(f'v_cndmask_b32 v{mc}, 0, v{c}, s[{sCur+2*r}:{sCur+2*r+1}]')
        I(f'v_mov_b32 v{c}, 0xffff0000')
        I(f'v_cndmask_b32 v{d}, 0, v{c}, s[{sCur+2*r+2}:{sCur+2*r+3}]')
        I(f'v_or_b32 v{mc}, v{mc}, v{d}')
        I(f'v_not_b32 v{mp}, v{mc}')
    I(f'v_cmp_gt_u32 vcc, 3, v{g}')
    I(f'v_cndmask_b32 v{vPad}, 0, -1, vcc')
    I(f's_lshl_b32 s{sT0}, s{sP}, 12')
    I(f's_add_u32 s{sT0}, s{sT0}, {EXCH}')
    I(f's_lshl_b32 s{sT1}, s{sU}, 10')
    I(f's_add_u32 s{sT1}, s{sT1}, s{sT0}')
    I(f'v_add_u32 v{vEw}, s{sT1}, v{vL16}')
    I(f's_add_u32 s{sT1}, s{sT0}, 2048')
    I(f's_add_u32 s{sT2}, s{sT0}, 3072')
    I(f's_cmp_eq_u32 s{sU}, 0')
    I(f's_cselect_b32 s{sT3}, s{sT1}, {DUMMY}')
    I(f'v_add_u32 v{vEw+1}, s{sT3}, v{vL16}')
    I(f's_cselect_b32 s{sT3}, s{sT2}, {DUMMY}')
    I(f'v_add_u32 v{vEw+2}, s{sT3}, v{vL16}')
    I(f's_cselect_b32 s{sT3}, s{sT0}, s{sT2}')
    I(f'v_add_u32 v{vEr}, s{sT3}, v{vL16}')
    I(f's_add_u32 s{sT0}, s{sT0}, 1024')
    I(f's_cmp_eq_u32 s{sU}, 0')
    I(f's_cselect_b32 s{sT3}, s{sT0}, s{sT1}')
    I(f'v_add_u32 v{vEr+1}, s{sT3}, v{vL16}')
    I(f's_mov_b32 s{sScale}, 0x{np_f32(28 ** -0.5 * math.log2(math.e)):08x}')

import struct as _st
def np_f32(x): return _st.unpack('<I', _st.pack('<f', x))[0]

def accQ(T, f): return vA1 + (T * 4 + f) * 4
def accK(T, f): return vA1 + 32 + (T * 4 + f) * 4
def accKh(ct): return vA1 + 64 + ct * 4
def accV(T, f): return vA2 + (T * 4 + f) * 4
def accVh(ct): return vA2 + 32 + ct * 4

def mfA(t, f):
    fr = v4(vF + 4 * f)
    out = []
    if t < 14:
        acc = accQ if f < 4 else accK
        for T in range(2): out.append(mf(acc(T, f & 3), fr, a4(xreg(T, t)), t == 0))
        if f in (4, 5): out.append(mf(accKh(f - 4), fr, a4(xreg(2, t)), t == 0))
    else:
        tt = t - 14
        for T in range(2): out.append(mf(accV(T, f), a4(xreg(T, tt)), fr, tt == 0))
        if f in (0, 1): out.append(mf(accVh(f), a4(xreg(2, tt)), fr, tt == 0))
    return out

def pack_T(out, dst, acc0, acc1, mask=True):
    out.append(lambda: I(f'v_cvt_pk_bf16_f32 v{dst}, v{acc0}, v{acc0+1}'))
    out.append(lambda: I(f'v_cvt_pk_bf16_f32 v{dst+1}, v{acc0+2}, v{acc0+3}'))
    out.append(lambda: I(f'v_cvt_pk_bf16_f32 v{dst+2}, v{acc1}, v{acc1+1}'))
    out.append(lambda: I(f'v_cvt_pk_bf16_f32 v{dst+3}, v{acc1+2}, v{acc1+3}'))
    if mask:
        out.append(lambda: I(f'v_and_b32 v{dst+2}, v{vPad}, v{dst+2}'))
        out.append(lambda: I(f'v_and_b32 v{dst+3}, v{vPad}, v{dst+3}'))

def Qp(T, h): return vQp + (T * 2 + h) * 4
def Kp(T, h): return vKp + (T * 2 + h) * 4
vS = vA1
vPf = vA1 + 32
vInv = vA1 + 48
vTm = vA1 + 52
vVp = vQp
vVh = vQp + 24
vO = vA1
vOp = vA1 + 52

fA14, fA16 = [], []
xt = {}
pack_T(fA14, vKh, accKh(0), accKh(1))
for h in range(2): pack_T(fA14, Kp(1, h), accK(1, 2 * h), accK(1, 2 * h + 1))
fA14.append(lambda: I(f'ds_write_b128 v{vEw}, {v4(vKh)}'))
fA14.append(lambda: I(f'ds_write_b128 v{vEw+1}, {v4(Kp(1,0))}'))
def _w3(): xt['kw'] = I(f'ds_write_b128 v{vEw+2}, {v4(Kp(1,1))}')
fA14.append(_w3)
NA14 = len(fA14)
for h in range(2): pack_T(fA14, Kp(0, h), accK(0, 2 * h), accK(0, 2 * h + 1))
for T in range(2):
    for h in range(2): pack_T(fA14, Qp(T, h), accQ(T, 2 * h), accQ(T, 2 * h + 1))

def softmax_unit(out, T, h):
    u = T * 2 + h
    sc, sp, tm = vS + 8 * u, vS + 8 * u + 4, vTm + 4 * u
    kprev = Kp(0, h) if T == 1 else vKx + 4 * h
    bias = vBias if T == 1 else vBias0
    if T == 0:
        out.append(lambda: e.need_lg(xt['kr']))
    out.append(lambda: I(mf(sc, v4(Kp(T, h)), v4(Qp(T, h)), True)))
    out.append(lambda: I(mf(sp, v4(kprev), v4(Qp(T, h)), True)))
    return sc, sp, tm, bias

def softmax_valu(out, T, h, sc, sp, tm, bias):
    u = T * 2 + h
    for r in range(4):
        out.append(lambda r=r: I(f'v_cndmask_b32 v{sc+r}, v{sp+r}, v{sc+r}, s[{sCur+2*r}:{sCur+2*r+1}]'))
    for r in range(4):
        out.append(lambda r=r: I(f'v_fma_f32 v{sc+r}, v{sc+r}, s{sScale}, v{bias+r}'))
    m, m2 = tm, tm + 1
    out.append(lambda: I(f'v_max3_f32 v{m}, v{sc}, v{sc+1}, v{sc+2}'))
    out.append(lambda: I(f'v_max_f32 v{m}, v{m}, v{sc+3}'))
    xlane('v_max_f32', m, m2, out)
    for r in range(4): out.append(lambda r=r: I(f'v_sub_f32 v{sc+r}, v{sc+r}, v{m}'))
    for r in range(4): out.append(lambda r=r: I(f'v_exp_f32 v{sc+r}, v{sc+r}'))
    out.append(lambda: I(f'v_add_f32 v{m}, v{sc}, v{sc+1}'))
    out.append(lambda: I(f'v_add_f32 v{m2}, v{sc+2}, v{sc+3}'))
    out.append(lambda: I(f'v_cvt_pk_bf16_f32 v{tm+2}, v{sc}, v{sc+1}'))
    out.append(lambda: I(f'v_add_f32 v{m}, v{m}, v{m2}'))
    out.append(lambda: I(f'v_cvt_pk_bf16_f32 v{tm+3}, v{sc+2}, v{sc+3}'))
    xlane('v_add_f32', m, m2, out)
    pf = vPf + 4 * u
    out.append(lambda: I(f'v_and_b32 v{pf}, v{vMP01}, v{tm+2}'))
    out.append(lambda: I(f'v_and_b32 v{pf+1}, v{vMP23}, v{tm+3}'))
    out.append(lambda: I(f'v_and_b32 v{pf+2}, v{vMC01}, v{tm+2}'))
    out.append(lambda: I(f'v_and_b32 v{pf+3}, v{vMC23}, v{tm+3}'))
    out.append(lambda: I(f'v_rcp_f32 v{vInv+u}, v{m}'))

def interleave(lists):
    out = []
    n = max(len(l) for l in lists)
    for k in range(n):
        for l in lists:
            if k < len(l): out.append(l[k])
    return out

units = {}
for T in (1, 0):
    dst = fA14 if T == 1 else fA16
    vl = []
    for h in range(2): units[(T, h)] = softmax_unit(dst, T, h)
    for h in range(2):
        l = []; softmax_valu(l, T, h, *units[(T, h)]); vl.append(l)
    dst += interleave(vl)

def A_prebar9():
    assert 'kw' in xt
    e.need_lg(xt['kw'])
def A_bar9():
    I(f'ds_read_b128 {v4(vKx)}, v{vEr}')
    xt['kr'] = I(f'ds_read_b128 {v4(vKx+4)}, v{vEr+1}')

sOA = [[94, 95], [96, 97]]
def A_bar0():
    flag_store_hook()
hooksA = {('bar', 0): A_bar0, ('pre', 6): flag_load_hook, ('prebar', 7): flag_check_hook,
          ('prebar', 9): A_prebar9, ('bar', 9): A_bar9, ('post', 13): stamp}
_orig_need = e.need_vm
def first_need(tag):
    e.need_vm = _orig_need
    setupA()
    stamp()
    _orig_need(tag)
e.need_vm = first_need
run_gemm(3, mfA, {14: fA14, 18: fA16}, hooksA)
stamp()
def Vp(h, dt): return vVp + (h * 2 + dt) * 6
for ct in range(2):
    I(f'v_cvt_pk_bf16_f32 v{vVh+2*ct}, v{accVh(ct)}, v{accVh(ct)+1}')
    I(f'v_cvt_pk_bf16_f32 v{vVh+2*ct+1}, v{accVh(ct)+2}, v{accVh(ct)+3}')
for T in (1, 0):
    for h in range(2):
        for dt in range(2):
            a = accV(T, 2 * h + dt); d = Vp(h, dt) + 2 + 2 * T
            I(f'v_cvt_pk_bf16_f32 v{d}, v{a}, v{a+1}')
            I(f'v_cvt_pk_bf16_f32 v{d+1}, v{a+2}, v{a+3}')
    if T == 1:
        I(f'ds_write_b128 v{vEw}, {v4(vVh)}')
        I(f'ds_write2_b64 v{vEw+1}, {v2(Vp(0,0)+4)}, {v2(Vp(0,1)+4)} offset0:0 offset1:1')
        tw = I(f'ds_write2_b64 v{vEw+2}, {v2(Vp(1,0)+4)}, {v2(Vp(1,1)+4)} offset0:0 offset1:1')
o_offsets(sOA, True)
e.need_lg(tw)
I('s_barrier')
for h in range(2):
    I(f'ds_read_b64 {v2(Vp(h,0))}, v{vEr+h}')
    tr = I(f'ds_read_b64 {v2(Vp(h,1))}, v{vEr+h} offset:8')
def Oacc(T, h, dt): return vO + ((T * 2 + h) * 2 + dt) * 4
for T in (1, 0):
    if T == 0: e.need_lg(tr)
    for h in range(2):
        for dt in range(2):
            I(mf(Oacc(T, h, dt), v4(Vp(h, dt) + 2 * T), v4(vPf + 4 * (T * 2 + h)), True))
def o_finish(T, h, inv, sreg):
    u = T * 2 + h
    d = vOp + 4 * u
    for dt in range(2):
        a = Oacc(T, h, dt)
        for r in range(4): I(f'v_mul_f32 v{a+r}, v{inv}, v{a+r}')
        I(f'v_cvt_pk_bf16_f32 v{d+2*dt}, v{a}, v{a+1}')
        I(f'v_cvt_pk_bf16_f32 v{d+2*dt+1}, v{a+2}, v{a+3}')
    I(f'v_and_b32 v{d+2}, v{vPad}, v{d+2}')
    I(f'v_and_b32 v{d+3}, v{vPad}, v{d+3}')
    I(f'buffer_store_dwordx4 {v4(d)}, v{vL16}, {srd(SWS)}, s{sreg} offen sc1')
for T in (1, 0):
    for h in range(2): o_finish(T, h, vInv + T * 2 + h, sOA[T][h])
I('s_branch L_publish')
stA = nstamp[0]

for k, v in copy.deepcopy(snap).items(): setattr(e, k, v)
nstamp[0] = snap_stamp
cur = 'B'
e.label('L_typeB')
vGa = vEw
vKm = vEw + 1
I(f's_cmp_lg_u32 s{sWave}, 0')
I('s_cbranch_scc1 L_nogw')
I(f's_mov_b32 exec_hi, 0xffffff')
I(f's_mov_b32 m0, {GW}')
e.Ix(f'buffer_load_dwordx4 v{vL16}, {srd(SGW)}, 0 offen lds')
I(f's_mov_b32 m0, {GW+896}')
e.Ix(f'buffer_load_dwordx4 v{vL16}, {srd(SGW)}, 0 offen lds')
I(f's_mov_b64 exec, -1')
e.label('L_nogw')
sOne = 90
def setupB():
    lane_tr_addr()
    I(f'v_add_u32 v{vLb}, 56, v{vLa}')
    q, g = vT[0], vT[1]
    I(f'v_and_b32 v{q}, 15, v{vLane}')
    I(f'v_lshrrev_b32 v{g}, 4, v{vLane}')
    I(f'v_cmp_gt_u32 vcc, 3, v{g}')
    I(f'v_cndmask_b32 v{vPad}, 0, -1, vcc')
    I(f'v_cmp_gt_u32 vcc, 12, v{q}')
    I(f'v_cndmask_b32 v{vKm}, 0, -1, vcc')
    I(f'v_cmp_eq_u32 s[{sOne}:{sOne+1}], 12, v{q}')
    I(f'v_mov_b32 v{vOne}, 0x3f803f80')
    I(f'v_lshlrev_b32 v{vGa}, 4, v{g}')
    I(f'v_add_u32 v{vGa}, s{sXo}, v{vGa}')
    I(f'v_add_u32 v{vGa}, {GW}, v{vGa}')
    I(f's_mov_b32 s{sScale}, 0x{np_f32(math.log2(math.e)):08x}')
    I(f's_mov_b32 s{sScale+1}, 0x{np_f32(1e-6):08x}')

def baccK(T, f): return vA1 + (T * 4 + f) * 4
def baccV(T, f): return vA1 + 32 + (T * 4 + f) * 4
def baccQ(T, f): return vA2 + (T * 4 + f) * 4
def baccG(T): return vA2 + 32 + T * 4
def mfB(t, f):
    fr = v4(vF + 4 * f)
    out = []
    if t < 14:
        acc = baccK if f < 4 else baccV
        for T in range(2): out.append(mf(acc(T, f & 3), a4(xreg(T, t)), fr, t == 0))
    else:
        tt = t - 14
        for T in range(2): out.append(mf(baccQ(T, f), fr, a4(xreg(T, tt)), tt == 0))
    return out
gt = {}
def gate_reads(t, what):
    if t < 14: return
    tt = t - 14
    if what == 'issue':
        gt[t] = I(f'ds_read_b128 {v4(vG)}, v{vGa} offset:{tt*64}')
    else:
        e.need_lg(gt[t])
        for T in range(2): I(mf(baccG(T), v4(vG), a4(xreg(T, tt)), tt == 0))

def phi(a, tmp):
    for r in range(4): I(f'v_mul_f32 v{tmp+r}, s{sScale}, v{a+r}')
    for r in range(4): I(f'v_min_f32 v{tmp+r}, 0, v{tmp+r}')
    for r in range(4): I(f'v_exp_f32 v{tmp+r}, v{tmp+r}')
    for r in range(4): I(f'v_max_f32 v{a+r}, 0, v{a+r}')
    for r in range(4): I(f'v_add_f32 v{tmp+r}, s{sScale+1}, v{tmp+r}')
    for r in range(4): I(f'v_add_f32 v{a+r}, v{a+r}, v{tmp+r}')

vPK = vQp
vVV = vQp + 16
vKV = vA1
vRd = vA1 + 32
bt = {}
def B_kv():
    stamp()
    for h in range(2):
        for dt in range(2):
            f = 2 * h + dt
            for T in range(2):
                a = baccK(T, f)
                phi(a, vT[0] if T == 0 else vT[4])
            for T in range(2):
                a = baccK(T, f); d = vPK + 4 * f + 2 * T
                I(f'v_cvt_pk_bf16_f32 v{d}, v{a}, v{a+1}')
                I(f'v_cvt_pk_bf16_f32 v{d+1}, v{a+2}, v{a+3}')
            for T in range(2):
                a = baccV(T, f); d = vVV + 4 * f + 2 * T
                I(f'v_cvt_pk_bf16_f32 v{d}, v{a}, v{a+1}')
                I(f'v_cvt_pk_bf16_f32 v{d+1}, v{a+2}, v{a+3}')
            if dt == 1:
                for k in range(4):
                    I(f'v_and_b32 v{vPK+4*f+k}, v{vKm}, v{vPK+4*f+k}')
                    I(f'v_cndmask_b32 v{vVV+4*f+k}, v{vVV+4*f+k}, v{vOne}, s[{sOne}:{sOne+1}]')
    I(f's_lshl_b32 s{sT0}, s{sWave}, 13')
    I(f'v_add_u32 v{vMisc+1}, s{sT0}, v{vL16}')
    for h in range(2):
        for c in range(2):
            for a in range(2):
                k = (h * 2 + c) * 2 + a
                I(mf(vKV + 4 * k, v4(vPK + 4 * (2 * h + a)), v4(vVV + 4 * (2 * h + c)), True))
    for k in range(8):
        tw = I(f'ds_write_b128 v{vMisc+1}, {v4(vKV+4*k)} offset:{k*1024}')
    I(f's_lshl_b32 s{sT0}, s{sWave}, 11')
    I(f'v_lshlrev_b32 v{vMisc+2}, 2, v{vLane}')
    I(f'v_add_u32 v{vMisc+2}, s{sT0}, v{vMisc+2}')
    flag_check_hook()
    e.need_lg(tw)
    I('s_barrier')
    rt = {}
    for half in range(2):
        for m in range(4 * half, 4 * half + 4):
            for src in range(4):
                rt[(m, src)] = I(f'ds_read_b32 v{vRd + (m & 3) * 4 + src + 16 * half}, v{vMisc+2} offset:{src*8192 + m*256}') if not (m % 4 == 3 and src == 3 and False) else None
            if m % 4 == 2: pass
        if half == 0:
            I(f's_lshl_b32 s{sT1}, s{sJ}, 13')
            I(f's_add_u32 s{sT1}, s{sT1}, {WS_KV}')
        for m in range(4 * half, 4 * half + 4):
            b = vRd + (m & 3) * 4 + 16 * half
            e.need_lg(rt[(m, 3)])
            I(f'v_add_f32 v{b}, v{b}, v{b+1}')
            I(f'v_add_f32 v{b+2}, v{b+2}, v{b+3}')
            I(f'v_add_f32 v{b}, v{b}, v{b+2}')
            bt['at'] = I(f'buffer_atomic_add_f32 v{b}, v{vMisc+2}, {srd(SWS)}, s{sT1} offen offset:{m*256}')
    stamp()

def cnt_add(sreg_off, lab):
    I(f's_cmp_lg_u32 s{sWave}, 0')
    I(f's_cbranch_scc1 {lab}')
    I(f'v_mov_b32 v{vFlag}, 1')
    I('s_mov_b64 exec, 1')
    e.Ix(f'buffer_atomic_add v{vFlag}, off, {srd(SWS)}, s{sreg_off}')
    I('s_mov_b64 exec, -1')
    e.label(lab)

def cnt_wait(sreg_off, n, lab):
    I(f's_cmp_lg_u32 s{sWave}, 0')
    I(f's_cbranch_scc1 {lab}_d')
    I('s_mov_b64 exec, 1')
    I(f's_mov_b32 s{sSpin}, 0')
    e.label(lab)
    e.Ix(f'buffer_load_dword v{vFlag}, off, {srd(SWS)}, s{sreg_off} sc1')
    I(f's_add_u32 s{sSpin}, s{sSpin}, 1')
    I('s_waitcnt vmcnt(0)')
    I(f'v_readfirstlane_b32 s{sT3}, v{vFlag}')
    I(f's_cmp_ge_u32 s{sT3}, {n}')
    I(f's_cbranch_scc1 {lab}_k')
    I(f's_cmp_ge_u32 s{sSpin}, {SPIN_MAX}')
    I(f's_cbranch_scc1 {lab}_k')
    I('s_sleep 1')
    I(f's_branch {lab}')
    e.label(lab + '_k')
    I('s_mov_b64 exec, -1')
    e.label(lab + '_d')
    I('s_barrier')

sKVc = 92
def B_prebar_cnt():
    e.need_vm(bt['at'])
def B_bar_cnt():
    I(f's_lshl_b32 s{sKVc}, s{sJ}, 10')
    I(f's_add_u32 s{sKVc}, s{sKVc}, {WS_CNT}')
    cnt_add(sKVc, 'L_kvadd')

hooksB = {('bar', 0): flag_store_hook, ('pre', 6): flag_load_hook, ('post', 13): B_kv,
          ('prebar', 10): B_prebar_cnt, ('bar', 10): B_bar_cnt}
def first_needB(tag):
    e.need_vm = _orig_need
    setupB()
    stamp()
    _orig_need(tag)
e.need_vm = first_needB
run_gemm(2, mfB, {}, hooksB, gate_reads)
stamp()
vPQ = vQp
for T in range(2):
    for h in range(2):
        for ct in range(2): phi(baccQ(T, 2 * h + ct), vT[0] if ct == 0 else vT[4])
        l = []; pack_T(l, vPQ + 4 * (T * 2 + h), baccQ(T, 2 * h), baccQ(T, 2 * h + 1))
        for x in l: x()
for T in range(2):
    a = baccG(T)
    I(f'v_mul_f32 v{a}, s{sScale}, v{a}')
    I(f'v_exp_f32 v{a}, -v{a}')
    I(f'v_add_f32 v{a}, 1.0, v{a}')
    I(f'v_rcp_f32 v{a}, v{a}')
sOB = [[94, 95], [96, 97]]
I(f's_cmp_lg_u32 s{sJ}, 0')
I('s_cbranch_scc1 L_nog')
I(f's_lshl_b32 s{sT0}, s{sI}, 3')
I(f's_lshl_b32 s{sT1}, s{sU}, 2')
I(f's_add_u32 s{sT0}, s{sT0}, s{sT1}')
I(f's_add_u32 s{sT0}, s{sT0}, s{sP}')
I(f's_lshl_b32 s{sT0}, s{sT0}, 6')
I(f's_add_u32 s{sT0}, s{sT0}, {WS_G}')
I(f'v_lshlrev_b32 v{vMisc}, 2, v{vLane}')
I('s_mov_b64 exec, 0xffff')
e.Ix(f'buffer_store_dword v{baccG(0)}, v{vMisc}, {srd(SWS)}, s{sT0} offen sc1')
e.Ix(f'buffer_store_dword v{baccG(1)}, v{vMisc}, {srd(SWS)}, s{sT0} offen offset:128 sc1')
I('s_mov_b64 exec, -1')
e.label('L_nog')
cnt_wait(sKVc, 16, 'L_kvwait')
stamp()
I(f's_lshl_b32 s{sT1}, s{sJ}, 13')
I(f's_add_u32 s{sT1}, s{sT1}, {WS_KV}')
I(f's_add_u32 s{sT2}, s{sT1}, 4096')
vKVf = vA1
kt = {}
for k in range(8):
    kt[k] = I(f'buffer_load_dwordx4 {v4(vKVf+4*k)}, v{vL16}, {srd(SWS)}, s{sT1 if k < 4 else sT2} offen offset:{(k&3)*1024} sc1')
o_offsets(sOB, False)
vAf = vA1 + 32
vZf = vA1 + 48
vDen = vA1 + 56
vO = vA2
vOp = vQp + 16
for h in range(2):
    for c in range(2):
        for a in range(2):
            k = (h * 2 + c) * 2 + a
            e.need_vm(kt[k])
            d = vAf + (h * 2 + c) * 4 + 2 * a
            I(f'v_cvt_pk_bf16_f32 v{d}, v{vKVf+4*k}, v{vKVf+4*k+1}')
            I(f'v_cvt_pk_bf16_f32 v{d+1}, v{vKVf+4*k+2}, v{vKVf+4*k+3}')
    for k in range(4):
        I(f'v_mov_b32_dpp v{vZf+4*h+k}, v{vAf+(h*2+1)*4+k} row_newbcast:12 row_mask:0xf bank_mask:0xf')
    for T in range(2):
        pq = v4(vPQ + 4 * (T * 2 + h))
        I(mf(vDen + 4 * (T * 2 + h), v4(vZf + 4 * h), pq, True))
        for c in range(2): I(mf(Oacc(T, h, c), v4(vAf + (h * 2 + c) * 4), pq, True))
for h in range(2):
    for T in range(2):
        dn = vDen + 4 * (T * 2 + h)
        I(f'v_add_f32 v{dn}, s{sScale+1}, v{dn}')
        I(f'v_rcp_f32 v{dn}, v{dn}')
        o_finish(T, h, dn, sOB[T][h])
nstamp[0] = max(nstamp[0], stA)

e.label('L_publish')
e.fence(2)
I(f's_lshr_b32 s{sT0}, s{sI}, 1')
I(f's_lshl_b32 s{sT0}, s{sT0}, 10')
I(f's_and_b32 s{sT1}, s{sI}, 1')
I(f's_lshl_b32 s{sT2}, s{sType}, 1')
I(f's_add_u32 s{sT1}, s{sT1}, s{sT2}')
I(f's_lshl_b32 s{sT1}, s{sT1}, 7')
I(f's_add_u32 s{sT0}, s{sT0}, s{sT1}')
I(f's_add_u32 s{sT0}, s{sT0}, {WS_CNT+128}')
e.all_vm()
e.all_lg()
I('s_barrier')
cnt_add(sT0, 'L_oadd')
stamp()
I(f's_cmp_ge_u32 s{sR}, 28')
I('s_cbranch_scc1 L_fin')
sR2, sN, sCA, sCB, sOb, sSo, sLo = 64, 65, 66, 67, 68, 69, 70
I(f's_and_b32 s{sT0}, s{sR}, 3')
I(f's_lshl_b32 s{sR2}, s{sC}, 2')
I(f's_add_u32 s{sR2}, s{sR2}, s{sT0}')
I(f's_lshr_b32 s{sN}, s{sR}, 2')
va = vT[0]
I(f'v_lshrrev_b32 v{vT[1]}, 3, v{vLane}')
I(f'v_mul_u32_u24 v{vT[1]}, 896, v{vT[1]}')
I(f'v_bfe_u32 v{vT[2]}, v{vLane}, 4, 2')
I(f'v_lshlrev_b32 v{vT[2]}, 1, v{vT[2]}')
I(f'v_and_b32 v{vT[3]}, 7, v{vLane}')
I(f'v_xor_b32 v{vT[2]}, v{vT[2]}, v{vT[3]}')
I(f'v_lshl_add_u32 v{va}, v{vT[2]}, 4, v{vT[1]}')
I(f's_lshl_b32 s{sT1}, s{sN}, 7')
I(f'v_add_u32 v{va}, s{sT1}, v{va}')
I(f's_lshl_b32 s{sT0}, s{sT0}, 4')
I(f's_add_u32 s{sT0}, s{sT0}, s{sWave}')
for half in range(2):
    I(f's_mul_i32 s{sSo}, s{sT0}, 7168')
    I(f's_lshl_b32 s{sLo}, s{sT0}, 10')
    for qq in range(14):
        I(f's_add_u32 m0, s{sLo}, {half*57344}')
        I(f'buffer_load_dwordx4 v{va}, {srd(SWOA if half == 0 else SWOB)}, s{sSo} offen lds')
        if qq < 13:
            I(f's_add_u32 s{sSo}, s{sSo}, 28672')
            I(f's_add_u32 s{sLo}, s{sLo}, 4096')
            I(f's_cmp_ge_u32 s{sLo}, 57344')
            I(f's_cselect_b32 s{sT1}, 401408, 0')
            I(f's_cselect_b32 s{sT2}, 57344, 0')
            I(f's_sub_u32 s{sSo}, s{sSo}, s{sT1}')
            I(f's_sub_u32 s{sLo}, s{sLo}, s{sT2}')
vP2 = 10
vQ2 = 14
vOut = 18
vGg = 19
gq, rr = vT[1], vT[2]
I(f'v_lshrrev_b32 v{gq}, 4, v{vLane}')
I(f'v_bfe_u32 v{rr}, v{vLane}, 2, 2')
I(f'v_lshl_add_u32 v{vT[3]}, v{gq}, 2, v{rr}')
I(f'v_bfe_u32 v{vT[4]}, v{vT[3]}, 1, 2')
I(f'v_lshlrev_b32 v{vT[3]}, 7, v{vT[3]}')
I(f'v_and_b32 v{vT[5]}, 3, v{vLane}')
I(f'v_lshl_add_u32 v{vT[3]}, v{vT[5]}, 3, v{vT[3]}')
for t in range(4):
    I(f'v_xor_b32 v{vT[5]}, {t}, v{vT[4]}')
    I(f'v_lshl_add_u32 v{vP2+t}, v{vT[5]}, 5, v{vT[3]}')
I(f's_lshl_b32 s{sT0}, s{sR2}, 6')
I(f's_lshl_b32 s{sT1}, s{sU}, 5')
I(f's_add_u32 s{sT0}, s{sT0}, s{sT1}')
I(f's_add_u32 s{sT0}, s{sT0}, s{sP}')
I(f'v_and_b32 v{vT[5]}, 15, v{vLane}')
I(f'v_lshl_add_u32 v{vT[6]}, v{vT[5]}, 1, s{sT0}')
I(f'v_mul_u32_u24 v{vT[6]}, 896, v{vT[6]}')
I(f'v_lshl_add_u32 v{vOut}, v{gq}, 3, v{vT[6]}')
I(f's_lshl_b32 s{sT1}, s{sN}, 7')
I(f'v_add_u32 v{vOut}, s{sT1}, v{vOut}')
I(f'v_lshlrev_b32 v{vGg}, 2, v{vT[5]}')
I(f's_lshr_b32 s{sT0}, s{sR2}, 2')
I(f's_lshl_b32 s{sT0}, s{sT0}, 10')
I(f's_bfe_u32 s{sT1}, s{sR2}, 0x10001')
I(f's_lshl_b32 s{sT1}, s{sT1}, 7')
I(f's_add_u32 s{sCA}, s{sT0}, s{sT1}')
I(f's_add_u32 s{sCA}, s{sCA}, {WS_CNT+128}')
I(f's_add_u32 s{sCB}, s{sCA}, 256')
I(f's_lshl_b32 s{sOb}, s{sR2}, 2')
I(f's_add_u32 s{sOb}, s{sOb}, s{sWave}')
I(f's_lshl_b32 s{sT2}, s{sOb}, 6')
I(f's_add_u32 s{sT2}, s{sT2}, {WS_G}')
I(f'v_add_u32 v{vGg}, s{sT2}, v{vGg}')
I(f's_lshl_b32 s{sOb}, s{sOb}, 15')
sSl = 71
e.all_vm()
cnt_wait(sCA, 8, 'L_waitA')
stamp()
vAcc = 72
otag = {}
def o_loads(half):
    I(f's_lshl_b32 s{sT0}, s{sN}, 1')
    for pos in range(16):
        I(f's_add_u32 s{sT1}, s{sT0}, {pos}')
        I(f's_and_b32 s{sT1}, s{sT1}, 15')
        I(f's_lshl_b32 s{sT1}, s{sT1}, 10')
        I(f's_add_u32 s{sT1}, s{sT1}, s{sOb}')
        if half: I(f's_add_u32 s{sT1}, s{sT1}, 16384')
        otag[(half, pos)] = I(f'buffer_load_dwordx4 {a4((half*16+pos)*4)}, v{vL16}, {srd(SWS)}, s{sT1} offen sc1')
def p2_addr(half, pos):
    I(f's_lshl_b32 s{sT0}, s{sN}, 1')
    I(f's_add_u32 s{sT0}, s{sT0}, {pos}')
    I(f's_and_b32 s{sT0}, s{sT0}, 15')
    I(f's_mul_i32 s{sT0}, s{sT0}, 3584')
    if half: I(f's_add_u32 s{sT0}, s{sT0}, 57344')
    for t in range(4): I(f'v_add_u32 v{vQ2+t}, s{sT0}, v{vP2 + (t ^ (2 * (pos & 1)))}')
def p2_frag(t):
    I(f'ds_read_b64_tr_b16 {v2(vF+4*t)}, v{vQ2+t}')
    return I(f'ds_read_b64_tr_b16 {v2(vF+4*t+2)}, v{vQ2+t} offset:2048')
def p2_half(half):
    ft = {}
    p2_addr(half, 0)
    for t in range(4): ft[t] = p2_frag(t)
    for pos in range(16):
        if pos < 15: p2_addr(half, pos + 1)
        e.need_vm(otag[(half, pos)])
        for t in range(4):
            e.need_lg(ft[t])
            I(mf(vAcc + (half * 4 + t) * 4, v4(vF + 4 * t), a4((half * 16 + pos) * 4), pos == 0))
            if pos < 15: ft[t] = p2_frag(t)
o_loads(0)
p2_half(0)
cnt_wait(sCB, 8, 'L_waitB')
stamp()
gtag = I(f'buffer_load_dword v{vGg}, v{vGg}, {srd(SWS)}, 0 offen sc1')
o_loads(1)
p2_half(1)
for t in range(4):
    a, b = vAcc + 4 * t, vAcc + 16 + 4 * t
    for r in range(4): I(f'v_sub_f32 v{a+r}, v{a+r}, v{b+r}')
    for r in range(4): I(f'v_fma_f32 v{a+r}, v{a+r}, v{vGg}, v{b+r}')
    I(f'v_cvt_pk_bf16_f32 v{b}, v{a}, v{a+1}')
    I(f'v_cvt_pk_bf16_f32 v{b+1}, v{a+2}, v{a+3}')
    I(f'buffer_store_dwordx2 {v2(b)}, v{vOut}, {srd(SOUT)}, 0 offen offset:{32*t}')
e.label('L_fin')
if DEBUG:
    stamp()
    I('s_waitcnt vmcnt(0) lgkmcnt(0)')
    I(f's_lshl_b32 s{sT0}, s2, 2')
    I(f's_add_u32 s{sT0}, s{sT0}, s{sWave}')
    I(f's_lshl_b32 s{sT0}, s{sT0}, 7')
    I(f's_add_u32 s{sT0}, s{sT0}, {WS_DBG}')
    I('s_mov_b64 exec, 1')
    for k in range(10):
        I(f'v_mov_b32 v2, s{sStamp+2*k}')
        I(f'buffer_store_dword v2, off, {srd(SWS)}, s{sT0} offset:{4*k}')
    I(f's_getreg_b32 s{sT1}, hwreg(HW_REG_XCC_ID)')
    I(f'v_mov_b32 v2, s{sT1}')
    I(f'buffer_store_dword v2, off, {srd(SWS)}, s{sT0} offset:40')
e.label('L_end')
I('s_endpgm')
e.raw(f""".section .rodata,"a"
.p2align 6
.amdhsa_kernel {KNAME}
  .amdhsa_next_free_vgpr 512
  .amdhsa_next_free_sgpr 102
  .amdhsa_accum_offset 256
  .amdhsa_group_segment_fixed_size 0
  .amdhsa_kernarg_size 80
  .amdhsa_user_sgpr_count 2
  .amdhsa_user_sgpr_kernarg_segment_ptr 1
  .amdhsa_system_sgpr_workgroup_id_x 1
.end_amdhsa_kernel""")
open(OUT, 'w').write(e.text())
print('instructions', e.ninstr, 'nop states', e.nnop, file=sys.stderr)
```

```python
import sys, copy, math, struct
sys.path.insert(0, 'work')
from asmlib import Em

KNAME = 'gated_mix__sliding_local_dilated__linear_attn_block__prompt_kernel'
OPT = {a.split('=')[0][2:]: (a.split('=')[1] if '=' in a else True) for a in sys.argv[1:] if a.startswith('--')}
DEBUG = 'dbg' in OPT
OUT = [a for a in sys.argv[1:] if not a.startswith('--')][0]

def f32(x): return struct.unpack('<I', struct.pack('<f', x))[0]

WS_KV = 4 << 20
WS_CNT = WS_KV + 65536
WS_G = WS_KV + 131072
WS_DBG = 6 << 20
WS_SIZE = 8 << 20
WB = 0; XR = 57344; HS = 106496; WT = 114688; DUMMY = 150528; GW = 159744; LDS_SIZE = 163840
CMB = 118784
STG = 135168
def unit_base(u):
    if cur == 'A' or u < 14: return WB + (u & 7) * 7168
    return WT + ((u - 14) % 5) * 7168
sSpin = 3
SX, SW, SWS, SWOA, SWOB, SOUT, SDBG, SGW = 4, 8, 12, 16, 20, 24, 28, 32
sStamp = 36
SX3 = 52
sType, sI, sJ, sWave, sSel1, sP, sU, sH = 56, 57, 58, 59, 60, 61, 62, 63
sWo = 64
sXo = 71
sR, sM0a, sM0b, sXm = 78, 79, 80, 81
sTa, sTb = 82, 83
sSo2, sLo2 = 84, 85
sT0, sT1, sT2, sT3 = 86, 87, 88, 89
sCur = 90
sScale = 98
sSave = 100
SPIN_MAX = 1 << 19

def srd(n): return f's[{n}:{n+3}]'
def v4(n): return f'v[{n}:{n+3}]'
def v2(n): return f'v[{n}:{n+1}]'
def a4(n): return f'a[{n}:{n+3}]'

NV = 136
vLane = 1
vT = [2, 3, 4, 5, 6, 7, 8, 9]
vWs = 10
vXd = 12
vHd = 14
vW2 = 15
vWo = 16
vLa = 17
vXr = 18
vHr = 20
vBias = 22; vBias0 = 26
vMC01, vMC23, vMP01, vMP23, vPad = 30, 31, 32, 33, 34
vL16 = 35
vFlag = 36
vMisc = 37
vF = 40
vA1 = 72
vA2 = 112
aPrev = 112

e = Em()
I = e.I
cur = 'A'
SEL = OPT['stamps'].split(',') if 'stamps' in OPT else ['p1end', 'p2end', 'kvwait', 'pub', 'wait', 'half', 'end']
def stamp(name):
    if DEBUG and name in SEL:
        k = 1 + SEL.index(name)
        assert k < 8
        e.Ix(f's_memtime s[{sStamp+2*k}:{sStamp+2*k+1}]')

e.raw(f"""; fused gated-mix kernel: QKV GEMM + local attention / linear attention + out projection
; @launch grid=(256,1,1) block=(512,1,1) lds={LDS_SIZE}
.amdgcn_target "amdgcn-amd-amdhsa--gfx950"
.text
.globl {KNAME}
.p2align 8
.type {KNAME},@function
{KNAME}:""")
I('s_cmp_ge_u32 s2, 0x100')
I('s_cbranch_scc1 L_end')
if DEBUG: I('s_memtime s[98:99]')
I('s_load_dwordx16 s[36:51], s[0:1], 0')
I('s_load_dwordx4 s[92:95], s[0:1], 64')
I(f'v_and_b32 v{vLane}, 63, v0')
I(f'v_lshrrev_b32 v2, 6, v0')
sC = sT3
I(f's_and_b32 s{sC}, s2, 7')
I(f's_lshr_b32 s{sR}, s2, 3')
I(f'v_readfirstlane_b32 s{sWave}, v2')
sRot = sTa
I(f's_and_b32 s{sType}, s{sC}, 1')
I(f's_lshr_b32 s{sT0}, s{sC}, 2')
I(f's_lshl_b32 s{sI}, s{sT0}, 3')
I(f's_and_b32 s{sT1}, s{sR}, 7')
I(f's_add_u32 s{sI}, s{sI}, s{sT1}')
I(f's_bfe_u32 s{sT0}, s{sC}, 0x10001')
I(f's_lshl_b32 s{sJ}, s{sT0}, 2')
I(f's_lshr_b32 s{sT2}, s{sR}, 3')
I(f's_add_u32 s{sJ}, s{sJ}, s{sT2}')
I(f's_lshl_b32 s{sT2}, s{sT2}, 1')
I(f's_add_u32 s{sRot}, s{sT1}, s{sT2}')
I(f's_and_b32 s{sT0}, s{sC}, 3')
I(f's_add_u32 s{sRot}, s{sRot}, s{sT0}')
for _ in range(2):
    I(f's_sub_u32 s{sT0}, s{sRot}, 7')
    I(f's_cmp_ge_u32 s{sRot}, 7')
    I(f's_cselect_b32 s{sRot}, s{sT0}, s{sRot}')
I(f's_and_b32 s{sP}, s{sWave}, 1')
I(f's_bfe_u32 s{sH}, s{sWave}, 0x10001')
I(f's_lshr_b32 s{sU}, s{sWave}, 2')
I(f's_lshl_b32 s{sXo}, s{sRot}, 7')
I(f's_mul_i32 s{sWo}, s{sXo}, 1344')
q, g = vT[0], vT[1]
I(f'v_lshrrev_b32 v{q}, 3, v{vLane}')
I(f'v_lshrrev_b32 v{g}, 4, v{vLane}')
I(f'v_and_b32 v{vT[3]}, 7, v{vLane}')
I(f's_lshl_b32 s{sT0}, s{sI}, 7')
I(f's_lshr_b32 s{sT2}, s{sWave}, 1')
I(f's_lshl_b32 s{sT1}, s{sT2}, 5')
I(f's_add_u32 s{sT1}, s{sT1}, s{sT0}')
I(f's_add_u32 s{sT1}, s{sT1}, s{sP}')
I(f'v_lshl_add_u32 v{vT[2]}, v{q}, 1, s{sT1}')
I(f'v_mul_u32_u24 v{vT[2]}, 896, v{vT[2]}')
I(f'v_xor_b32 v{vT[4]}, v{vT[3]}, v{g}')
I(f'v_lshl_add_u32 v{vXd}, v{vT[4]}, 4, v{vT[2]}')
I(f'v_xor_b32 v{vXd+1}, 64, v{vXd}')
I(f'v_add_u32 v{vXd+1}, 14336, v{vXd+1}')
I(f's_lshl_b32 s{sXm}, s{sWave}, 11')
I(f's_add_u32 s{sXm}, s{sXm}, {XR}')
I(f's_sub_u32 s{sT1}, s{sWave}, 6')
I(f's_sub_u32 s{sT2}, s{sWave}, 2')
I(f's_cmp_ge_u32 s{sWave}, 6')
I(f's_cselect_b32 s{sTb}, s{sT1}, s{sT2}')
I(f's_and_b32 s{sT1}, s{sTb}, 2')
I(f's_lshl_b32 s{sT1}, s{sT1}, 5')
I(f's_add_u32 s{sT1}, s{sT1}, s{sT0}')
I(f's_add_u32 s{sT1}, s{sT1}, s{sP}')
I(f'v_lshl_add_u32 v{vT[2]}, v{q}, 1, s{sT1}')
I(f'v_mul_u32_u24 v{vT[2]}, 896, v{vT[2]}')
I(f'v_and_b32 v{vT[4]}, 6, v{q}')
I(f'v_xor_b32 v{vT[4]}, v{vT[3]}, v{vT[4]}')
I(f'v_lshl_add_u32 v{vHd}, v{vT[4]}, 4, v{vT[2]}')
I(f'v_add_u32 v{vHd}, 0xffffc800, v{vHd}')
I(f's_mul_i32 s{sT2}, s{sJ}, 112')
I(f's_mul_i32 s{sT1}, s{sType}, 896')
I(f's_add_u32 s{sT1}, s{sT1}, s{sT2}')
I(f's_add_u32 s{sT3}, s{sT1}, 896')
I(f'v_mov_b32 v{vT[7]}, 2688')
def woff(dst, s_u0, s_base):
    a, b, c, d = vT[2], vT[3], vT[4], vT[5]
    I(f'v_add_u32 v{a}, s{s_u0}, v{vLane}')
    I(f'v_mul_u32_u24 v{b}, 9363, v{a}')
    I(f'v_lshrrev_b32 v{b}, 16, v{b}')
    I(f'v_mad_i32_i24 v{a}, v{b}, -7, v{a}')
    I(f'v_bfe_u32 v{c}, v{b}, 1, 2')
    I(f'v_and_b32 v{d}, 1, v{b}')
    I(f'v_lshl_or_b32 v{c}, v{d}, 2, v{c}')
    I(f'v_and_or_b32 v{c}, v{b}, 56, v{c}')
    I(f'v_mad_u32_u24 v{c}, v{c}, v{vT[7]}, s{s_base}')
    I(f'v_lshl_add_u32 v{dst}, v{a}, 4, v{c}')
I(f's_lshl_b32 s{sT0}, s{sWave}, 6')
I(f's_cmp_eq_u32 s{sWave}, 7')
I(f's_cselect_b32 s{sM0a}, 0, s{sT0}')
I(f's_cselect_b32 s{sM0b}, s{sT3}, s{sT1}')
woff(vWs, sM0a, sM0b)
I(f's_add_u32 s{sT0}, s{sT0}, 64')
I(f's_cmp_ge_u32 s{sWave}, 6')
I(f's_cselect_b32 s{sT3}, 0x80000000, s{sT3}')
I(f's_cselect_b32 s{sSel1}, 0, 1')
I(f's_cselect_b32 s{sT0}, 0, s{sT0}')
woff(vWs + 1, sT0, sT3)
I(f's_lshl_b32 s{sM0a}, s{sWave}, 10')
I(f's_add_u32 s{sM0b}, s{sM0a}, 8192')
I(f's_lshl_b32 s{sTb}, s{sTb}, 10')
I(f's_cmp_eq_u32 s{sSel1}, 0')
I(f's_cselect_b32 s{sM0b}, s{sTb}, s{sM0b}')
I(f's_or_b32 s{sT0}, s{sSel1}, s{sType}')
I(f's_cmp_eq_u32 s{sT0}, 0')
I(f's_cselect_b64 s[{sSave}:{sSave+1}], -1, 0')
I(f'v_cndmask_b32 v{vWs+1}, v{vWs+1}, v{vHd}, s[{sSave}:{sSave+1}]')
sHm = 97
I(f'v_lshlrev_b32 v{vL16}, 4, v{vLane}')
I('s_waitcnt lgkmcnt(0)')
def mksrd(n, lo, size):
    I(f's_mov_b32 s{n}, s{lo}'); I(f's_mov_b32 s{n+1}, s{lo+1}'); I(f's_mov_b32 s{n+2}, {size}'); I(f's_mov_b32 s{n+3}, 0x20000')
mksrd(SX, 36, 1835008)
I(f's_cmp_eq_u32 s{sType}, 0')
I(f's_cselect_b32 s{SW}, s38, s44')
I(f's_cselect_b32 s{SW+1}, s39, s45')
I(f's_mov_b32 s{SW+2}, 1204224'); I(f's_mov_b32 s{SW+3}, 0x20000')
I(f's_cmp_eq_u64 s[{sSave}:{sSave+1}], 0')
I(f's_cselect_b32 s{SX3}, s{SW}, s{SX}')
I(f's_cselect_b32 s{SX3+1}, s{SW+1}, s{SX+1}')
I(f's_cselect_b32 s{SX3+2}, 1204224, s{SX+2}')
I(f's_mov_b32 s{SX3+3}, 0x20000')
sHm = sSo2
I(f's_mov_b32 s{sHm}, s{sTb}')

def late_prologue():
    for p in range(1, 7):
        I(f's_add_u32 s{sXo+p}, s{sXo+p-1}, 128')
        I(f's_cmp_eq_u32 s{sXo+p}, 896')
        I(f's_cselect_b32 s{sXo+p}, 0, s{sXo+p}')
        I(f's_mul_i32 s{sWo+p}, s{sXo+p}, 1344')
    mksrd(SWS, 94, WS_SIZE); mksrd(SDBG, 92, 256)
    mksrd(SWOA, 40, 401408); mksrd(SWOB, 46, 401408); mksrd(SOUT, 50, 1835008); mksrd(SGW, 48, 896)
    if DEBUG:
        for k in range(16): I(f's_mov_b32 s{sStamp+k}, s98')

def zero_duty():
    I('s_cmp_ge_u32 s2, 8')
    I('s_cbranch_scc1 L_nozero' + cur)
    for k in range(4): I(f'v_mov_b32 v{vA1+k}, 0')
    I(f'v_lshlrev_b32 v{vT[2]}, 4, v0')
    I(f's_lshl_b32 s{sT0}, s2, 13')
    I(f's_add_u32 s{sT0}, s{sT0}, {WS_KV}')
    e.Ix(f'buffer_store_dwordx4 {v4(vA1)}, v{vT[2]}, {srd(SWS)}, s{sT0} offen sc1')
    I(f's_cmp_lg_u32 s{sWave}, 0')
    I('s_cbranch_scc1 L_nozero' + cur)
    I(f's_lshl_b32 s{sT0}, s2, 10')
    I(f's_add_u32 s{sT0}, s{sT0}, {WS_CNT}')
    e.Ix(f'buffer_store_dwordx4 {v4(vA1)}, v{vT[2]}, {srd(SWS)}, s{sT0} offen sc1')
    e.label('L_nozero' + cur)

I(f's_cmp_lg_u32 s{sType}, 0')
I('s_cbranch_scc1 L_typeB')

def xreg(T, t): return (T * 14 + t) * 4

class Stage: pass
def build_stages():
    st = []
    for si in range(14):
        s = Stage(); s.pos = si % 7; s.p1 = si < 7
        s.u0 = 2 * si if si < 7 else 14 + (si - 7)
        s.nf = 4 if si < 7 else 2
        st.append(s)
    return st

nlab = [0]
def stage_ops(si, s, halo):
    ops = []
    pos = s.pos
    if s.p1:
        if halo:
            def fh():
                nlab[0] += 1
                I(f's_sub_u32 s{sTa}, s{sWave}, 4')
                I(f's_cmp_ge_u32 s{sTa}, 2')
                I(f's_cbranch_scc1 L_nh{nlab[0]}')
                I(f's_add_u32 m0, s{sHm}, {HS + pos * 4096}')
                e.Ix(f'buffer_load_dwordx4 v{vHd}, {srd(SX)}, s{sXo+pos} offen lds')
                e.label(f'L_nh{nlab[0]}')
                return None
            ops.append(fh)
        def f0():
            I(f's_add_u32 m0, s{sM0a}, {unit_base(s.u0)}')
            return I(f'buffer_load_dwordx4 v{vWs}, {srd(SW)}, s{sWo+pos} offen lds')
        def f1():
            alt = HS + pos * 4096 if halo else DUMMY
            I(f's_mul_i32 m0, s{sSel1}, {(unit_base(s.u0) - alt) & 0xffffffff}')
            if halo:
                I(f's_cmp_lg_u32 s{sSel1}, 0')
                I(f's_cselect_b32 s{sTa}, s{sWo+pos}, s{sXo+pos}')
            I(f's_add_u32 m0, m0, s{sM0b}')
            I(f's_add_u32 m0, m0, {alt}')
            return I(f'buffer_load_dwordx4 v{vWs+1}, {srd(SX3)}, s{sTa if halo else sWo+pos} offen lds')
        ops += [f0, f1]
        for hq in range(2):
            def f(hq=hq):
                I(f's_add_u32 m0, s{sXm}, {(si % 3) * 16384 + hq * 1024}')
                return I(f'buffer_load_dwordx4 v{vXd+hq}, {srd(SX)}, s{sXo+pos} offen lds')
            ops.append(f)
    else:
        def f2():
            I(f's_mul_i32 m0, s{sSel1}, {(unit_base(s.u0) - DUMMY) & 0xffffffff}')
            I(f's_add_u32 m0, m0, s{sM0b}')
            return I(f'buffer_load_dwordx4 v{vW2}, {srd(SW)}, s{sWo+pos} offen lds')
        ops.append(f2)
    return ops

class LB: base = 0
def fslot(ks, f): return ks * 4 + f
def issue_frag(s, ks, f):
    u = s.u0 + (f >> 1)
    off = unit_base(u) + ks * 32 * 112 + (f & 1) * 32
    if off >= WT and LB.base == 0:
        I(f'v_add_u32 v{vLa}, {WT}, v{vLa}')
        LB.base = WT
    o = off - LB.base
    assert 0 <= o and o + 112 < 65536
    r = vF + 4 * fslot(ks, f)
    I(f'ds_read_b64_tr_b16 {v2(r)}, v{vLa} offset:{o}')
    return I(f'ds_read_b64_tr_b16 {v2(r+2)}, v{vLa} offset:{o+112}')

def issue_x(t, halo):
    si, ks = t >> 1, t & 1
    tag = None
    if si < 7:
        for T in range(2):
            tag = I(f'ds_read_b128 {a4(xreg(T, t))}, v{vXr+ks} offset:{(si % 3) * 16384 + T * 4096}')
    if halo:
        tag = I(f'ds_read_b128 {a4(aPrev + 4 * ks)}, v{vHr+ks} offset:{(si % 7) * 4096}')
    return tag

def run_gemm(issue_at, halo, setup, mfmas, fillers, hooks, extra=None, extra_vm=None, fill_rate=2, skip=()):
    LB.base = 0
    stages = build_stages()
    NS = 14; NT = 28
    tags = {}
    def emit_ops(sj, ops):
        for o in ops:
            tg = o()
            if tg is not None: tags[sj] = tg
    emit_ops(0, stage_ops(0, stages[0], halo))
    late_prologue()
    stamp('ld0')
    for si in range(1, NS):
        if isinstance(issue_at[si], int) and issue_at[si] < 0: emit_ops(si, stage_ops(si, stages[si], halo))
    setup()
    stamp('setup')
    e.need_vm(tags[0])
    I('s_barrier')
    stamp('b0')
    ftag, xtag = {}, {}
    for t in (0, 1):
        xtag[t] = issue_x(t, halo)
        for f in range(4): ftag[(t, f)] = issue_frag(stages[0], t, f)
    fq = []
    for t in range(NT):
        si, ks = t >> 1, t & 1
        s = stages[si]
        ns = stages[si + 1] if si + 1 < NS else None
        if ('pre', t) in hooks: hooks[('pre', t)]()
        if ks == 0 and ns is not None and (si + 1) not in skip:
            b = si + 1
            if ('prebar', b) in hooks: hooks[('prebar', b)]()
            bb = b
            while bb + 1 in skip: bb += 1
            e.need_vm(max(tags[x] for x in range(b, bb + 1)))
            I('s_barrier')
            stamp(f'b{b}')
            if ('bar', b) in hooks: hooks[('bar', b)]()
        vops = []
        for sj in range(NS):
            if issue_at[sj] == t:
                vops += [(sj, o) for o in stage_ops(sj, stages[sj], halo)]
            elif isinstance(issue_at[sj], tuple) and t in issue_at[sj]:
                ops = stage_ops(sj, stages[sj], halo)
                n = len(issue_at[sj]); k = issue_at[sj].index(t)
                lo, hi = len(ops) * k // n, len(ops) * (k + 1) // n
                vops += [(sj, o) for o in ops[lo:hi]]
        if extra_vm and t in extra_vm: vops += [(None, o) for o in extra_vm[t]]
        fq += fillers.get(t, [])
        if extra: extra(t, 'issue')
        e.need_lg(xtag.get(t))
        for f in range(s.nf):
            e.need_lg(ftag[(t, f)])
            for m in mfmas(t, f, v4(vF + 4 * fslot(ks, f))):
                I(m)
                for _ in range(fill_rate):
                    if fq: fq.pop(0)()
            if ns is not None and f < ns.nf: ftag[(t + 2, f)] = issue_frag(ns, ks, f)
            nv = (len(vops) + s.nf - f - 1) // (s.nf - f)
            for _ in range(nv):
                sj, o = vops.pop(0); tg = o()
                if sj is not None and tg is not None: tags[sj] = tg
        if ns is not None: xtag[t + 2] = issue_x(t + 2, halo)
        if extra: extra(t, 'use')
        if ('post', t) in hooks:
            while fq: fq.pop(0)()
            hooks[('post', t)]()
    while fq: fq.pop(0)()

def mf(d, a, b, first):
    return f'v_mfma_f32_16x16x32_bf16 {v4(d)}, {a}, {b}, {"0" if first else v4(d)}'

def flag_store_hook():
    I('s_cmp_ge_u32 s2, 8')
    I('s_cbranch_scc1 L_nf' + cur)
    I(f's_cmp_lg_u32 s{sWave}, 0')
    I('s_cbranch_scc1 L_nf' + cur)
    I(f's_lshl_b32 s{sT0}, s2, 2')
    I(f'v_mov_b32 v{vFlag}, 1')
    I(f's_mov_b64 exec, 1')
    e.Ix(f'buffer_store_dword v{vFlag}, off, {srd(SDBG)}, s{sT0} sc1')
    I(f's_mov_b64 exec, -1')
    e.label('L_nf' + cur)

def flag_load_hook():
    I(f'v_lshlrev_b32 v{vMisc}, 2, v{vLane}')
    I(f's_cmp_lg_u32 s{sWave}, 0')
    I('s_cbranch_scc1 L_nl' + cur)
    I(f's_mov_b64 exec, 0xff')
    e.Ix(f'buffer_load_dword v{vFlag}, v{vMisc}, {srd(SDBG)}, 0 offen sc1')
    I(f's_mov_b64 exec, -1')
    e.label('L_nl' + cur)

def flag_check_hook():
    I(f's_cmp_lg_u32 s{sWave}, 0')
    I('s_cbranch_scc1 L_nc' + cur)
    I(f's_mov_b64 exec, 0xff')
    I(f's_mov_b32 s{sSpin}, 0')
    e.label('L_fc' + cur)
    I(f'v_cmp_eq_u32 vcc, 0, v{vFlag}')
    e.nop(4)
    I('s_cbranch_vccz L_fok' + cur)
    I(f's_add_u32 s{sSpin}, s{sSpin}, 1')
    I(f's_cmp_ge_u32 s{sSpin}, {SPIN_MAX}')
    I('s_cbranch_scc1 L_fok' + cur)
    I('s_sleep 2')
    e.Ix(f'buffer_load_dword v{vFlag}, v{vMisc}, {srd(SDBG)}, 0 offen sc1')
    I('s_waitcnt vmcnt(0)')
    I('s_branch L_fc' + cur)
    e.label('L_fok' + cur)
    I(f's_mov_b64 exec, -1')
    e.label('L_nc' + cur)

def lane_addrs():
    a, b, c = vT[2], vT[3], vT[4]
    q, g = vT[0], vT[1]
    I(f'v_and_b32 v{q}, 15, v{vLane}')
    I(f'v_lshrrev_b32 v{g}, 4, v{vLane}')
    I(f'v_bfe_u32 v{a}, v{vLane}, 2, 2')
    I(f'v_lshl_add_u32 v{a}, v{g}, 2, v{a}')
    I(f'v_mul_u32_u24 v{a}, 224, v{a}')
    I(f'v_and_b32 v{b}, 3, v{vLane}')
    I(f'v_lshl_add_u32 v{vLa}, v{b}, 3, v{a}')
    I(f's_mul_i32 s{sT0}, s{sH}, 56')
    I(f'v_add_u32 v{vLa}, s{sT0}, v{vLa}')
    I(f'v_lshrrev_b32 v{a}, 1, v{q}')
    I(f'v_xor_b32 v{a}, v{a}, v{g}')
    I(f'v_lshlrev_b32 v{a}, 4, v{a}')
    I(f'v_lshl_add_u32 v{a}, v{q}, 7, v{a}')
    I(f's_and_b32 s{sT0}, s{sWave}, 5')
    I(f's_lshl_b32 s{sT0}, s{sT0}, 11')
    I(f's_add_u32 s{sT0}, s{sT0}, {XR}')
    I(f'v_add_u32 v{vXr}, s{sT0}, v{a}')
    I(f'v_xor_b32 v{vXr+1}, 64, v{vXr}')

def setup2(out):
    a, b, c = vT[2], vT[3], vT[4]
    g = vT[1]
    A = lambda s: out.append(lambda: I(s))
    A(f'v_cmp_gt_u32 vcc, 3, v{g}')
    A(f'v_cndmask_b32 v{vPad}, 0, -1, vcc')
    def w2():
        I(f's_mul_i32 s{sT2}, s{sJ}, 112')
        if cur == 'A': I(f's_add_u32 s{sT2}, s{sT2}, 1792')
        I(f's_lshl_b32 s{sT0}, s{sWave}, 6')
        I(f's_cmp_eq_u32 s{sWave}, 7')
        I(f's_cselect_b32 s{sT2}, 0x80000000, s{sT2}')
        I(f's_cselect_b32 s{sT0}, 0, s{sT0}')
        I(f'v_mov_b32 v{vT[7]}, 2688')
        woff(vW2, sT0, sT2)
    out.append(w2)
    A(f'v_lshrrev_b32 v{a}, 3, v{vLane}')
    A(f'v_mul_u32_u24 v{a}, 896, v{a}')
    A(f'v_lshlrev_b32 v{b}, 1, v{g}')
    A(f'v_and_b32 v{c}, 7, v{vLane}')
    A(f'v_xor_b32 v{b}, v{b}, v{c}')
    A(f'v_lshl_add_u32 v{vWo}, v{b}, 4, v{a}')
    def w3():
        I(f's_lshr_b32 s{sT1}, s{sR}, 2')
        I(f's_lshl_b32 s{sT1}, s{sT1}, 7')
        I(f's_cmp_ge_u32 s{sR}, 28')
        I(f's_cselect_b32 s{sT1}, 0x80000000, s{sT1}')
        I(f'v_add_u32 v{vWo}, s{sT1}, v{vWo}')
    out.append(w3)

def seg2_switch():
    I(f's_cmp_eq_u32 s{sWave}, 7')
    I(f's_cselect_b32 s{sSel1}, 0, 1')
    I(f's_cselect_b32 s{sM0b}, 0, s{sM0a}')
    I(f's_add_u32 s{sM0b}, s{sM0b}, {DUMMY}')
    I(f's_and_b32 s{sT0}, s{sR}, 3')
    I(f's_lshl_b32 s{sT0}, s{sT0}, 4')
    I(f's_add_u32 s{sT0}, s{sT0}, s{sWave}')
    I(f's_lshl_b32 s{sLo2}, s{sT0}, 10')
    I(f's_mul_i32 s{sSo2}, s{sLo2}, 7')

def wo_ops(halves=(0, 1)):
    ops = []
    for half in halves:
        for qq in range(7):
            def f(half=half):
                I(f's_add_u32 m0, s{sLo2}, {half*57344}')
                tg = I(f'buffer_load_dwordx4 v{vWo}, {srd(SWOA if half == 0 else SWOB)}, s{sSo2} offen lds')
                I(f's_add_u32 s{sLo2}, s{sLo2}, 8192')
                I(f's_cmp_ge_u32 s{sLo2}, 57344')
                I(f's_cselect_b32 s{sTb}, 57344, 0')
                I(f's_sub_u32 s{sLo2}, s{sLo2}, s{sTb}')
                I(f's_mul_i32 s{sSo2}, s{sLo2}, 7')
                return tg
            ops.append(f)
    return ops

def spread(ops, ts):
    n = len(ts)
    return {t: ops[len(ops) * k // n: len(ops) * (k + 1) // n] for k, t in enumerate(ts)}

def xlane(op, m, m2, out):
    out.append(lambda: I(f'v_mov_b32 v{m2}, v{m}'))
    out.append(lambda: I(f'v_permlane16_swap_b32 v{m}, v{m2}'))
    out.append(lambda: I(f'{op} v{m}, v{m}, v{m2}'))
    out.append(lambda: I(f'v_mov_b32 v{m2}, v{m}'))
    out.append(lambda: I(f'v_permlane32_swap_b32 v{m}, v{m2}'))
    out.append(lambda: I(f'{op} v{m}, v{m}, v{m2}'))

def interleave(lists):
    out = []
    for k in range(max(len(l) for l in lists)):
        for l in lists:
            if k < len(l): out.append(l[k])
    return out

sO = [94, 95]
def o_offsets():
    I(f's_lshl_b32 s{sT0}, s{sI}, 3')
    I(f's_and_b32 s{sT1}, s{sWave}, 5')
    I(f's_add_u32 s{sT0}, s{sT0}, s{sT1}')
    I(f's_lshl_b32 s{sT0}, s{sT0}, 5')
    I(f's_lshl_b32 s{sT1}, s{sType}, 4')
    I(f's_add_u32 s{sT0}, s{sT0}, s{sT1}')
    I(f's_lshl_b32 s{sT1}, s{sJ}, 1')
    I(f's_add_u32 s{sT0}, s{sT0}, s{sT1}')
    I(f's_add_u32 s{sT0}, s{sT0}, s{sH}')
    I(f's_lshl_b32 s{sO[0]}, s{sT0}, 10')
    I(f's_add_u32 s{sO[1]}, s{sO[0]}, 65536')

def pack_T(out, dst, acc0, acc1):
    out.append(lambda: I(f'v_cvt_pk_bf16_f32 v{dst}, v{acc0}, v{acc0+1}'))
    out.append(lambda: I(f'v_cvt_pk_bf16_f32 v{dst+1}, v{acc0+2}, v{acc0+3}'))
    out.append(lambda: I(f'v_cvt_pk_bf16_f32 v{dst+2}, v{acc1}, v{acc1+1}'))
    out.append(lambda: I(f'v_cvt_pk_bf16_f32 v{dst+3}, v{acc1+2}, v{acc1+3}'))
    out.append(lambda: I(f'v_and_b32 v{dst+2}, v{vPad}, v{dst+2}'))
    out.append(lambda: I(f'v_and_b32 v{dst+3}, v{vPad}, v{dst+3}'))

def Oacc(T, dt): return vO + (T * 2 + dt) * 4
def o_finish(T, inv):
    d = vOp + 4 * T
    for dt in range(2):
        a = Oacc(T, dt)
        for r in range(4): I(f'v_mul_f32 v{a+r}, v{inv}, v{a+r}')
        I(f'v_cvt_pk_bf16_f32 v{d+2*dt}, v{a}, v{a+1}')
        I(f'v_cvt_pk_bf16_f32 v{d+2*dt+1}, v{a+2}, v{a+3}')
    I(f'v_and_b32 v{d+2}, v{vPad}, v{d+2}')
    I(f'v_and_b32 v{d+3}, v{vPad}, v{d+3}')
    I(f'buffer_store_dwordx4 {v4(d)}, v{vL16}, {srd(SWS)}, s{sO[T]} offen sc1')

def cnt_add(sreg_off, lab):
    I(f's_cmp_lg_u32 s{sWave}, 0')
    I(f's_cbranch_scc1 {lab}')
    I(f'v_mov_b32 v{vFlag}, 1')
    I('s_mov_b64 exec, 1')
    e.Ix(f'buffer_atomic_add v{vFlag}, off, {srd(SWS)}, s{sreg_off}')
    I('s_mov_b64 exec, -1')
    e.label(lab)

def poll(sreg_off, n, lab):
    I('s_mov_b64 exec, 1')
    I(f's_mov_b32 s{sSpin}, 0')
    e.label(lab)
    e.Ix(f'buffer_load_dword v{vFlag}, off, {srd(SWS)}, s{sreg_off} sc1')
    I(f's_add_u32 s{sSpin}, s{sSpin}, 1')
    I('s_waitcnt vmcnt(0)')
    I(f'v_readfirstlane_b32 s{sT3}, v{vFlag}')
    I(f's_cmp_ge_u32 s{sT3}, {n}')
    I(f's_cbranch_scc1 {lab}_k')
    I(f's_cmp_ge_u32 s{sSpin}, {SPIN_MAX}')
    I(f's_cbranch_scc1 {lab}_k')
    I('s_sleep 1')
    I(f's_branch {lab}')
    e.label(lab + '_k')
    I('s_mov_b64 exec, -1')

def cnt_wait(sreg_off, n, lab):
    I(f's_cmp_lg_u32 s{sWave}, 0')
    I(f's_cbranch_scc1 {lab}_d')
    poll(sreg_off, n, lab)
    e.label(lab + '_d')
    I('s_barrier')

STATE = ('t', 'w', 'cread', 'stread', 'vm_issued', 'vm_done', 'lg_issued', 'lg_done')
snap = copy.deepcopy({k: getattr(e, k) for k in STATE})
ISS = {0: -1, 1: -1, 2: 0}
for si in range(3, 7): ISS[si] = (2 * si - 5, 2 * si - 4)

cur = 'A'
def setupA():
    zero_duty()
    lane_addrs()
    q, g, c, d = vT[0], vT[1], vT[2], vT[3]
    I(f'v_and_b32 v{c}, 6, v{q}')
    I(f'v_xor_b32 v{c}, v{c}, v{g}')
    I(f'v_lshlrev_b32 v{c}, 4, v{c}')
    I(f'v_and_b32 v{d}, 7, v{q}')
    I(f'v_lshl_add_u32 v{c}, v{d}, 7, v{c}')
    I(f's_lshl_b32 s{sT0}, s{sU}, 1')
    I(f's_add_u32 s{sT0}, s{sT0}, s{sP}')
    I(f's_lshl_b32 s{sT0}, s{sT0}, 10')
    I(f's_add_u32 s{sT0}, s{sT0}, {HS}')
    I(f'v_add_u32 v{vHr}, s{sT0}, v{c}')
    I(f'v_xor_b32 v{vHr+1}, 64, v{vHr}')

def setupA2(out):
    q, g, c, d = vT[0], vT[1], vT[2], vT[3]
    A = lambda s: out.append(lambda: I(s))
    A(f'v_mov_b32 v{vT[5]}, 0xff800000')
    A(f's_or_b32 s{sT2}, s{sI}, s{sU}')
    for r in range(4):
        A(f'v_lshl_add_u32 v{c}, v{g}, 2, {r}')
        A(f'v_cmp_le_u32 s[{sCur+2*r}:{sCur+2*r+1}], v{c}, v{q}')
        A(f'v_sub_u32 v{d}, v{q}, v{c}')
        A(f'v_and_b32 v{d}, 15, v{d}')
        A(f'v_cmp_gt_u32 vcc, 8, v{d}')
        A(f'v_cndmask_b32 v{vBias+r}, v{vT[5]}, 0, vcc')
        def blk(r=r):
            I(f's_and_b64 s[{sSave}:{sSave+1}], vcc, s[{sCur+2*r}:{sCur+2*r+1}]')
            I(f's_cmp_eq_u32 s{sT2}, 0')
            I(f's_cselect_b64 s[{sSave}:{sSave+1}], s[{sSave}:{sSave+1}], vcc')
        out.append(blk)
        A(f'v_cndmask_b32 v{vBias0+r}, v{vT[5]}, 0, s[{sSave}:{sSave+1}]')
    for (mc, mp, r) in ((vMC01, vMP01, 0), (vMC23, vMP23, 2)):
        A(f'v_mov_b32 v{c}, 0xffff')
        A(f'v_cndmask_b32 v{mc}, 0, v{c}, s[{sCur+2*r}:{sCur+2*r+1}]')
        A(f'v_mov_b32 v{c}, 0xffff0000')
        A(f'v_cndmask_b32 v{d}, 0, v{c}, s[{sCur+2*r+2}:{sCur+2*r+3}]')
        A(f'v_or_b32 v{mc}, v{mc}, v{d}')
        A(f'v_not_b32 v{mp}, v{mc}')
    A(f's_mov_b32 s{sScale}, 0x{f32(28 ** -0.5 * math.log2(math.e)):08x}')

def accQ(T, ct): return vA1 + (T * 2 + ct) * 4
def accK(T, ct): return vA1 + 16 + (T * 2 + ct) * 4
def accV(T, ct): return vA2 + (T * 2 + ct) * 4
def mfA(t, f, fr):
    if t < 14:
        if f < 2: return [mf(accQ(T, f), fr, a4(xreg(T, t)), t == 0) for T in range(2)]
        return [mf(accK(T, f - 2), fr, a4(xreg(T, t)), t == 0) for T in range(2)] + [mf(accK(2, f - 2), fr, a4(aPrev + 4 * (t & 1)), t == 0)]
    tt = t - 14
    return [mf(accV(T, f), a4(xreg(T, tt)), fr, tt == 0) for T in range(2)] + [mf(accV(2, f), a4(aPrev + 4 * (t & 1)), fr, tt == 0)]
def Qp(T): return vF + 8 + 4 * T
def Kp(T): return (vF + 24 + 4 * T) if T < 2 else vWs
vS = vA1; vPf = vA1 + 16; vInv = vA1 + 24; vTm = vA1 + 28
fA2, fA14 = [], []
setupA2(fA2); setup2(fA2)
for T in range(3): pack_T(fA14, Kp(T), accK(T, 0), accK(T, 1))
for T in range(2): pack_T(fA14, Qp(T), accQ(T, 0), accQ(T, 1))
for T in range(2):
    sc, sp = vS + 8 * T, vS + 8 * T + 4
    fA14.append(lambda sc=sc, T=T: I(mf(sc, v4(Kp(T)), v4(Qp(T)), True)))
    fA14.append(lambda sp=sp, T=T: I(mf(sp, v4(Kp(0) if T == 1 else Kp(2)), v4(Qp(T)), True)))
def softmax_valu(out, T):
    sc, sp, tm = vS + 8 * T, vS + 8 * T + 4, vTm + 4 * T
    bias = vBias if T == 1 else vBias0
    A = lambda s: out.append(lambda: I(s))
    for r in range(4): A(f'v_cndmask_b32 v{sc+r}, v{sp+r}, v{sc+r}, s[{sCur+2*r}:{sCur+2*r+1}]')
    for r in range(4): A(f'v_fma_f32 v{sc+r}, v{sc+r}, s{sScale}, v{bias+r}')
    m, m2 = tm, tm + 1
    A(f'v_max3_f32 v{m}, v{sc}, v{sc+1}, v{sc+2}')
    A(f'v_max_f32 v{m}, v{m}, v{sc+3}')
    xlane('v_max_f32', m, m2, out)
    for r in range(4): A(f'v_sub_f32 v{sc+r}, v{sc+r}, v{m}')
    for r in range(4): A(f'v_exp_f32 v{sc+r}, v{sc+r}')
    A(f'v_add_f32 v{m}, v{sc}, v{sc+1}')
    A(f'v_add_f32 v{m2}, v{sc+2}, v{sc+3}')
    A(f'v_cvt_pk_bf16_f32 v{tm+2}, v{sc}, v{sc+1}')
    A(f'v_add_f32 v{m}, v{m}, v{m2}')
    A(f'v_cvt_pk_bf16_f32 v{tm+3}, v{sc+2}, v{sc+3}')
    xlane('v_add_f32', m, m2, out)
    pf = vPf + 4 * T
    A(f'v_and_b32 v{pf}, v{vMP01}, v{tm+2}')
    A(f'v_and_b32 v{pf+1}, v{vMP23}, v{tm+3}')
    A(f'v_and_b32 v{pf+2}, v{vMC01}, v{tm+2}')
    A(f'v_and_b32 v{pf+3}, v{vMC23}, v{tm+3}')
    A(f'v_rcp_f32 v{vInv+T}, v{m}')
vl = []
for T in range(2):
    l = []; softmax_valu(l, T); vl.append(l)
fA14 += interleave(vl)

issA = dict(ISS)
issA.update({7: 9, 8: 9, 9: 10, 10: 11, 11: 12, 12: 13, 13: 14})
hooksA = {('bar', 2): flag_store_hook, ('pre', 6): flag_load_hook, ('prebar', 8): flag_check_hook,
          ('post', 13): lambda: stamp('p1end'), ('pre', 9): seg2_switch}
run_gemm(issA, True, setupA, mfA, {1: fA2, 14: fA14}, hooksA, fill_rate=int(OPT.get('fillA', 2)), skip=eval(OPT.get('skipA', '()')))
stamp('p2end')
vVp = vF
vO = vA1; vOp = vA1 + 28
def Vp(dt): return vVp + 6 * dt
for dt in range(2):
    for T in (2, 0, 1):
        a = accV(T, dt); d = Vp(dt) + (0 if T == 2 else 2 + 2 * T)
        I(f'v_cvt_pk_bf16_f32 v{d}, v{a}, v{a+1}')
        I(f'v_cvt_pk_bf16_f32 v{d+1}, v{a+2}, v{a+3}')
for T in range(2):
    for dt in range(2): I(mf(Oacc(T, dt), v4(Vp(dt) + 2 * T), v4(vPf + 4 * T), True))
o_offsets()
for T in range(2): o_finish(T, vInv + T)
I('s_branch L_publish')

for k, v in copy.deepcopy(snap).items(): setattr(e, k, v)
cur = 'B'
e.label('L_typeB')
vGa = 20; vKm = 21; vCl = 22; vCe = 24; vOne = 26; vG = [28, vF + 8]
sOne = 90; sKVc = 92
def setupB():
    zero_duty()
    I(f's_cmp_lg_u32 s{sWave}, 0')
    I('s_cbranch_scc1 L_nogw')
    I(f's_mov_b32 exec_hi, 0xffffff')
    I(f's_mov_b32 m0, {GW}')
    e.Ix(f'buffer_load_dwordx4 v{vL16}, {srd(SGW)}, 0 offen lds')
    I(f's_mov_b32 m0, {GW+896}')
    e.Ix(f'buffer_load_dwordx4 v{vL16}, {srd(SGW)}, 0 offen lds')
    I(f's_mov_b64 exec, -1')
    e.label('L_nogw')
    lane_addrs()
fB2 = []
def setupB2(out):
    q, g = vT[0], vT[1]
    A = lambda s: out.append(lambda: I(s))
    A(f'v_cmp_gt_u32 vcc, 12, v{q}')
    A(f'v_cndmask_b32 v{vKm}, 0, -1, vcc')
    A(f'v_cmp_eq_u32 s[{sOne}:{sOne+1}], 12, v{q}')
    A(f'v_mov_b32 v{vOne}, 0x3f803f80')
    A(f'v_lshlrev_b32 v{vGa}, 4, v{g}')
    A(f'v_add_u32 v{vGa}, s{sXo}, v{vGa}')
    A(f'v_add_u32 v{vGa}, {GW}, v{vGa}')
    A(f's_mov_b32 s{sScale}, 0x{f32(math.log2(math.e)):08x}')
    A(f's_mov_b32 s{sScale+1}, 0x{f32(1e-6):08x}')
    for k in range(2):
        A(f'v_mov_b32 v{vCl+k}, s{sScale}')
        A(f'v_mov_b32 v{vCe+k}, s{sScale+1}')
setupB2(fB2); setup2(fB2)

def baccK(T, ct): return vA1 + (T * 2 + ct) * 4
def baccV(T, ct): return vA1 + 16 + (T * 2 + ct) * 4
def baccQ(T, ct): return vA2 + (T * 2 + ct) * 4
def baccG(T): return vA2 + 16 + T * 4
def mfB(t, f, fr):
    if t < 14:
        acc = baccK if f < 2 else baccV
        return [mf(acc(T, f & 1), a4(xreg(T, t)), fr, t == 0) for T in range(2)]
    return [mf(baccQ(T, f), fr, a4(xreg(T, t - 14)), t == 14) for T in range(2)]
gt = {}
def gate_reads(t, what):
    if what == 'issue':
        if 13 <= t < 27 and not (t == 13):
            gt[t + 1] = I(f'ds_read_b128 {v4(vG[(t + 1) & 1])}, v{vGa} offset:{(t + 1 - 14) * 64}')
        if t == 13:
            gt[14] = I(f'ds_read_b128 {v4(vG[0])}, v{vGa} offset:0')
    elif t >= 14:
        e.need_lg(gt[t])
        for T in range(2): I(mf(baccG(T), v4(vG[t & 1]), a4(xreg(T, t - 14)), t == 14))

def phi(out, a, tmp):
    A = lambda s: out.append(lambda: I(s))
    for r in range(4): A(f'v_min_f32 v{tmp+r}, 0, v{a+r}')
    for r in (0, 2): A(f'v_pk_add_f32 {v2(a+r)}, {v2(a+r)}, {v2(tmp+r)} neg_lo:[0,1] neg_hi:[0,1]')
    for r in (0, 2): A(f'v_pk_mul_f32 {v2(tmp+r)}, {v2(tmp+r)}, {v2(vCl)}')
    for r in (0, 2): A(f'v_pk_add_f32 {v2(a+r)}, {v2(a+r)}, {v2(vCe)}')
    for r in range(4): A(f'v_exp_f32 v{tmp+r}, v{tmp+r}')
    for r in (0, 2): A(f'v_pk_add_f32 {v2(a+r)}, {v2(a+r)}, {v2(tmp+r)}')

vPK = vF + 24
vVV = vF + 12
def VV(c): return (vF + 12) if c == 0 else vWs
vKV = vA1
vRd = vA1 + 16
bt = {}
fB14, fB18 = [], []
def mkB():
    A = lambda s: fB14.append(lambda: I(s))
    for ct in range(2):
        for T in range(2): phi(fB14, baccK(T, ct), vT[0] if T == 0 else vT[4])
        for T in range(2):
            a = baccK(T, ct); d = vPK + 4 * ct + 2 * T
            A(f'v_cvt_pk_bf16_f32 v{d}, v{a}, v{a+1}')
            A(f'v_cvt_pk_bf16_f32 v{d+1}, v{a+2}, v{a+3}')
        for T in range(2):
            a = baccV(T, ct); d = VV(ct) + 2 * T
            A(f'v_cvt_pk_bf16_f32 v{d}, v{a}, v{a+1}')
            A(f'v_cvt_pk_bf16_f32 v{d+1}, v{a+2}, v{a+3}')
    for k in range(4):
        A(f'v_and_b32 v{vPK+4+k}, v{vKm}, v{vPK+4+k}')
        A(f'v_cndmask_b32 v{VV(1)+k}, v{VV(1)+k}, v{vOne}, s[{sOne}:{sOne+1}]')
    for c in range(2):
        for a in range(2): A(mf(vKV + 4 * (c * 2 + a), v4(vPK + 4 * a), v4(VV(c)), True))
    A(f's_lshl_b32 s{sT0}, s{sU}, 1')
    A(f's_add_u32 s{sT0}, s{sT0}, s{sP}')
    A(f's_lshl_b32 s{sT0}, s{sT0}, 13')
    A(f's_lshl_b32 s{sT1}, s{sH}, 12')
    A(f's_add_u32 s{sT0}, s{sT0}, s{sT1}')
    A(f'v_add_u32 v{vMisc+1}, s{sT0}, v{vL16}')
    A(f's_lshl_b32 s{sT0}, s{sWave}, 10')
    A(f'v_lshlrev_b32 v{vMisc+2}, 2, v{vLane}')
    A(f'v_add_u32 v{vMisc+2}, s{sT0}, v{vMisc+2}')
    A(f's_lshl_b32 s{sT1}, s{sJ}, 13')
    A(f's_add_u32 s{sT1}, s{sT1}, {WS_KV}')
    for k in range(4):
        def w(k=k): bt['tw'] = I(f'ds_write_b128 v{vMisc+1}, {v4(vKV+4*k)} offset:{k*1024}')
        fB14.append(w)
    rt = {}
    for m in range(4):
        for src in range(4):
            def rd(m=m, src=src): rt[(m, src)] = I(f'ds_read_b32 v{vRd + m * 4 + src}, v{vMisc+2} offset:{src*8192 + m*256}')
            fB18.append(rd)
    for m in range(4): fB18.append(lambda m=m: red(m, rt))
    fB18.append(lambda: stamp('kvend'))
def red(m, rt):
    b = vRd + m * 4
    e.need_lg(rt[(m, 3)])
    I(f'v_add_f32 v{b}, v{b}, v{b+1}')
    I(f'v_add_f32 v{b+2}, v{b+2}, v{b+3}')
    I(f'v_add_f32 v{b}, v{b}, v{b+2}')
    bt['at'] = I(f'buffer_atomic_add_f32 v{b}, v{vMisc+2}, {srd(SWS)}, s{sT1} offen offset:{m*256}')
mkB()
IMGBAR = int(OPT.get('imgbar', 10)); KVBAR = int(OPT.get('kvbar', 12))
def B_prebar_img():
    flag_check_hook()
    e.need_lg(bt['tw'])
def B_prebar_cnt(): e.need_vm(bt['at'])
def B_bar_cnt():
    I(f's_lshl_b32 s{sKVc}, s{sJ}, 10')
    I(f's_add_u32 s{sKVc}, s{sKVc}, {WS_CNT}')
    cnt_add(sKVc, 'L_kvadd')
issB = dict(ISS)
issB.update({7: 9, 8: 9, 9: 10, 10: 10, 11: 11, 12: 16, 13: 18})
hooksB = {('bar', 2): flag_store_hook, ('pre', 6): flag_load_hook, ('post', 13): lambda: stamp('p1end'), ('pre', 9): seg2_switch,
          ('prebar', IMGBAR): B_prebar_img, ('prebar', KVBAR): B_prebar_cnt, ('bar', KVBAR): B_bar_cnt}
xv = spread(wo_ops((1,)), list(range(14, 21)))
xv.update(spread(wo_ops((0,)), list(range(2 * IMGBAR + 2, 27))))
run_gemm(issB, False, setupB, mfB, {1: fB2, 14: fB14, 2 * IMGBAR - 2: fB18}, hooksB, gate_reads, extra_vm=xv, fill_rate=int(OPT.get('fillB', 8)), skip=eval(OPT.get('skipB', '()')))
stamp('p2end')
e.all_vm()
cnt_wait(sKVc, 16, 'L_kvwait')
stamp('kvwait')
I(f's_lshl_b32 s{sT1}, s{sJ}, 13')
I(f's_lshl_b32 s{sT2}, s{sH}, 12')
I(f's_add_u32 s{sT1}, s{sT1}, s{sT2}')
I(f's_add_u32 s{sT1}, s{sT1}, {WS_KV}')
vKVf = vA1
kt = {}
for k in range(4):
    kt[k] = I(f'buffer_load_dwordx4 {v4(vKVf+4*k)}, v{vL16}, {srd(SWS)}, s{sT1} offen offset:{k*1024} sc1')
vPQ = vF
l = []
for T in range(2):
    for ct in range(2): phi(l, baccQ(T, ct), vT[0] if ct == 0 else vT[4])
    pack_T(l, vPQ + 4 * T, baccQ(T, 0), baccQ(T, 1))
for x in l: x()
for T in range(2):
    a = baccG(T)
    I(f'v_mul_f32 v{a}, s{sScale}, v{a}')
    I(f'v_exp_f32 v{a}, -v{a}')
    I(f'v_add_f32 v{a}, 1.0, v{a}')
    I(f'v_rcp_f32 v{a}, v{a}')
I(f'v_lshlrev_b32 v{vMisc}, 2, v{vLane}')
I(f's_or_b32 s{sT0}, s{sJ}, s{sH}')
I(f's_cmp_lg_u32 s{sT0}, 0')
I('s_cbranch_scc1 L_nog')
I(f's_lshl_b32 s{sT0}, s{sI}, 3')
I(f's_add_u32 s{sT0}, s{sT0}, s{sWave}')
I(f's_lshl_b32 s{sT0}, s{sT0}, 6')
I(f's_add_u32 s{sT0}, s{sT0}, {WS_G}')
I('s_mov_b64 exec, 0xffff')
e.Ix(f'buffer_store_dword v{baccG(0)}, v{vMisc}, {srd(SWS)}, s{sT0} offen sc1')
e.Ix(f'buffer_store_dword v{baccG(1)}, v{vMisc}, {srd(SWS)}, s{sT0} offen offset:128 sc1')
I('s_mov_b64 exec, -1')
e.label('L_nog')
stamp('phiq')
o_offsets()
vAf = vF + 8; vZf = vF + 16; vDen = vA1 + 16
vO = vA2; vOp = vA1 + 28
for c in range(2):
    for a in range(2):
        k = c * 2 + a
        e.need_vm(kt[k])
        d = vAf + c * 4 + 2 * a
        I(f'v_cvt_pk_bf16_f32 v{d}, v{vKVf+4*k}, v{vKVf+4*k+1}')
        I(f'v_cvt_pk_bf16_f32 v{d+1}, v{vKVf+4*k+2}, v{vKVf+4*k+3}')
for k in range(4):
    I(f'v_mov_b32_dpp v{vZf+k}, v{vAf+4+k} row_newbcast:12 row_mask:0xf bank_mask:0xf')
for T in range(2):
    pq = v4(vPQ + 4 * T)
    I(mf(vDen + 4 * T, v4(vZf), pq, True))
    for c in range(2): I(mf(Oacc(T, c), v4(vAf + c * 4), pq, True))
for T in range(2):
    dn = vDen + 4 * T
    I(f'v_add_f32 v{dn}, s{sScale+1}, v{dn}')
    I(f'v_rcp_f32 v{dn}, v{dn}')
    o_finish(T, dn)

e.label('L_publish')
e.fence(2)
stamp('ost')
sR2, sN, sCn, sOb, sLh = 64, 65, 66, 68, 69
I(f's_lshr_b32 s{sT0}, s{sI}, 1')
I(f's_lshl_b32 s{sT0}, s{sT0}, 10')
I(f's_and_b32 s{sT1}, s{sI}, 1')
I(f's_lshl_b32 s{sT2}, s{sType}, 1')
I(f's_add_u32 s{sT1}, s{sT1}, s{sT2}')
I(f's_lshl_b32 s{sT1}, s{sT1}, 7')
I(f's_add_u32 s{sTa}, s{sT0}, s{sT1}')
I(f's_add_u32 s{sTa}, s{sTa}, {WS_CNT+128}')
I(f's_and_b32 s{sT0}, s{sR}, 3')
I(f's_and_b32 s{sR2}, s2, 7')
I(f's_lshl_b32 s{sR2}, s{sR2}, 2')
I(f's_add_u32 s{sR2}, s{sR2}, s{sT0}')
I(f's_lshr_b32 s{sN}, s{sR}, 2')
I(f's_lshl_b32 s{sN}, s{sN}, 1')
vP2 = 10; vQ2 = 18; vOut = 22; vGg = 23; vSw = 24; vSr = 25; vCm = 26
gq, rr = vT[1], vT[2]
I(f'v_lshrrev_b32 v{gq}, 4, v{vLane}')
I(f'v_bfe_u32 v{rr}, v{vLane}, 2, 2')
I(f'v_lshl_add_u32 v{vT[3]}, v{gq}, 2, v{rr}')
I(f'v_bfe_u32 v{vT[4]}, v{vT[3]}, 1, 2')
I(f'v_lshlrev_b32 v{vT[3]}, 7, v{vT[3]}')
I(f'v_and_b32 v{vT[5]}, 3, v{vLane}')
I(f'v_lshl_add_u32 v{vT[3]}, v{vT[5]}, 3, v{vT[3]}')
I(f's_mul_i32 s{sLh}, s{sU}, 57344')
I(f'v_add_u32 v{vT[3]}, s{sLh}, v{vT[3]}')
for t in range(4):
    I(f'v_xor_b32 v{vT[5]}, {t}, v{vT[4]}')
    I(f'v_lshl_add_u32 v{vP2+t}, v{vT[5]}, 5, v{vT[3]}')
I(f's_and_b32 s{sT3}, s{sWave}, 3')
I(f'v_and_b32 v{vT[5]}, 15, v{vLane}')
I(f's_lshl_b32 s{sT0}, s{sT3}, 11')
I(f's_add_u32 s{sT0}, s{sT0}, {STG}')
I(f'v_lshrrev_b32 v{vT[6]}, 1, v{gq}')
I(f'v_and_b32 v{vT[7]}, 7, v{vT[5]}')
I(f'v_xor_b32 v{vT[6]}, v{vT[6]}, v{vT[7]}')
I(f'v_lshlrev_b32 v{vT[6]}, 4, v{vT[6]}')
I(f'v_lshl_add_u32 v{vT[6]}, v{vT[5]}, 7, v{vT[6]}')
I(f'v_and_b32 v{vT[7]}, 1, v{gq}')
I(f'v_lshl_add_u32 v{vT[6]}, v{vT[7]}, 3, v{vT[6]}')
I(f'v_add_u32 v{vSw}, s{sT0}, v{vT[6]}')
I(f'v_lshrrev_b32 v{vT[6]}, 3, v{vLane}')
I(f'v_and_b32 v{vT[7]}, 7, v{vLane}')
I(f'v_xor_b32 v{vT[4]}, v{vT[7]}, v{vT[6]}')
I(f'v_lshlrev_b32 v{vT[4]}, 4, v{vT[4]}')
I(f'v_lshl_add_u32 v{vT[4]}, v{vT[6]}, 7, v{vT[4]}')
I(f'v_add_u32 v{vSr}, s{sT0}, v{vT[4]}')
I(f's_lshl_b32 s{sT0}, s{sT3}, 12')
I(f's_add_u32 s{sT0}, s{sT0}, {CMB}')
I(f'v_add_u32 v{vCm}, s{sT0}, v{vL16}')
I(f's_lshl_b32 s{sT0}, s{sR2}, 6')
I(f's_lshl_b32 s{sT1}, s{sH}, 5')
I(f's_add_u32 s{sT0}, s{sT0}, s{sT1}')
I(f's_add_u32 s{sT0}, s{sT0}, s{sP}')
I(f'v_lshl_add_u32 v{vT[6]}, v{vT[6]}, 1, s{sT0}')
I(f'v_mul_u32_u24 v{vT[6]}, 896, v{vT[6]}')
I(f'v_lshl_add_u32 v{vOut}, v{vT[7]}, 4, v{vT[6]}')
I(f's_lshl_b32 s{sT1}, s{sN}, 6')
I(f'v_add_u32 v{vOut}, s{sT1}, v{vOut}')
I(f'v_lshlrev_b32 v{vGg}, 2, v{vT[5]}')
I(f's_lshr_b32 s{sT0}, s{sR2}, 2')
I(f's_lshl_b32 s{sT0}, s{sT0}, 10')
I(f's_bfe_u32 s{sT1}, s{sR2}, 0x10001')
I(f's_lshl_b32 s{sT1}, s{sT1}, 7')
I(f's_add_u32 s{sCn}, s{sT0}, s{sT1}')
I(f's_lshl_b32 s{sT1}, s{sU}, 8')
I(f's_add_u32 s{sCn}, s{sCn}, s{sT1}')
I(f's_add_u32 s{sCn}, s{sCn}, {WS_CNT+128}')
I(f's_lshl_b32 s{sOb}, s{sR2}, 2')
I(f's_add_u32 s{sOb}, s{sOb}, s{sT3}')
I(f's_lshl_b32 s{sT2}, s{sOb}, 6')
I(f's_add_u32 s{sT2}, s{sT2}, {WS_G}')
I(f'v_add_u32 v{vGg}, s{sT2}, v{vGg}')
I(f's_lshl_b32 s{sOb}, s{sOb}, 15')
I(f's_lshl_b32 s{sT1}, s{sU}, 14')
I(f's_add_u32 s{sOb}, s{sOb}, s{sT1}')
vAcc = 112
NPRE = 7
def wfr(pos, t):
    k = pos % NPRE
    return ('a', 64 + (k * 4 + t) * 4) if k < 3 else ('v', 48 + ((k - 3) * 4 + t) * 4)
def p2_addr(pos):
    I(f's_add_u32 s{sT2}, s{sN}, {pos}')
    I(f's_and_b32 s{sT2}, s{sT2}, 15')
    I(f's_mul_i32 s{sT2}, s{sT2}, 3584')
    for t in range(4): I(f'v_add_u32 v{vQ2+t}, s{sT2}, v{vP2 + (t ^ (2 * (pos & 1)))}')
ft = {}
def p2_frags(pos):
    p2_addr(pos)
    for t in range(4):
        c, r = wfr(pos, t)
        I(f'ds_read_b64_tr_b16 {c}[{r}:{r+1}], v{vQ2+t}')
        ft[pos] = I(f'ds_read_b64_tr_b16 {c}[{r+2}:{r+3}], v{vQ2+t} offset:2048')
I(f's_cmp_eq_u32 s{sType}, 0')
I('s_cbranch_scc1 L_pubA')
for pos in range(NPRE): p2_frags(pos)
e.all_vm()
I('s_barrier')
cnt_add(sTa, 'L_oaddB')
stamp('pub')
I(f's_cmp_ge_u32 s{sR}, 28')
I('s_cbranch_scc1 L_fin')
I('s_branch L_p2')
e.label('L_pubA')
e.all_vm()
e.all_lg()
I('s_barrier')
cnt_add(sTa, 'L_oaddA')
stamp('pub')
I(f's_cmp_ge_u32 s{sR}, 28')
I('s_cbranch_scc1 L_fin')
for op in wo_ops(): op()
e.all_vm()
I('s_barrier')
stamp('wo')
for pos in range(NPRE): p2_frags(pos)
e.label('L_p2')
stamp('pre0')
poll(sCn, 8, 'L_wait')
e.vm_done = e.vm_issued
stamp('wait')
otag = {}
for pos in range(16):
    I(f's_add_u32 s{sT1}, s{sN}, {pos}')
    I(f's_and_b32 s{sT1}, s{sT1}, 15')
    I(f's_lshl_b32 s{sT1}, s{sT1}, 10')
    I(f's_add_u32 s{sT1}, s{sT1}, s{sOb}')
    otag[pos] = I(f'buffer_load_dwordx4 {a4(pos*4)}, v{vL16}, {srd(SWS)}, s{sT1} offen sc1')
I(f's_cmp_eq_u32 s{sU}, 0')
I('s_cbranch_scc1 L_nogl')
e.Ix(f'buffer_load_dword v{vGg}, v{vGg}, {srd(SWS)}, 0 offen sc1')
e.label('L_nogl')
for pos in range(16):
    e.need_vm(otag[pos] if pos < 15 else otag[pos])
    e.need_lg(ft[pos])
    if pos in (0, 8): stamp(f'hp{pos}')
    for t in range(4):
        c, r = wfr(pos, t)
        I(mf(vAcc + t * 4, f'{c}[{r}:{r+3}]', a4(pos * 4), pos == 0))
    if pos + NPRE < 16: p2_frags(pos + NPRE)
stamp('half')
I(f's_cmp_lg_u32 s{sU}, 0')
I('s_cbranch_scc1 L_cmbB')
for t in range(4): I(f'ds_write_b128 v{vCm}, {v4(vAcc+4*t)} offset:{t*1024}')
e.all_lg()
I('s_barrier')
I('s_branch L_fin')
e.label('L_cmbB')
e.fence(2)
I('s_barrier')
vAa = 72
for t in range(4): rt_ = I(f'ds_read_b128 {v4(vAa+4*t)}, v{vCm} offset:{t*1024}')
I('s_waitcnt vmcnt(0)')
for t in range(4):
    a, b = vAa + 4 * t, vAcc + 4 * t
    e.need_lg(rt_ - 3 + t)
    for r in range(4): I(f'v_sub_f32 v{a+r}, v{a+r}, v{b+r}')
    for r in range(4): I(f'v_fma_f32 v{a+r}, v{a+r}, v{vGg}, v{b+r}')
    I(f'v_cvt_pk_bf16_f32 v{b}, v{a}, v{a+1}')
    I(f'v_cvt_pk_bf16_f32 v{b+1}, v{a+2}, v{a+3}')
    I(f'v_xor_b32 v{vT[t]}, {32*t}, v{vSw}')
    tw = I(f'ds_write_b64 v{vT[t]}, {v2(b)}')
e.need_lg(tw)
I(f'ds_read_b128 {v4(vF)}, v{vSr}')
tr = I(f'ds_read_b128 {v4(vF+4)}, v{vSr} offset:1024')
I(f's_mov_b32 s{sT0}, 14336')
e.need_lg(tr - 1)
I(f'buffer_store_dwordx4 {v4(vF)}, v{vOut}, {srd(SOUT)}, 0 offen')
e.need_lg(tr)
I(f'buffer_store_dwordx4 {v4(vF+4)}, v{vOut}, {srd(SOUT)}, s{sT0} offen')
e.label('L_fin')
if DEBUG:
    stamp('end')
    I('s_waitcnt vmcnt(0) lgkmcnt(0)')
    I(f's_lshl_b32 s{sT0}, s2, 3')
    I(f's_add_u32 s{sT0}, s{sT0}, s{sWave}')
    I(f's_lshl_b32 s{sT0}, s{sT0}, 7')
    I(f's_add_u32 s{sT0}, s{sT0}, {WS_DBG}')
    I('s_mov_b64 exec, 1')
    for k in range(8):
        I(f'v_mov_b32 v2, s{sStamp+2*k}')
        I(f'buffer_store_dword v2, off, {srd(SWS)}, s{sT0} offset:{4*k}')
    I(f's_getreg_b32 s{sT1}, hwreg(HW_REG_XCC_ID)')
    I(f'v_mov_b32 v2, s{sT1}')
    I(f'buffer_store_dword v2, off, {srd(SWS)}, s{sT0} offset:40')
    I(f'v_mov_b32 v2, s{sType}')
    I(f'buffer_store_dword v2, off, {srd(SWS)}, s{sT0} offset:44')
e.label('L_end')
I('s_endpgm')
e.raw(f""".section .rodata,"a"
.p2align 6
.amdhsa_kernel {KNAME}
  .amdhsa_next_free_vgpr 256
  .amdhsa_next_free_sgpr 102
  .amdhsa_accum_offset {NV}
  .amdhsa_group_segment_fixed_size 0
  .amdhsa_kernarg_size 80
  .amdhsa_user_sgpr_count 2
  .amdhsa_user_sgpr_kernarg_segment_ptr 1
  .amdhsa_system_sgpr_workgroup_id_x 1
.end_amdhsa_kernel""")
open(OUT, 'w').write(e.text())
print('instructions', e.ninstr, 'nop states', e.nnop, file=sys.stderr)
```

```python
import sys, copy, math, struct
sys.path.insert(0, 'work')
from asmlib import Em

KNAME = 'gated_mix__sliding_local_dilated__linear_attn_block__prompt_kernel'
OPT = {a.split('=')[0][2:]: (a.split('=')[1] if '=' in a else True) for a in sys.argv[1:] if a.startswith('--')}
DEBUG = 'dbg' in OPT
OUT = [a for a in sys.argv[1:] if not a.startswith('--')][0]

def f32(x): return struct.unpack('<I', struct.pack('<f', x))[0]

WS_KV = 4 << 20
WS_CNT = WS_KV + 65536
WS_G = WS_KV + 131072
WS_DBG = 6 << 20
WS_SIZE = 8 << 20
WB = 0; XR = 57344; HS = 106496; WT = 114688; DUMMY = 150528; GW = 159744; LDS_SIZE = 163840
CMB = 118784
STG = 135168
def unit_base(u):
    if cur == 'A' or u < 14: return WB + (u & 7) * 7168
    return WT + ((u - 14) % 5) * 7168
sSpin = 3
SX, SW, SWS, SWOA, SWOB, SOUT, SDBG, SGW = 4, 8, 12, 16, 20, 24, 28, 32
sStamp = 36
SX3 = 52
sType, sI, sJ, sWave, sSel1, sP, sU, sH = 56, 57, 58, 59, 60, 61, 62, 63
sWo = 64
sXo = 71
sR, sM0a, sM0b, sXm = 78, 79, 80, 81
sTa, sTb = 82, 83
sSo2, sLo2 = 84, 85
sT0, sT1, sT2, sT3 = 86, 87, 88, 89
sCur = 90
sScale = 98
sSave = 100
SPIN_MAX = 1 << 19

def srd(n): return f's[{n}:{n+3}]'
def v4(n): return f'v[{n}:{n+3}]'
def v2(n): return f'v[{n}:{n+1}]'
def a4(n): return f'a[{n}:{n+3}]'

NV = 136
vLane = 1
vT = [2, 3, 4, 5, 6, 7, 8, 9]
vWs = 10
vXd = 12
vHd = 14
vW2 = 15
vWo = 16
vLa = 17
vXr = 18
vHr = 20
vBias = 22; vBias0 = 26
vMC01, vMC23, vMP01, vMP23, vPad = 30, 31, 32, 33, 34
vL16 = 35
vFlag = 36
vMisc = 37
vF = 40
vA1 = 72
vA2 = 112
aPrev = 112

e = Em()
I = e.I
cur = 'A'
SEL = OPT['stamps'].split(',') if 'stamps' in OPT else ['p1end', 'p2end', 'kvwait', 'pub', 'wait', 'half', 'end']
def stamp(name):
    if DEBUG and name in SEL:
        k = 1 + SEL.index(name)
        assert k < 8
        e.Ix(f's_memtime s[{sStamp+2*k}:{sStamp+2*k+1}]')

e.raw(f"""; fused gated-mix kernel: QKV GEMM + local attention / linear attention + out projection
; @launch grid=(256,1,1) block=(512,1,1) lds={LDS_SIZE}
.amdgcn_target "amdgcn-amd-amdhsa--gfx950"
.text
.globl {KNAME}
.p2align 8
.type {KNAME},@function
{KNAME}:""")
I('s_cmp_ge_u32 s2, 0x100')
I('s_cbranch_scc1 L_end')
if DEBUG: I('s_memtime s[98:99]')
if 'hdbg' in OPT: I('s_memrealtime s[96:97]')
I('s_load_dwordx16 s[36:51], s[0:1], 0')
I('s_load_dwordx4 s[92:95], s[0:1], 64')
I(f'v_and_b32 v{vLane}, 63, v0')
I(f'v_lshrrev_b32 v2, 6, v0')
sC = sT3
I(f's_and_b32 s{sC}, s2, 7')
I(f's_lshr_b32 s{sR}, s2, 3')
I(f'v_readfirstlane_b32 s{sWave}, v2')
sRot = sTa
I(f's_and_b32 s{sType}, s{sC}, 1')
I(f's_lshr_b32 s{sT0}, s{sC}, 2')
I(f's_lshl_b32 s{sI}, s{sT0}, 3')
I(f's_and_b32 s{sT1}, s{sR}, 7')
I(f's_add_u32 s{sI}, s{sI}, s{sT1}')
I(f's_bfe_u32 s{sT0}, s{sC}, 0x10001')
I(f's_lshl_b32 s{sJ}, s{sT0}, 2')
I(f's_lshr_b32 s{sT2}, s{sR}, 3')
I(f's_add_u32 s{sJ}, s{sJ}, s{sT2}')
I(f's_lshl_b32 s{sT2}, s{sT2}, 1')
I(f's_add_u32 s{sRot}, s{sT1}, s{sT2}')
I(f's_and_b32 s{sT0}, s{sC}, 3')
I(f's_add_u32 s{sRot}, s{sRot}, s{sT0}')
for _ in range(2):
    I(f's_sub_u32 s{sT0}, s{sRot}, 7')
    I(f's_cmp_ge_u32 s{sRot}, 7')
    I(f's_cselect_b32 s{sRot}, s{sT0}, s{sRot}')
I(f's_and_b32 s{sP}, s{sWave}, 1')
I(f's_bfe_u32 s{sH}, s{sWave}, 0x10001')
I(f's_lshr_b32 s{sU}, s{sWave}, 2')
I(f's_lshl_b32 s{sXo}, s{sRot}, 7')
I(f's_mul_i32 s{sWo}, s{sXo}, 1344')
q, g = vT[0], vT[1]
I(f'v_lshrrev_b32 v{q}, 3, v{vLane}')
I(f'v_lshrrev_b32 v{g}, 4, v{vLane}')
I(f'v_and_b32 v{vT[3]}, 7, v{vLane}')
I(f's_lshl_b32 s{sT0}, s{sI}, 7')
I(f's_lshr_b32 s{sT2}, s{sWave}, 1')
I(f's_lshl_b32 s{sT1}, s{sT2}, 5')
I(f's_add_u32 s{sT1}, s{sT1}, s{sT0}')
I(f's_add_u32 s{sT1}, s{sT1}, s{sP}')
I(f'v_lshl_add_u32 v{vT[2]}, v{q}, 1, s{sT1}')
I(f'v_mul_u32_u24 v{vT[2]}, 896, v{vT[2]}')
I(f'v_xor_b32 v{vT[4]}, v{vT[3]}, v{g}')
I(f'v_lshl_add_u32 v{vXd}, v{vT[4]}, 4, v{vT[2]}')
I(f'v_xor_b32 v{vXd+1}, 64, v{vXd}')
I(f'v_add_u32 v{vXd+1}, 14336, v{vXd+1}')
I(f's_lshl_b32 s{sXm}, s{sWave}, 11')
I(f's_add_u32 s{sXm}, s{sXm}, {XR}')
I(f's_sub_u32 s{sT1}, s{sWave}, 6')
I(f's_sub_u32 s{sT2}, s{sWave}, 2')
I(f's_cmp_ge_u32 s{sWave}, 6')
I(f's_cselect_b32 s{sTb}, s{sT1}, s{sT2}')
I(f's_and_b32 s{sT1}, s{sTb}, 2')
I(f's_lshl_b32 s{sT1}, s{sT1}, 5')
I(f's_add_u32 s{sT1}, s{sT1}, s{sT0}')
I(f's_add_u32 s{sT1}, s{sT1}, s{sP}')
I(f'v_lshl_add_u32 v{vT[2]}, v{q}, 1, s{sT1}')
I(f'v_mul_u32_u24 v{vT[2]}, 896, v{vT[2]}')
I(f'v_and_b32 v{vT[4]}, 6, v{q}')
I(f'v_xor_b32 v{vT[4]}, v{vT[3]}, v{vT[4]}')
I(f'v_lshl_add_u32 v{vHd}, v{vT[4]}, 4, v{vT[2]}')
I(f'v_add_u32 v{vHd}, 0xffffc800, v{vHd}')
I(f's_mul_i32 s{sT2}, s{sJ}, 112')
I(f's_mul_i32 s{sT1}, s{sType}, 896')
I(f's_add_u32 s{sT1}, s{sT1}, s{sT2}')
I(f's_add_u32 s{sT3}, s{sT1}, 896')
I(f'v_mov_b32 v{vT[7]}, 2688')
def woff(dst, s_u0, s_base):
    a, b, c, d = vT[2], vT[3], vT[4], vT[5]
    I(f'v_add_u32 v{a}, s{s_u0}, v{vLane}')
    I(f'v_mul_u32_u24 v{b}, 9363, v{a}')
    I(f'v_lshrrev_b32 v{b}, 16, v{b}')
    I(f'v_mad_i32_i24 v{a}, v{b}, -7, v{a}')
    I(f'v_bfe_u32 v{c}, v{b}, 1, 2')
    I(f'v_and_b32 v{d}, 1, v{b}')
    I(f'v_lshl_or_b32 v{c}, v{d}, 2, v{c}')
    I(f'v_and_or_b32 v{c}, v{b}, 56, v{c}')
    I(f'v_mad_u32_u24 v{c}, v{c}, v{vT[7]}, s{s_base}')
    I(f'v_lshl_add_u32 v{dst}, v{a}, 4, v{c}')
I(f's_lshl_b32 s{sT0}, s{sWave}, 6')
I(f's_cmp_eq_u32 s{sWave}, 7')
I(f's_cselect_b32 s{sM0a}, 0, s{sT0}')
I(f's_cselect_b32 s{sM0b}, s{sT3}, s{sT1}')
woff(vWs, sM0a, sM0b)
I(f's_add_u32 s{sT0}, s{sT0}, 64')
I(f's_cmp_ge_u32 s{sWave}, 6')
I(f's_cselect_b32 s{sT3}, 0x80000000, s{sT3}')
I(f's_cselect_b32 s{sSel1}, 0, 1')
I(f's_cselect_b32 s{sT0}, 0, s{sT0}')
woff(vWs + 1, sT0, sT3)
I(f's_lshl_b32 s{sM0a}, s{sWave}, 10')
I(f's_add_u32 s{sM0b}, s{sM0a}, 8192')
I(f's_lshl_b32 s{sTb}, s{sTb}, 10')
I(f's_cmp_eq_u32 s{sSel1}, 0')
I(f's_cselect_b32 s{sM0b}, s{sTb}, s{sM0b}')
I(f's_or_b32 s{sT0}, s{sSel1}, s{sType}')
I(f's_cmp_eq_u32 s{sT0}, 0')
I(f's_cselect_b64 s[{sSave}:{sSave+1}], -1, 0')
I(f'v_cndmask_b32 v{vWs+1}, v{vWs+1}, v{vHd}, s[{sSave}:{sSave+1}]')
sHm = 97
I(f'v_lshlrev_b32 v{vL16}, 4, v{vLane}')
I('s_waitcnt lgkmcnt(0)')
def mksrd(n, lo, size):
    I(f's_mov_b32 s{n}, s{lo}'); I(f's_mov_b32 s{n+1}, s{lo+1}'); I(f's_mov_b32 s{n+2}, {size}'); I(f's_mov_b32 s{n+3}, 0x20000')
mksrd(SX, 36, 1835008)
I(f's_cmp_eq_u32 s{sType}, 0')
I(f's_cselect_b32 s{SW}, s38, s44')
I(f's_cselect_b32 s{SW+1}, s39, s45')
I(f's_mov_b32 s{SW+2}, 1204224'); I(f's_mov_b32 s{SW+3}, 0x20000')
I(f's_cmp_eq_u64 s[{sSave}:{sSave+1}], 0')
I(f's_cselect_b32 s{SX3}, s{SW}, s{SX}')
I(f's_cselect_b32 s{SX3+1}, s{SW+1}, s{SX+1}')
I(f's_cselect_b32 s{SX3+2}, 1204224, s{SX+2}')
I(f's_mov_b32 s{SX3+3}, 0x20000')
sHm = sSo2
I(f's_mov_b32 s{sHm}, s{sTb}')

def late_prologue():
    for p in range(1, 7):
        I(f's_add_u32 s{sXo+p}, s{sXo+p-1}, 128')
        I(f's_cmp_eq_u32 s{sXo+p}, 896')
        I(f's_cselect_b32 s{sXo+p}, 0, s{sXo+p}')
        I(f's_mul_i32 s{sWo+p}, s{sXo+p}, 1344')
    mksrd(SWS, 94, WS_SIZE); mksrd(SDBG, 92, 256)
    mksrd(SWOA, 40, 401408); mksrd(SWOB, 46, 401408); mksrd(SOUT, 50, 1835008); mksrd(SGW, 48, 896)
    if DEBUG:
        for k in range(16): I(f's_mov_b32 s{sStamp+k}, s98')
        if 'hdbg' in OPT: I(f's_mov_b32 s{sStamp+1}, s96')

def zero_duty():
    I('s_cmp_ge_u32 s2, 8')
    I('s_cbranch_scc1 L_nozero' + cur)
    for k in range(4): I(f'v_mov_b32 v{vA1+k}, 0')
    I(f'v_lshlrev_b32 v{vT[2]}, 4, v0')
    I(f's_lshl_b32 s{sT0}, s2, 13')
    I(f's_add_u32 s{sT0}, s{sT0}, {WS_KV}')
    e.Ix(f'buffer_store_dwordx4 {v4(vA1)}, v{vT[2]}, {srd(SWS)}, s{sT0} offen sc1')
    I(f's_cmp_lg_u32 s{sWave}, 0')
    I('s_cbranch_scc1 L_nozero' + cur)
    I(f's_lshl_b32 s{sT0}, s2, 10')
    I(f's_add_u32 s{sT0}, s{sT0}, {WS_CNT}')
    e.Ix(f'buffer_store_dwordx4 {v4(vA1)}, v{vT[2]}, {srd(SWS)}, s{sT0} offen sc1')
    e.label('L_nozero' + cur)

I(f's_cmp_lg_u32 s{sType}, 0')
I('s_cbranch_scc1 L_typeB')

def xreg(T, t): return (T * 14 + t) * 4

class Stage: pass
def build_stages():
    st = []
    for si in range(14):
        s = Stage(); s.pos = si % 7; s.p1 = si < 7
        s.u0 = 2 * si if si < 7 else 14 + (si - 7)
        s.nf = 4 if si < 7 else 2
        st.append(s)
    return st

nlab = [0]
def stage_ops(si, s, halo):
    ops = []
    pos = s.pos
    if s.p1:
        if halo:
            def fh():
                nlab[0] += 1
                I(f's_sub_u32 s{sTa}, s{sWave}, 4')
                I(f's_cmp_ge_u32 s{sTa}, 2')
                I(f's_cbranch_scc1 L_nh{nlab[0]}')
                I(f's_add_u32 m0, s{sHm}, {HS + pos * 4096}')
                e.Ix(f'buffer_load_dwordx4 v{vHd}, {srd(SX)}, s{sXo+pos} offen lds')
                e.label(f'L_nh{nlab[0]}')
                return None
            ops.append(fh)
        def f0():
            I(f's_add_u32 m0, s{sM0a}, {unit_base(s.u0)}')
            return I(f'buffer_load_dwordx4 v{vWs}, {srd(SW)}, s{sWo+pos} offen lds')
        def f1():
            alt = HS + pos * 4096 if halo else DUMMY
            I(f's_mul_i32 m0, s{sSel1}, {(unit_base(s.u0) - alt) & 0xffffffff}')
            if halo:
                I(f's_cmp_lg_u32 s{sSel1}, 0')
                I(f's_cselect_b32 s{sTa}, s{sWo+pos}, s{sXo+pos}')
            I(f's_add_u32 m0, m0, s{sM0b}')
            I(f's_add_u32 m0, m0, {alt}')
            return I(f'buffer_load_dwordx4 v{vWs+1}, {srd(SX3)}, s{sTa if halo else sWo+pos} offen lds')
        ops += [f0, f1]
        for hq in range(2):
            def f(hq=hq):
                I(f's_add_u32 m0, s{sXm}, {(si % 3) * 16384 + hq * 1024}')
                return I(f'buffer_load_dwordx4 v{vXd+hq}, {srd(SX)}, s{sXo+pos} offen lds')
            ops.append(f)
    else:
        def f2():
            I(f's_mul_i32 m0, s{sSel1}, {(unit_base(s.u0) - DUMMY) & 0xffffffff}')
            I(f's_add_u32 m0, m0, s{sM0b}')
            return I(f'buffer_load_dwordx4 v{vW2}, {srd(SW)}, s{sWo+pos} offen lds')
        ops.append(f2)
    return ops

class LB: base = 0
def fslot(ks, f): return ks * 4 + f
def issue_frag(s, ks, f):
    u = s.u0 + (f >> 1)
    off = unit_base(u) + ks * 32 * 112 + (f & 1) * 32
    if off >= WT and LB.base == 0:
        I(f'v_add_u32 v{vLa}, {WT}, v{vLa}')
        LB.base = WT
    o = off - LB.base
    assert 0 <= o and o + 112 < 65536
    r = vF + 4 * fslot(ks, f)
    I(f'ds_read_b64_tr_b16 {v2(r)}, v{vLa} offset:{o}')
    return I(f'ds_read_b64_tr_b16 {v2(r+2)}, v{vLa} offset:{o+112}')

def issue_x(t, halo):
    si, ks = t >> 1, t & 1
    tag = None
    if si < 7:
        for T in range(2):
            tag = I(f'ds_read_b128 {a4(xreg(T, t))}, v{vXr+ks} offset:{(si % 3) * 16384 + T * 4096}')
    if halo:
        tag = I(f'ds_read_b128 {a4(aPrev + 4 * ks)}, v{vHr+ks} offset:{(si % 7) * 4096}')
    return tag

def run_gemm(issue_at, halo, setup, mfmas, fillers, hooks, extra=None, extra_vm=None, fill_rate=2, skip=()):
    LB.base = 0
    stages = build_stages()
    NS = 14; NT = 28
    tags = {}
    def emit_ops(sj, ops):
        for o in ops:
            tg = o()
            if tg is not None: tags[sj] = tg
    emit_ops(0, stage_ops(0, stages[0], halo))
    late_prologue()
    stamp('ld0')
    for si in range(1, NS):
        if isinstance(issue_at[si], int) and issue_at[si] < 0: emit_ops(si, stage_ops(si, stages[si], halo))
    setup()
    stamp('setup')
    e.need_vm(tags[0])
    I('s_barrier')
    stamp('b0')
    ftag, xtag = {}, {}
    for t in (0, 1):
        xtag[t] = issue_x(t, halo)
        for f in range(4): ftag[(t, f)] = issue_frag(stages[0], t, f)
    fq = []
    for t in range(NT):
        si, ks = t >> 1, t & 1
        s = stages[si]
        ns = stages[si + 1] if si + 1 < NS else None
        if ('pre', t) in hooks: hooks[('pre', t)]()
        if ks == 0 and ns is not None and (si + 1) not in skip:
            b = si + 1
            if ('prebar', b) in hooks: hooks[('prebar', b)]()
            bb = b
            while bb + 1 in skip: bb += 1
            e.need_vm(max(tags[x] for x in range(b, bb + 1)))
            I('s_barrier')
            stamp(f'b{b}')
            if ('bar', b) in hooks: hooks[('bar', b)]()
        vops = []
        for sj in range(NS):
            if issue_at[sj] == t:
                vops += [(sj, o) for o in stage_ops(sj, stages[sj], halo)]
            elif isinstance(issue_at[sj], tuple) and t in issue_at[sj]:
                ops = stage_ops(sj, stages[sj], halo)
                n = len(issue_at[sj]); k = issue_at[sj].index(t)
                lo, hi = len(ops) * k // n, len(ops) * (k + 1) // n
                vops += [(sj, o) for o in ops[lo:hi]]
        if extra_vm and t in extra_vm: vops += [(None, o) for o in extra_vm[t]]
        fq += fillers.get(t, [])
        if extra: extra(t, 'issue')
        e.need_lg(xtag.get(t))
        for f in range(s.nf):
            e.need_lg(ftag[(t, f)])
            for m in mfmas(t, f, v4(vF + 4 * fslot(ks, f))):
                I(m)
                for _ in range(fill_rate):
                    if fq: fq.pop(0)()
            if ns is not None and f < ns.nf: ftag[(t + 2, f)] = issue_frag(ns, ks, f)
            nv = (len(vops) + s.nf - f - 1) // (s.nf - f)
            for _ in range(nv):
                sj, o = vops.pop(0); tg = o()
                if sj is not None and tg is not None: tags[sj] = tg
        if ns is not None: xtag[t + 2] = issue_x(t + 2, halo)
        if extra: extra(t, 'use')
        if ('post', t) in hooks:
            while fq: fq.pop(0)()
            hooks[('post', t)]()
    while fq: fq.pop(0)()

def mf(d, a, b, first):
    return f'v_mfma_f32_16x16x32_bf16 {v4(d)}, {a}, {b}, {"0" if first else v4(d)}'

def flag_store_hook():
    I('s_cmp_ge_u32 s2, 8')
    I('s_cbranch_scc1 L_nf' + cur)
    I(f's_cmp_lg_u32 s{sWave}, 0')
    I('s_cbranch_scc1 L_nf' + cur)
    I(f's_lshl_b32 s{sT0}, s2, 2')
    I(f'v_mov_b32 v{vFlag}, 1')
    I(f's_mov_b64 exec, 1')
    e.Ix(f'buffer_store_dword v{vFlag}, off, {srd(SDBG)}, s{sT0} sc1')
    I(f's_mov_b64 exec, -1')
    e.label('L_nf' + cur)

def flag_load_hook():
    I(f'v_lshlrev_b32 v{vMisc}, 2, v{vLane}')
    I(f's_cmp_lg_u32 s{sWave}, 0')
    I('s_cbranch_scc1 L_nl' + cur)
    I(f's_mov_b64 exec, 0xff')
    e.Ix(f'buffer_load_dword v{vFlag}, v{vMisc}, {srd(SDBG)}, 0 offen sc1')
    I(f's_mov_b64 exec, -1')
    e.label('L_nl' + cur)

def flag_check_hook():
    I(f's_cmp_lg_u32 s{sWave}, 0')
    I('s_cbranch_scc1 L_nc' + cur)
    I(f's_mov_b64 exec, 0xff')
    I(f's_mov_b32 s{sSpin}, 0')
    e.label('L_fc' + cur)
    I(f'v_cmp_eq_u32 vcc, 0, v{vFlag}')
    e.nop(4)
    I('s_cbranch_vccz L_fok' + cur)
    I(f's_add_u32 s{sSpin}, s{sSpin}, 1')
    I(f's_cmp_ge_u32 s{sSpin}, {SPIN_MAX}')
    I('s_cbranch_scc1 L_fok' + cur)
    I('s_sleep 2')
    e.Ix(f'buffer_load_dword v{vFlag}, v{vMisc}, {srd(SDBG)}, 0 offen sc1')
    I('s_waitcnt vmcnt(0)')
    I('s_branch L_fc' + cur)
    e.label('L_fok' + cur)
    I(f's_mov_b64 exec, -1')
    e.label('L_nc' + cur)

def lane_addrs():
    a, b, c = vT[2], vT[3], vT[4]
    q, g = vT[0], vT[1]
    I(f'v_and_b32 v{q}, 15, v{vLane}')
    I(f'v_lshrrev_b32 v{g}, 4, v{vLane}')
    I(f'v_bfe_u32 v{a}, v{vLane}, 2, 2')
    I(f'v_lshl_add_u32 v{a}, v{g}, 2, v{a}')
    I(f'v_mul_u32_u24 v{a}, 224, v{a}')
    I(f'v_and_b32 v{b}, 3, v{vLane}')
    I(f'v_lshl_add_u32 v{vLa}, v{b}, 3, v{a}')
    I(f's_mul_i32 s{sT0}, s{sH}, 56')
    I(f'v_add_u32 v{vLa}, s{sT0}, v{vLa}')
    I(f'v_lshrrev_b32 v{a}, 1, v{q}')
    I(f'v_xor_b32 v{a}, v{a}, v{g}')
    I(f'v_lshlrev_b32 v{a}, 4, v{a}')
    I(f'v_lshl_add_u32 v{a}, v{q}, 7, v{a}')
    I(f's_and_b32 s{sT0}, s{sWave}, 5')
    I(f's_lshl_b32 s{sT0}, s{sT0}, 11')
    I(f's_add_u32 s{sT0}, s{sT0}, {XR}')
    I(f'v_add_u32 v{vXr}, s{sT0}, v{a}')
    I(f'v_xor_b32 v{vXr+1}, 64, v{vXr}')

def setup2(out):
    a, b, c = vT[2], vT[3], vT[4]
    g = vT[1]
    A = lambda s: out.append(lambda: I(s))
    A(f'v_cmp_gt_u32 vcc, 3, v{g}')
    A(f'v_cndmask_b32 v{vPad}, 0, -1, vcc')
    def w2():
        I(f's_mul_i32 s{sT2}, s{sJ}, 112')
        if cur == 'A': I(f's_add_u32 s{sT2}, s{sT2}, 1792')
        I(f's_lshl_b32 s{sT0}, s{sWave}, 6')
        I(f's_cmp_eq_u32 s{sWave}, 7')
        I(f's_cselect_b32 s{sT2}, 0x80000000, s{sT2}')
        I(f's_cselect_b32 s{sT0}, 0, s{sT0}')
        I(f'v_mov_b32 v{vT[7]}, 2688')
        woff(vW2, sT0, sT2)
    out.append(w2)
    A(f'v_lshrrev_b32 v{a}, 3, v{vLane}')
    A(f'v_mul_u32_u24 v{a}, 896, v{a}')
    A(f'v_lshlrev_b32 v{b}, 1, v{g}')
    A(f'v_and_b32 v{c}, 7, v{vLane}')
    A(f'v_xor_b32 v{b}, v{b}, v{c}')
    A(f'v_lshl_add_u32 v{vWo}, v{b}, 4, v{a}')
    def w3():
        I(f's_lshr_b32 s{sT1}, s{sR}, 2')
        I(f's_lshl_b32 s{sT1}, s{sT1}, 7')
        I(f's_cmp_ge_u32 s{sR}, 28')
        I(f's_cselect_b32 s{sT1}, 0x80000000, s{sT1}')
        I(f'v_add_u32 v{vWo}, s{sT1}, v{vWo}')
    out.append(w3)

def seg2_switch():
    I(f's_cmp_eq_u32 s{sWave}, 7')
    I(f's_cselect_b32 s{sSel1}, 0, 1')
    I(f's_cselect_b32 s{sM0b}, 0, s{sM0a}')
    I(f's_add_u32 s{sM0b}, s{sM0b}, {DUMMY}')
    I(f's_and_b32 s{sT0}, s{sR}, 3')
    I(f's_lshl_b32 s{sT0}, s{sT0}, 4')
    I(f's_add_u32 s{sT0}, s{sT0}, s{sWave}')
    I(f's_lshl_b32 s{sLo2}, s{sT0}, 10')
    I(f's_mul_i32 s{sSo2}, s{sLo2}, 7')

def wo_ops(halves=(0, 1)):
    ops = []
    for half in halves:
        for qq in range(7):
            def f(half=half):
                I(f's_add_u32 m0, s{sLo2}, {half*57344}')
                tg = I(f'buffer_load_dwordx4 v{vWo}, {srd(SWOA if half == 0 else SWOB)}, s{sSo2} offen lds')
                I(f's_add_u32 s{sLo2}, s{sLo2}, 8192')
                I(f's_cmp_ge_u32 s{sLo2}, 57344')
                I(f's_cselect_b32 s{sTb}, 57344, 0')
                I(f's_sub_u32 s{sLo2}, s{sLo2}, s{sTb}')
                I(f's_mul_i32 s{sSo2}, s{sLo2}, 7')
                return tg
            ops.append(f)
    return ops

def spread(ops, ts):
    n = len(ts)
    return {t: ops[len(ops) * k // n: len(ops) * (k + 1) // n] for k, t in enumerate(ts)}

def xlane(op, m, m2, out):
    out.append(lambda: I(f'v_mov_b32 v{m2}, v{m}'))
    out.append(lambda: I(f'v_permlane16_swap_b32 v{m}, v{m2}'))
    out.append(lambda: I(f'{op} v{m}, v{m}, v{m2}'))
    out.append(lambda: I(f'v_mov_b32 v{m2}, v{m}'))
    out.append(lambda: I(f'v_permlane32_swap_b32 v{m}, v{m2}'))
    out.append(lambda: I(f'{op} v{m}, v{m}, v{m2}'))

def interleave(lists):
    out = []
    for k in range(max(len(l) for l in lists)):
        for l in lists:
            if k < len(l): out.append(l[k])
    return out

sO = [94, 95]
def o_offsets():
    I(f's_lshl_b32 s{sT0}, s{sI}, 3')
    I(f's_and_b32 s{sT1}, s{sWave}, 5')
    I(f's_add_u32 s{sT0}, s{sT0}, s{sT1}')
    I(f's_lshl_b32 s{sT0}, s{sT0}, 5')
    I(f's_lshl_b32 s{sT1}, s{sType}, 4')
    I(f's_add_u32 s{sT0}, s{sT0}, s{sT1}')
    I(f's_lshl_b32 s{sT1}, s{sJ}, 1')
    I(f's_add_u32 s{sT0}, s{sT0}, s{sT1}')
    I(f's_add_u32 s{sT0}, s{sT0}, s{sH}')
    I(f's_lshl_b32 s{sO[0]}, s{sT0}, 10')
    I(f's_add_u32 s{sO[1]}, s{sO[0]}, 65536')

def pack_T(out, dst, acc0, acc1):
    out.append(lambda: I(f'v_cvt_pk_bf16_f32 v{dst}, v{acc0}, v{acc0+1}'))
    out.append(lambda: I(f'v_cvt_pk_bf16_f32 v{dst+1}, v{acc0+2}, v{acc0+3}'))
    out.append(lambda: I(f'v_cvt_pk_bf16_f32 v{dst+2}, v{acc1}, v{acc1+1}'))
    out.append(lambda: I(f'v_cvt_pk_bf16_f32 v{dst+3}, v{acc1+2}, v{acc1+3}'))
    out.append(lambda: I(f'v_and_b32 v{dst+2}, v{vPad}, v{dst+2}'))
    out.append(lambda: I(f'v_and_b32 v{dst+3}, v{vPad}, v{dst+3}'))

def Oacc(T, dt): return vO + (T * 2 + dt) * 4
def o_finish(T, inv):
    d = vOp + 4 * T
    for dt in range(2):
        a = Oacc(T, dt)
        for r in range(4): I(f'v_mul_f32 v{a+r}, v{inv}, v{a+r}')
        I(f'v_cvt_pk_bf16_f32 v{d+2*dt}, v{a}, v{a+1}')
        I(f'v_cvt_pk_bf16_f32 v{d+2*dt+1}, v{a+2}, v{a+3}')
    I(f'v_and_b32 v{d+2}, v{vPad}, v{d+2}')
    I(f'v_and_b32 v{d+3}, v{vPad}, v{d+3}')
    I(f'buffer_store_dwordx4 {v4(d)}, v{vL16}, {srd(SWS)}, s{sO[T]} offen sc1')

def cnt_add(sreg_off, lab):
    I(f's_cmp_lg_u32 s{sWave}, 0')
    I(f's_cbranch_scc1 {lab}')
    I(f'v_mov_b32 v{vFlag}, 1')
    I('s_mov_b64 exec, 1')
    e.Ix(f'buffer_atomic_add v{vFlag}, off, {srd(SWS)}, s{sreg_off}')
    I('s_mov_b64 exec, -1')
    e.label(lab)

def poll(sreg_off, n, lab):
    I('s_mov_b64 exec, 1')
    I(f's_mov_b32 s{sSpin}, 0')
    e.label(lab)
    e.Ix(f'buffer_load_dword v{vFlag}, off, {srd(SWS)}, s{sreg_off} sc1')
    I(f's_add_u32 s{sSpin}, s{sSpin}, 1')
    I('s_waitcnt vmcnt(0)')
    I(f'v_readfirstlane_b32 s{sT3}, v{vFlag}')
    I(f's_cmp_ge_u32 s{sT3}, {n}')
    I(f's_cbranch_scc1 {lab}_k')
    I(f's_cmp_ge_u32 s{sSpin}, {SPIN_MAX}')
    I(f's_cbranch_scc1 {lab}_k')
    I('s_sleep 1')
    I(f's_branch {lab}')
    e.label(lab + '_k')
    I('s_mov_b64 exec, -1')

def cnt_wait(sreg_off, n, lab):
    I(f's_cmp_lg_u32 s{sWave}, 0')
    I(f's_cbranch_scc1 {lab}_d')
    poll(sreg_off, n, lab)
    e.label(lab + '_d')
    I('s_barrier')

STATE = ('t', 'w', 'cread', 'stread', 'vm_issued', 'vm_done', 'lg_issued', 'lg_done')
snap = copy.deepcopy({k: getattr(e, k) for k in STATE})
ISS = {0: -1, 1: -1, 2: 0}
for si in range(3, 7): ISS[si] = (2 * si - 5, 2 * si - 4)

cur = 'A'
def setupA():
    zero_duty()
    lane_addrs()
    q, g, c, d = vT[0], vT[1], vT[2], vT[3]
    I(f'v_and_b32 v{c}, 6, v{q}')
    I(f'v_xor_b32 v{c}, v{c}, v{g}')
    I(f'v_lshlrev_b32 v{c}, 4, v{c}')
    I(f'v_and_b32 v{d}, 7, v{q}')
    I(f'v_lshl_add_u32 v{c}, v{d}, 7, v{c}')
    I(f's_lshl_b32 s{sT0}, s{sU}, 1')
    I(f's_add_u32 s{sT0}, s{sT0}, s{sP}')
    I(f's_lshl_b32 s{sT0}, s{sT0}, 10')
    I(f's_add_u32 s{sT0}, s{sT0}, {HS}')
    I(f'v_add_u32 v{vHr}, s{sT0}, v{c}')
    I(f'v_xor_b32 v{vHr+1}, 64, v{vHr}')

def setupA2(out):
    q, g, c, d = vT[0], vT[1], vT[2], vT[3]
    A = lambda s: out.append(lambda: I(s))
    A(f'v_mov_b32 v{vT[5]}, 0xff800000')
    A(f's_or_b32 s{sT2}, s{sI}, s{sU}')
    for r in range(4):
        A(f'v_lshl_add_u32 v{c}, v{g}, 2, {r}')
        A(f'v_cmp_le_u32 s[{sCur+2*r}:{sCur+2*r+1}], v{c}, v{q}')
        A(f'v_sub_u32 v{d}, v{q}, v{c}')
        A(f'v_and_b32 v{d}, 15, v{d}')
        A(f'v_cmp_gt_u32 vcc, 8, v{d}')
        A(f'v_cndmask_b32 v{vBias+r}, v{vT[5]}, 0, vcc')
        def blk(r=r):
            I(f's_and_b64 s[{sSave}:{sSave+1}], vcc, s[{sCur+2*r}:{sCur+2*r+1}]')
            I(f's_cmp_eq_u32 s{sT2}, 0')
            I(f's_cselect_b64 s[{sSave}:{sSave+1}], s[{sSave}:{sSave+1}], vcc')
        out.append(blk)
        A(f'v_cndmask_b32 v{vBias0+r}, v{vT[5]}, 0, s[{sSave}:{sSave+1}]')
    for (mc, mp, r) in ((vMC01, vMP01, 0), (vMC23, vMP23, 2)):
        A(f'v_mov_b32 v{c}, 0xffff')
        A(f'v_cndmask_b32 v{mc}, 0, v{c}, s[{sCur+2*r}:{sCur+2*r+1}]')
        A(f'v_mov_b32 v{c}, 0xffff0000')
        A(f'v_cndmask_b32 v{d}, 0, v{c}, s[{sCur+2*r+2}:{sCur+2*r+3}]')
        A(f'v_or_b32 v{mc}, v{mc}, v{d}')
        A(f'v_not_b32 v{mp}, v{mc}')
    A(f's_mov_b32 s{sScale}, 0x{f32(28 ** -0.5 * math.log2(math.e)):08x}')

def accQ(T, ct): return vA1 + (T * 2 + ct) * 4
def accK(T, ct): return vA1 + 16 + (T * 2 + ct) * 4
def accV(T, ct): return vA2 + (T * 2 + ct) * 4
def mfA(t, f, fr):
    if t < 14:
        if f < 2: return [mf(accQ(T, f), fr, a4(xreg(T, t)), t == 0) for T in range(2)]
        return [mf(accK(T, f - 2), fr, a4(xreg(T, t)), t == 0) for T in range(2)] + [mf(accK(2, f - 2), fr, a4(aPrev + 4 * (t & 1)), t == 0)]
    tt = t - 14
    return [mf(accV(T, f), a4(xreg(T, tt)), fr, tt == 0) for T in range(2)] + [mf(accV(2, f), a4(aPrev + 4 * (t & 1)), fr, tt == 0)]
def Qp(T): return vF + 8 + 4 * T
def Kp(T): return (vF + 24 + 4 * T) if T < 2 else vWs
vS = vA1; vPf = vA1 + 16; vInv = vA1 + 24; vTm = vA1 + 28
fA2, fA14 = [], []
setupA2(fA2); setup2(fA2)
for T in range(3): pack_T(fA14, Kp(T), accK(T, 0), accK(T, 1))
for T in range(2): pack_T(fA14, Qp(T), accQ(T, 0), accQ(T, 1))
for T in range(2):
    sc, sp = vS + 8 * T, vS + 8 * T + 4
    fA14.append(lambda sc=sc, T=T: I(mf(sc, v4(Kp(T)), v4(Qp(T)), True)))
    fA14.append(lambda sp=sp, T=T: I(mf(sp, v4(Kp(0) if T == 1 else Kp(2)), v4(Qp(T)), True)))
def softmax_valu(out, T):
    sc, sp, tm = vS + 8 * T, vS + 8 * T + 4, vTm + 4 * T
    bias = vBias if T == 1 else vBias0
    A = lambda s: out.append(lambda: I(s))
    for r in range(4): A(f'v_cndmask_b32 v{sc+r}, v{sp+r}, v{sc+r}, s[{sCur+2*r}:{sCur+2*r+1}]')
    for r in range(4): A(f'v_fma_f32 v{sc+r}, v{sc+r}, s{sScale}, v{bias+r}')
    m, m2 = tm, tm + 1
    A(f'v_max3_f32 v{m}, v{sc}, v{sc+1}, v{sc+2}')
    A(f'v_max_f32 v{m}, v{m}, v{sc+3}')
    xlane('v_max_f32', m, m2, out)
    for r in range(4): A(f'v_sub_f32 v{sc+r}, v{sc+r}, v{m}')
    for r in range(4): A(f'v_exp_f32 v{sc+r}, v{sc+r}')
    A(f'v_add_f32 v{m}, v{sc}, v{sc+1}')
    A(f'v_add_f32 v{m2}, v{sc+2}, v{sc+3}')
    A(f'v_cvt_pk_bf16_f32 v{tm+2}, v{sc}, v{sc+1}')
    A(f'v_add_f32 v{m}, v{m}, v{m2}')
    A(f'v_cvt_pk_bf16_f32 v{tm+3}, v{sc+2}, v{sc+3}')
    xlane('v_add_f32', m, m2, out)
    pf = vPf + 4 * T
    A(f'v_and_b32 v{pf}, v{vMP01}, v{tm+2}')
    A(f'v_and_b32 v{pf+1}, v{vMP23}, v{tm+3}')
    A(f'v_and_b32 v{pf+2}, v{vMC01}, v{tm+2}')
    A(f'v_and_b32 v{pf+3}, v{vMC23}, v{tm+3}')
    A(f'v_rcp_f32 v{vInv+T}, v{m}')
vl = []
for T in range(2):
    l = []; softmax_valu(l, T); vl.append(l)
fA14 += interleave(vl)

issA = dict(ISS)
issA.update({7: 9, 8: 9, 9: 10, 10: 11, 11: 12, 12: 13, 13: 14})
hooksA = {('bar', 2): flag_store_hook, ('pre', 6): flag_load_hook, ('prebar', 8): flag_check_hook,
          ('post', 13): lambda: stamp('p1end'), ('pre', 9): seg2_switch}
run_gemm(issA, True, setupA, mfA, {1: fA2, 14: fA14}, hooksA, fill_rate=int(OPT.get('fillA', 2)), skip=eval(OPT.get('skipA', '()')))
stamp('p2end')
vVp = vF
vO = vA1; vOp = vA1 + 28
def Vp(dt): return vVp + 6 * dt
for dt in range(2):
    for T in (2, 0, 1):
        a = accV(T, dt); d = Vp(dt) + (0 if T == 2 else 2 + 2 * T)
        I(f'v_cvt_pk_bf16_f32 v{d}, v{a}, v{a+1}')
        I(f'v_cvt_pk_bf16_f32 v{d+1}, v{a+2}, v{a+3}')
for T in range(2):
    for dt in range(2): I(mf(Oacc(T, dt), v4(Vp(dt) + 2 * T), v4(vPf + 4 * T), True))
o_offsets()
for T in range(2): o_finish(T, vInv + T)
I('s_branch L_publish')

for k, v in copy.deepcopy(snap).items(): setattr(e, k, v)
cur = 'B'
e.label('L_typeB')
vGa = 20; vKm = 21; vCl = 22; vCe = 24; vOne = 26; vG = [28, vF + 8]
sOne = 90; sKVc = 92
def setupB():
    zero_duty()
    I(f's_cmp_lg_u32 s{sWave}, 0')
    I('s_cbranch_scc1 L_nogw')
    I(f's_mov_b32 exec_hi, 0xffffff')
    I(f's_mov_b32 m0, {GW}')
    e.Ix(f'buffer_load_dwordx4 v{vL16}, {srd(SGW)}, 0 offen lds')
    I(f's_mov_b32 m0, {GW+896}')
    e.Ix(f'buffer_load_dwordx4 v{vL16}, {srd(SGW)}, 0 offen lds')
    I(f's_mov_b64 exec, -1')
    e.label('L_nogw')
    lane_addrs()
fB2 = []
def setupB2(out):
    q, g = vT[0], vT[1]
    A = lambda s: out.append(lambda: I(s))
    A(f'v_cmp_gt_u32 vcc, 12, v{q}')
    A(f'v_cndmask_b32 v{vKm}, 0, -1, vcc')
    A(f'v_cmp_eq_u32 s[{sOne}:{sOne+1}], 12, v{q}')
    A(f'v_mov_b32 v{vOne}, 0x3f803f80')
    A(f'v_lshlrev_b32 v{vGa}, 4, v{g}')
    A(f'v_add_u32 v{vGa}, s{sXo}, v{vGa}')
    A(f'v_add_u32 v{vGa}, {GW}, v{vGa}')
    A(f's_mov_b32 s{sScale}, 0x{f32(math.log2(math.e)):08x}')
    A(f's_mov_b32 s{sScale+1}, 0x{f32(1e-6):08x}')
    for k in range(2):
        A(f'v_mov_b32 v{vCl+k}, s{sScale}')
        A(f'v_mov_b32 v{vCe+k}, s{sScale+1}')
setupB2(fB2); setup2(fB2)

def baccK(T, ct): return vA1 + (T * 2 + ct) * 4
def baccV(T, ct): return vA1 + 16 + (T * 2 + ct) * 4
def baccQ(T, ct): return vA2 + (T * 2 + ct) * 4
def baccG(T): return vA2 + 16 + T * 4
def mfB(t, f, fr):
    if t < 14:
        acc = baccK if f < 2 else baccV
        return [mf(acc(T, f & 1), a4(xreg(T, t)), fr, t == 0) for T in range(2)]
    return [mf(baccQ(T, f), fr, a4(xreg(T, t - 14)), t == 14) for T in range(2)]
gt = {}
def gate_reads(t, what):
    if what == 'issue':
        if 13 <= t < 27 and not (t == 13):
            gt[t + 1] = I(f'ds_read_b128 {v4(vG[(t + 1) & 1])}, v{vGa} offset:{(t + 1 - 14) * 64}')
        if t == 13:
            gt[14] = I(f'ds_read_b128 {v4(vG[0])}, v{vGa} offset:0')
    elif t >= 14:
        e.need_lg(gt[t])
        for T in range(2): I(mf(baccG(T), v4(vG[t & 1]), a4(xreg(T, t - 14)), t == 14))

def phi(out, a, tmp):
    A = lambda s: out.append(lambda: I(s))
    for r in range(4): A(f'v_min_f32 v{tmp+r}, 0, v{a+r}')
    for r in (0, 2): A(f'v_pk_add_f32 {v2(a+r)}, {v2(a+r)}, {v2(tmp+r)} neg_lo:[0,1] neg_hi:[0,1]')
    for r in (0, 2): A(f'v_pk_mul_f32 {v2(tmp+r)}, {v2(tmp+r)}, {v2(vCl)}')
    for r in (0, 2): A(f'v_pk_add_f32 {v2(a+r)}, {v2(a+r)}, {v2(vCe)}')
    for r in range(4): A(f'v_exp_f32 v{tmp+r}, v{tmp+r}')
    for r in (0, 2): A(f'v_pk_add_f32 {v2(a+r)}, {v2(a+r)}, {v2(tmp+r)}')

vPK = vF + 24
vVV = vF + 12
def VV(c): return (vF + 12) if c == 0 else vWs
vKV = vA1
vRd = vA1 + 16
bt = {}
fB14, fB18 = [], []
def mkB():
    A = lambda s: fB14.append(lambda: I(s))
    for ct in range(2):
        for T in range(2): phi(fB14, baccK(T, ct), vT[0] if T == 0 else vT[4])
        for T in range(2):
            a = baccK(T, ct); d = vPK + 4 * ct + 2 * T
            A(f'v_cvt_pk_bf16_f32 v{d}, v{a}, v{a+1}')
            A(f'v_cvt_pk_bf16_f32 v{d+1}, v{a+2}, v{a+3}')
        for T in range(2):
            a = baccV(T, ct); d = VV(ct) + 2 * T
            A(f'v_cvt_pk_bf16_f32 v{d}, v{a}, v{a+1}')
            A(f'v_cvt_pk_bf16_f32 v{d+1}, v{a+2}, v{a+3}')
    for k in range(4):
        A(f'v_and_b32 v{vPK+4+k}, v{vKm}, v{vPK+4+k}')
        A(f'v_cndmask_b32 v{VV(1)+k}, v{VV(1)+k}, v{vOne}, s[{sOne}:{sOne+1}]')
    for c in range(2):
        for a in range(2): A(mf(vKV + 4 * (c * 2 + a), v4(vPK + 4 * a), v4(VV(c)), True))
    A(f's_lshl_b32 s{sT0}, s{sU}, 1')
    A(f's_add_u32 s{sT0}, s{sT0}, s{sP}')
    A(f's_lshl_b32 s{sT0}, s{sT0}, 13')
    A(f's_lshl_b32 s{sT1}, s{sH}, 12')
    A(f's_add_u32 s{sT0}, s{sT0}, s{sT1}')
    A(f'v_add_u32 v{vMisc+1}, s{sT0}, v{vL16}')
    A(f's_lshl_b32 s{sT0}, s{sWave}, 10')
    A(f'v_lshlrev_b32 v{vMisc+2}, 2, v{vLane}')
    A(f'v_add_u32 v{vMisc+2}, s{sT0}, v{vMisc+2}')
    A(f's_lshl_b32 s{sT1}, s{sJ}, 13')
    A(f's_add_u32 s{sT1}, s{sT1}, {WS_KV}')
    for k in range(4):
        def w(k=k): bt['tw'] = I(f'ds_write_b128 v{vMisc+1}, {v4(vKV+4*k)} offset:{k*1024}')
        fB14.append(w)
    rt = {}
    for m in range(4):
        for src in range(4):
            def rd(m=m, src=src): rt[(m, src)] = I(f'ds_read_b32 v{vRd + m * 4 + src}, v{vMisc+2} offset:{src*8192 + m*256}')
            fB18.append(rd)
    for m in range(4): fB18.append(lambda m=m: red(m, rt))
    fB18.append(lambda: stamp('kvend'))
def red(m, rt):
    b = vRd + m * 4
    e.need_lg(rt[(m, 3)])
    I(f'v_add_f32 v{b}, v{b}, v{b+1}')
    I(f'v_add_f32 v{b+2}, v{b+2}, v{b+3}')
    I(f'v_add_f32 v{b}, v{b}, v{b+2}')
    bt['at'] = I(f'buffer_atomic_add_f32 v{b}, v{vMisc+2}, {srd(SWS)}, s{sT1} offen offset:{m*256}')
mkB()
IMGBAR = int(OPT.get('imgbar', 10)); KVBAR = int(OPT.get('kvbar', 12))
def B_prebar_img():
    flag_check_hook()
    e.need_lg(bt['tw'])
def B_prebar_cnt(): e.need_vm(bt['at'])
def B_bar_cnt():
    I(f's_lshl_b32 s{sKVc}, s{sJ}, 10')
    I(f's_add_u32 s{sKVc}, s{sKVc}, {WS_CNT}')
    cnt_add(sKVc, 'L_kvadd')
issB = dict(ISS)
issB.update({7: 9, 8: 9, 9: 10, 10: 10, 11: 11, 12: 16, 13: 18})
hooksB = {('bar', 2): flag_store_hook, ('pre', 6): flag_load_hook, ('post', 13): lambda: stamp('p1end'), ('pre', 9): seg2_switch,
          ('prebar', IMGBAR): B_prebar_img, ('prebar', KVBAR): B_prebar_cnt, ('bar', KVBAR): B_bar_cnt}
xv = spread(wo_ops((1,)), list(range(14, 21)))
xv.update(spread(wo_ops((0,)), list(range(2 * IMGBAR + 2, 27))))
run_gemm(issB, False, setupB, mfB, {1: fB2, 14: fB14, 2 * IMGBAR - 2: fB18}, hooksB, gate_reads, extra_vm=xv, fill_rate=int(OPT.get('fillB', 8)), skip=eval(OPT.get('skipB', '()')))
stamp('p2end')
e.all_vm()
cnt_wait(sKVc, 16, 'L_kvwait')
stamp('kvwait')
I(f's_lshl_b32 s{sT1}, s{sJ}, 13')
I(f's_lshl_b32 s{sT2}, s{sH}, 12')
I(f's_add_u32 s{sT1}, s{sT1}, s{sT2}')
I(f's_add_u32 s{sT1}, s{sT1}, {WS_KV}')
vKVf = vA1
kt = {}
for k in range(4):
    kt[k] = I(f'buffer_load_dwordx4 {v4(vKVf+4*k)}, v{vL16}, {srd(SWS)}, s{sT1} offen offset:{k*1024} sc1')
vPQ = vF
l = []
for T in range(2):
    for ct in range(2): phi(l, baccQ(T, ct), vT[0] if ct == 0 else vT[4])
    pack_T(l, vPQ + 4 * T, baccQ(T, 0), baccQ(T, 1))
for x in l: x()
for T in range(2):
    a = baccG(T)
    I(f'v_mul_f32 v{a}, s{sScale}, v{a}')
    I(f'v_exp_f32 v{a}, -v{a}')
    I(f'v_add_f32 v{a}, 1.0, v{a}')
    I(f'v_rcp_f32 v{a}, v{a}')
I(f'v_lshlrev_b32 v{vMisc}, 2, v{vLane}')
I(f's_or_b32 s{sT0}, s{sJ}, s{sH}')
I(f's_cmp_lg_u32 s{sT0}, 0')
I('s_cbranch_scc1 L_nog')
I(f's_lshl_b32 s{sT0}, s{sI}, 3')
I(f's_add_u32 s{sT0}, s{sT0}, s{sWave}')
I(f's_lshl_b32 s{sT0}, s{sT0}, 6')
I(f's_add_u32 s{sT0}, s{sT0}, {WS_G}')
I('s_mov_b64 exec, 0xffff')
e.Ix(f'buffer_store_dword v{baccG(0)}, v{vMisc}, {srd(SWS)}, s{sT0} offen sc1')
e.Ix(f'buffer_store_dword v{baccG(1)}, v{vMisc}, {srd(SWS)}, s{sT0} offen offset:128 sc1')
I('s_mov_b64 exec, -1')
e.label('L_nog')
stamp('phiq')
o_offsets()
vAf = vF + 8; vZf = vF + 16; vDen = vA1 + 16
vO = vA2; vOp = vA1 + 28
for c in range(2):
    for a in range(2):
        k = c * 2 + a
        e.need_vm(kt[k])
        d = vAf + c * 4 + 2 * a
        I(f'v_cvt_pk_bf16_f32 v{d}, v{vKVf+4*k}, v{vKVf+4*k+1}')
        I(f'v_cvt_pk_bf16_f32 v{d+1}, v{vKVf+4*k+2}, v{vKVf+4*k+3}')
for k in range(4):
    I(f'v_mov_b32_dpp v{vZf+k}, v{vAf+4+k} row_newbcast:12 row_mask:0xf bank_mask:0xf')
for T in range(2):
    pq = v4(vPQ + 4 * T)
    I(mf(vDen + 4 * T, v4(vZf), pq, True))
    for c in range(2): I(mf(Oacc(T, c), v4(vAf + c * 4), pq, True))
for T in range(2):
    dn = vDen + 4 * T
    I(f'v_add_f32 v{dn}, s{sScale+1}, v{dn}')
    I(f'v_rcp_f32 v{dn}, v{dn}')
    o_finish(T, dn)

e.label('L_publish')
e.fence(2)
stamp('ost')
sR2, sN, sCn, sOb, sLh = 64, 65, 66, 68, 69
I(f's_lshr_b32 s{sT0}, s{sI}, 1')
I(f's_lshl_b32 s{sT0}, s{sT0}, 10')
I(f's_and_b32 s{sT1}, s{sI}, 1')
I(f's_lshl_b32 s{sT2}, s{sType}, 1')
I(f's_add_u32 s{sT1}, s{sT1}, s{sT2}')
I(f's_lshl_b32 s{sT1}, s{sT1}, 7')
I(f's_add_u32 s{sTa}, s{sT0}, s{sT1}')
I(f's_add_u32 s{sTa}, s{sTa}, {WS_CNT+128}')
I(f's_and_b32 s{sT0}, s{sR}, 3')
I(f's_and_b32 s{sR2}, s2, 7')
I(f's_lshl_b32 s{sR2}, s{sR2}, 2')
I(f's_add_u32 s{sR2}, s{sR2}, s{sT0}')
I(f's_lshr_b32 s{sN}, s{sR}, 2')
I(f's_lshl_b32 s{sN}, s{sN}, 1')
vP2 = 10; vQ2 = 18; vOut = 22; vGg = 23; vSw = 24; vSr = 25; vCm = 26
gq, rr = vT[1], vT[2]
I(f'v_lshrrev_b32 v{gq}, 4, v{vLane}')
I(f'v_bfe_u32 v{rr}, v{vLane}, 2, 2')
I(f'v_lshl_add_u32 v{vT[3]}, v{gq}, 2, v{rr}')
I(f'v_bfe_u32 v{vT[4]}, v{vT[3]}, 1, 2')
I(f'v_lshlrev_b32 v{vT[3]}, 7, v{vT[3]}')
I(f'v_and_b32 v{vT[5]}, 3, v{vLane}')
I(f'v_lshl_add_u32 v{vT[3]}, v{vT[5]}, 3, v{vT[3]}')
I(f's_mul_i32 s{sLh}, s{sU}, 57344')
I(f'v_add_u32 v{vT[3]}, s{sLh}, v{vT[3]}')
for t in range(4):
    I(f'v_xor_b32 v{vT[5]}, {t}, v{vT[4]}')
    I(f'v_lshl_add_u32 v{vP2+t}, v{vT[5]}, 5, v{vT[3]}')
I(f's_and_b32 s{sT3}, s{sWave}, 3')
I(f'v_and_b32 v{vT[5]}, 15, v{vLane}')
I(f's_lshl_b32 s{sT0}, s{sT3}, 11')
I(f's_add_u32 s{sT0}, s{sT0}, {STG}')
I(f'v_lshrrev_b32 v{vT[6]}, 1, v{gq}')
I(f'v_and_b32 v{vT[7]}, 7, v{vT[5]}')
I(f'v_xor_b32 v{vT[6]}, v{vT[6]}, v{vT[7]}')
I(f'v_lshlrev_b32 v{vT[6]}, 4, v{vT[6]}')
I(f'v_lshl_add_u32 v{vT[6]}, v{vT[5]}, 7, v{vT[6]}')
I(f'v_and_b32 v{vT[7]}, 1, v{gq}')
I(f'v_lshl_add_u32 v{vT[6]}, v{vT[7]}, 3, v{vT[6]}')
I(f'v_add_u32 v{vSw}, s{sT0}, v{vT[6]}')
I(f'v_lshrrev_b32 v{vT[6]}, 3, v{vLane}')
I(f'v_and_b32 v{vT[7]}, 7, v{vLane}')
I(f'v_xor_b32 v{vT[4]}, v{vT[7]}, v{vT[6]}')
I(f'v_lshlrev_b32 v{vT[4]}, 4, v{vT[4]}')
I(f'v_lshl_add_u32 v{vT[4]}, v{vT[6]}, 7, v{vT[4]}')
I(f'v_add_u32 v{vSr}, s{sT0}, v{vT[4]}')
I(f's_lshl_b32 s{sT0}, s{sT3}, 12')
I(f's_add_u32 s{sT0}, s{sT0}, {CMB}')
I(f'v_add_u32 v{vCm}, s{sT0}, v{vL16}')
I(f's_lshl_b32 s{sT0}, s{sR2}, 6')
I(f's_lshl_b32 s{sT1}, s{sH}, 5')
I(f's_add_u32 s{sT0}, s{sT0}, s{sT1}')
I(f's_add_u32 s{sT0}, s{sT0}, s{sP}')
I(f'v_lshl_add_u32 v{vT[6]}, v{vT[6]}, 1, s{sT0}')
I(f'v_mul_u32_u24 v{vT[6]}, 896, v{vT[6]}')
I(f'v_lshl_add_u32 v{vOut}, v{vT[7]}, 4, v{vT[6]}')
I(f's_lshl_b32 s{sT1}, s{sN}, 6')
I(f'v_add_u32 v{vOut}, s{sT1}, v{vOut}')
I(f'v_lshlrev_b32 v{vGg}, 2, v{vT[5]}')
I(f's_lshr_b32 s{sT0}, s{sR2}, 2')
I(f's_lshl_b32 s{sT0}, s{sT0}, 10')
I(f's_bfe_u32 s{sT1}, s{sR2}, 0x10001')
I(f's_lshl_b32 s{sT1}, s{sT1}, 7')
I(f's_add_u32 s{sCn}, s{sT0}, s{sT1}')
I(f's_lshl_b32 s{sT1}, s{sU}, 8')
I(f's_add_u32 s{sCn}, s{sCn}, s{sT1}')
I(f's_add_u32 s{sCn}, s{sCn}, {WS_CNT+128}')
I(f's_lshl_b32 s{sOb}, s{sR2}, 2')
I(f's_add_u32 s{sOb}, s{sOb}, s{sT3}')
I(f's_lshl_b32 s{sT2}, s{sOb}, 6')
I(f's_add_u32 s{sT2}, s{sT2}, {WS_G}')
I(f'v_add_u32 v{vGg}, s{sT2}, v{vGg}')
I(f's_lshl_b32 s{sOb}, s{sOb}, 15')
I(f's_lshl_b32 s{sT1}, s{sU}, 14')
I(f's_add_u32 s{sOb}, s{sOb}, s{sT1}')
vAcc = 112
NPRE = 7
def wfr(pos, t):
    k = pos % NPRE
    return ('a', 64 + (k * 4 + t) * 4) if k < 3 else ('v', 48 + ((k - 3) * 4 + t) * 4)
def p2_addr(pos):
    I(f's_add_u32 s{sT2}, s{sN}, {pos}')
    I(f's_and_b32 s{sT2}, s{sT2}, 15')
    I(f's_mul_i32 s{sT2}, s{sT2}, 3584')
    for t in range(4): I(f'v_add_u32 v{vQ2+t}, s{sT2}, v{vP2 + (t ^ (2 * (pos & 1)))}')
ft = {}
def p2_frags(pos):
    p2_addr(pos)
    for t in range(4):
        c, r = wfr(pos, t)
        I(f'ds_read_b64_tr_b16 {c}[{r}:{r+1}], v{vQ2+t}')
        ft[pos] = I(f'ds_read_b64_tr_b16 {c}[{r+2}:{r+3}], v{vQ2+t} offset:2048')
I(f's_cmp_eq_u32 s{sType}, 0')
I('s_cbranch_scc1 L_pubA')
for pos in range(NPRE): p2_frags(pos)
e.all_vm()
I('s_barrier')
cnt_add(sTa, 'L_oaddB')
stamp('pub')
I(f's_cmp_ge_u32 s{sR}, 28')
I('s_cbranch_scc1 L_fin')
I('s_branch L_p2')
e.label('L_pubA')
e.all_vm()
e.all_lg()
I('s_barrier')
cnt_add(sTa, 'L_oaddA')
stamp('pub')
I(f's_cmp_ge_u32 s{sR}, 28')
I('s_cbranch_scc1 L_fin')
for op in wo_ops(): op()
e.all_vm()
I('s_barrier')
stamp('wo')
for pos in range(NPRE): p2_frags(pos)
e.label('L_p2')
stamp('pre0')
poll(sCn, 8, 'L_wait')
e.vm_done = e.vm_issued
stamp('wait')
otag = {}
for pos in range(16):
    I(f's_add_u32 s{sT1}, s{sN}, {pos}')
    I(f's_and_b32 s{sT1}, s{sT1}, 15')
    I(f's_lshl_b32 s{sT1}, s{sT1}, 10')
    I(f's_add_u32 s{sT1}, s{sT1}, s{sOb}')
    otag[pos] = I(f'buffer_load_dwordx4 {a4(pos*4)}, v{vL16}, {srd(SWS)}, s{sT1} offen sc1')
I(f's_cmp_eq_u32 s{sU}, 0')
I('s_cbranch_scc1 L_nogl')
e.Ix(f'buffer_load_dword v{vGg}, v{vGg}, {srd(SWS)}, 0 offen sc1')
e.label('L_nogl')
for pos in range(16):
    e.need_vm(otag[pos] if pos < 15 else otag[pos])
    e.need_lg(ft[pos])
    if pos in (0, 8): stamp(f'hp{pos}')
    for t in range(4):
        c, r = wfr(pos, t)
        I(mf(vAcc + t * 4, f'{c}[{r}:{r+3}]', a4(pos * 4), pos == 0))
    if pos + NPRE < 16: p2_frags(pos + NPRE)
stamp('half')
I(f's_cmp_lg_u32 s{sU}, 0')
I('s_cbranch_scc1 L_cmbB')
for t in range(4): I(f'ds_write_b128 v{vCm}, {v4(vAcc+4*t)} offset:{t*1024}')
e.all_lg()
I('s_barrier')
I('s_branch L_fin')
e.label('L_cmbB')
e.fence(2)
I('s_barrier')
vAa = 72
for t in range(4): rt_ = I(f'ds_read_b128 {v4(vAa+4*t)}, v{vCm} offset:{t*1024}')
I('s_waitcnt vmcnt(0)')
for t in range(4):
    a, b = vAa + 4 * t, vAcc + 4 * t
    e.need_lg(rt_ - 3 + t)
    for r in range(4): I(f'v_sub_f32 v{a+r}, v{a+r}, v{b+r}')
    for r in range(4): I(f'v_fma_f32 v{a+r}, v{a+r}, v{vGg}, v{b+r}')
    I(f'v_cvt_pk_bf16_f32 v{b}, v{a}, v{a+1}')
    I(f'v_cvt_pk_bf16_f32 v{b+1}, v{a+2}, v{a+3}')
    I(f'v_xor_b32 v{vT[t]}, {32*t}, v{vSw}')
    tw = I(f'ds_write_b64 v{vT[t]}, {v2(b)}')
e.need_lg(tw)
I(f'ds_read_b128 {v4(vF)}, v{vSr}')
tr = I(f'ds_read_b128 {v4(vF+4)}, v{vSr} offset:1024')
I(f's_mov_b32 s{sT0}, 14336')
e.need_lg(tr - 1)
I(f'buffer_store_dwordx4 {v4(vF)}, v{vOut}, {srd(SOUT)}, 0 offen')
e.need_lg(tr)
I(f'buffer_store_dwordx4 {v4(vF+4)}, v{vOut}, {srd(SOUT)}, s{sT0} offen')
e.label('L_fin')
if DEBUG and 'hdbg' in OPT:
    stamp('end')
    I('s_memrealtime s[96:97]')
    I('s_waitcnt vmcnt(0) lgkmcnt(0)')
    wg, wv = OPT['hdbg'].split(':')
    I(f's_cmp_lg_u32 s2, {wg}')
    I('s_cbranch_scc1 L_end')
    I(f's_cmp_lg_u32 s{sWave}, {wv}')
    I('s_cbranch_scc1 L_end')
    I('s_mov_b64 exec, 1')
    I(f's_sub_u32 s96, s96, s{sStamp+1}')
    I(f'v_mov_b32 v2, s96')
    I(f'buffer_store_dword v2, off, {srd(SDBG)}, 0 offset:32')
    for k in range(1, 8):
        I(f's_sub_u32 s96, s{sStamp+2*k}, s{sStamp}')
        I(f'v_mov_b32 v2, s96')
        I(f'buffer_store_dword v2, off, {srd(SDBG)}, 0 offset:{32+4*k}')
elif DEBUG:
    stamp('end')
    I('s_waitcnt vmcnt(0) lgkmcnt(0)')
    I(f's_lshl_b32 s{sT0}, s2, 3')
    I(f's_add_u32 s{sT0}, s{sT0}, s{sWave}')
    I(f's_lshl_b32 s{sT0}, s{sT0}, 7')
    I(f's_add_u32 s{sT0}, s{sT0}, {WS_DBG}')
    I('s_mov_b64 exec, 1')
    for k in range(8):
        I(f'v_mov_b32 v2, s{sStamp+2*k}')
        I(f'buffer_store_dword v2, off, {srd(SWS)}, s{sT0} offset:{4*k}')
    I(f's_getreg_b32 s{sT1}, hwreg(HW_REG_XCC_ID)')
    I(f'v_mov_b32 v2, s{sT1}')
    I(f'buffer_store_dword v2, off, {srd(SWS)}, s{sT0} offset:40')
    I(f'v_mov_b32 v2, s{sType}')
    I(f'buffer_store_dword v2, off, {srd(SWS)}, s{sT0} offset:44')
e.label('L_end')
I('s_endpgm')
e.raw(f""".section .rodata,"a"
.p2align 6
.amdhsa_kernel {KNAME}
  .amdhsa_next_free_vgpr 256
  .amdhsa_next_free_sgpr 102
  .amdhsa_accum_offset {NV}
  .amdhsa_group_segment_fixed_size 0
  .amdhsa_kernarg_size 80
  .amdhsa_user_sgpr_count 2
  .amdhsa_user_sgpr_kernarg_segment_ptr 1
  .amdhsa_system_sgpr_workgroup_id_x 1
.end_amdhsa_kernel""")
open(OUT, 'w').write(e.text())
print('instructions', e.ninstr, 'nop states', e.nnop, file=sys.stderr)
```

```python
import sys, copy, math, struct
sys.path.insert(0, 'work')
from asmlib import Em

KNAME = 'gated_mix__sliding_local_dilated__linear_attn_block__prompt_kernel'
OPT = {a.split('=')[0][2:]: (a.split('=')[1] if '=' in a else True) for a in sys.argv[1:] if a.startswith('--')}
DEBUG = 'dbg' in OPT
OUT = [a for a in sys.argv[1:] if not a.startswith('--')][0]

def f32(x): return struct.unpack('<I', struct.pack('<f', x))[0]

WS_KV = 4 << 20
WS_CNT = WS_KV + 65536
WS_G = WS_KV + 131072
WS_DBG = 6 << 20
WS_SIZE = 8 << 20
LDS_SIZE = 163840
WA = 0; XRA = 86016; HRA = 135168
WB = 0; XRB = 57344; WT = 114688; DUMMY = 150528; GW = 159744
CMB = 131072; STG = 118784
def unitB(u): return WB + (u & 7) * 7168 if u < 14 else WT + ((u - 14) % 5) * 7168
sSpin = 3
SX, SW, SWS, SWOA, SWOB, SOUT, SDBG, SGW = 4, 8, 12, 16, 20, 24, 28, 32
sStamp = 36
SX3 = 52
sType, sI, sJ, sWave, sSel, sP, sU, sH = 56, 57, 58, 59, 60, 61, 62, 63
sWo = 64; sXo = 71
sR, sM0a, sM0c, sXm = 78, 79, 80, 81
sTa, sTb = 82, 83
sSo2, sLo2 = 84, 85
sT0, sT1, sT2, sT3 = 86, 87, 88, 89
sCur = 90
sScale = 98
sSave = 100
SPIN_MAX = 1 << 19

def srd(n): return f's[{n}:{n+3}]'
def v4(n): return f'v[{n}:{n+3}]'
def v2(n): return f'v[{n}:{n+1}]'
def a4(n): return f'a[{n}:{n+3}]'

NV = 136
vLane = 1
vT = [2, 3, 4, 5, 6, 7, 8, 9]
vWs = 10
vHd = 13
vXd = 14
vWo = 16
vLa = 17
vXr = 18
vHr = 20
vBias = 22; vBias0 = 26
vMC01, vMC23, vMP01, vMP23, vPad = 30, 31, 32, 33, 34
vL16 = 35
vFlag = 36
vMisc = 37
vLa2 = 39
vF = 40

e = Em()
I = e.I
cur = 'A'
SEL = OPT['stamps'].split(',') if 'stamps' in OPT else ['kend', 'vend', 'gend', 'pub', 'wait1', 'half1', 'end']
def stamp(name):
    if DEBUG and name in SEL:
        k = 1 + SEL.index(name)
        assert k < 8
        e.Ix(f's_memtime s[{sStamp+2*k}:{sStamp+2*k+1}]')

e.raw(f"""; fused gated-mix kernel: QKV GEMM + local attention / linear attention + out projection
; @launch grid=(256,1,1) block=(512,1,1) lds={LDS_SIZE}
.amdgcn_target "amdgcn-amd-amdhsa--gfx950"
.text
.globl {KNAME}
.p2align 8
.type {KNAME},@function
{KNAME}:""")
I('s_cmp_ge_u32 s2, 0x100')
I('s_cbranch_scc1 L_end')
if DEBUG: I('s_memtime s[98:99]')
if DEBUG: I('s_memrealtime s[96:97]')
I('s_load_dwordx16 s[36:51], s[0:1], 0')
I('s_load_dwordx4 s[92:95], s[0:1], 64')
I(f'v_and_b32 v{vLane}, 63, v0')
I(f'v_lshrrev_b32 v2, 6, v0')
sC = sT3
I(f's_and_b32 s{sC}, s2, 7')
I(f's_lshr_b32 s{sR}, s2, 3')
I(f'v_readfirstlane_b32 s{sWave}, v2')
sRot = sTa
I(f's_and_b32 s{sType}, s{sC}, 1')
I(f's_lshr_b32 s{sT0}, s{sC}, 2')
I(f's_lshl_b32 s{sI}, s{sT0}, 3')
I(f's_and_b32 s{sT1}, s{sR}, 7')
I(f's_add_u32 s{sI}, s{sI}, s{sT1}')
I(f's_bfe_u32 s{sT0}, s{sC}, 0x10001')
I(f's_lshl_b32 s{sJ}, s{sT0}, 2')
I(f's_lshr_b32 s{sT2}, s{sR}, 3')
I(f's_add_u32 s{sJ}, s{sJ}, s{sT2}')
I(f's_lshl_b32 s{sT2}, s{sT2}, 1')
I(f's_add_u32 s{sRot}, s{sT1}, s{sT2}')
I(f's_and_b32 s{sT0}, s{sC}, 3')
I(f's_add_u32 s{sRot}, s{sRot}, s{sT0}')
for _ in range(2):
    I(f's_sub_u32 s{sT0}, s{sRot}, 7')
    I(f's_cmp_ge_u32 s{sRot}, 7')
    I(f's_cselect_b32 s{sRot}, s{sT0}, s{sRot}')
I(f's_and_b32 s{sP}, s{sWave}, 1')
I(f's_bfe_u32 s{sH}, s{sWave}, 0x10001')
I(f's_lshr_b32 s{sU}, s{sWave}, 2')
I(f's_lshl_b32 s{sXo}, s{sRot}, 7')
I(f's_mul_i32 s{sWo}, s{sXo}, 1344')
q, g = vT[0], vT[1]
I(f'v_lshrrev_b32 v{q}, 3, v{vLane}')
I(f'v_lshrrev_b32 v{g}, 4, v{vLane}')
I(f'v_and_b32 v{vT[6]}, 7, v{vLane}')
I(f's_lshl_b32 s{sT0}, s{sI}, 7')
I(f's_lshr_b32 s{sT2}, s{sWave}, 1')
I(f's_lshl_b32 s{sT1}, s{sT2}, 5')
I(f's_add_u32 s{sT1}, s{sT1}, s{sT0}')
I(f's_add_u32 s{sT1}, s{sT1}, s{sP}')
I(f'v_lshl_add_u32 v{vT[2]}, v{q}, 1, s{sT1}')
I(f'v_mul_u32_u24 v{vT[2]}, 896, v{vT[2]}')
I(f'v_xor_b32 v{vT[4]}, v{vT[6]}, v{g}')
I(f'v_lshl_add_u32 v{vXd}, v{vT[4]}, 4, v{vT[2]}')
I(f'v_xor_b32 v{vXd+1}, 64, v{vXd}')
I(f'v_add_u32 v{vXd+1}, 14336, v{vXd+1}')
I(f's_mul_i32 s{sXm}, s{sType}, {(XRB - XRA) & 0xffffffff}')
I(f's_add_u32 s{sXm}, s{sXm}, {XRA}')
I(f's_lshl_b32 s{sT1}, s{sWave}, 11')
I(f's_add_u32 s{sSo2}, s{sXm}, s{sT1}')
sXw = sSo2
I(f'v_mov_b32 v{vT[7]}, 2688')
def woff(dst, s_u0, s_base):
    a, b, c, d = vT[2], vT[3], vT[4], vT[5]
    I(f'v_add_u32 v{a}, s{s_u0}, v{vLane}')
    I(f'v_mul_u32_u24 v{b}, 9363, v{a}')
    I(f'v_lshrrev_b32 v{b}, 16, v{b}')
    I(f'v_mad_i32_i24 v{a}, v{b}, -7, v{a}')
    I(f'v_bfe_u32 v{c}, v{b}, 1, 2')
    I(f'v_and_b32 v{d}, 1, v{b}')
    I(f'v_lshl_or_b32 v{c}, v{d}, 2, v{c}')
    I(f'v_and_or_b32 v{c}, v{b}, 56, v{c}')
    I(f'v_mad_u32_u24 v{c}, v{c}, v{vT[7]}, s{s_base}')
    I(f'v_lshl_add_u32 v{dst}, v{a}, 4, v{c}')
sJb = sLo2
I(f's_mul_i32 s{sJb}, s{sJ}, 112')
I(f's_lshl_b32 s{sT0}, s{sWave}, 6')
I(f's_lshl_b32 s{sM0a}, s{sWave}, 10')
I(f's_lshl_b32 s{sT2}, s{sType}, 31')
I(f's_add_u32 s{sT2}, s{sT2}, 896')
I(f's_add_u32 s{sT2}, s{sT2}, s{sJb}')
I(f's_cmp_eq_u32 s{sWave}, 7')
I(f's_cselect_b32 s{sT0}, 0, s{sT0}')
I(f's_cselect_b32 s{sT1}, s{sT2}, s{sJb}')
I(f's_cselect_b32 s{sT2}, s{sType}, 0')
woff(vWs, sT0, sT1)
I(f's_cmp_eq_u32 s{sT2}, 1')
I(f's_cselect_b32 s{sM0c}, {DUMMY}, s{sM0a}')
I(f's_cselect_b32 s{sSel}, 0, 1')
I(f's_mul_i32 s{sTa}, s{sType}, 896')
I(f's_add_u32 s{sTa}, s{sTa}, s{sWo}')
I(f'v_lshlrev_b32 v{vL16}, 4, v{vLane}')
I('s_waitcnt lgkmcnt(0)')
def mksrd(n, lo, size):
    I(f's_mov_b32 s{n}, s{lo}'); I(f's_mov_b32 s{n+1}, s{lo+1}'); I(f's_mov_b32 s{n+2}, {size}'); I(f's_mov_b32 s{n+3}, 0x20000')
mksrd(SX, 36, 1835008)
def x_op(si, hq):
    I(f's_add_u32 m0, s{sXw}, {(si % 3) * 16384 + hq * 1024}')
    return I(f'buffer_load_dwordx4 v{vXd+hq}, {srd(SX)}, s{sXo+si} offen lds')
x_op(0, 0); x_op(0, 1)
I(f's_cmp_eq_u32 s{sType}, 0')
I(f's_cselect_b32 s{SW}, s38, s44')
I(f's_cselect_b32 s{SW+1}, s39, s45')
I(f's_mov_b32 s{SW+2}, 1204224'); I(f's_mov_b32 s{SW+3}, 0x20000')
I(f's_mov_b32 m0, s{sM0c}')
TAG0 = I(f'buffer_load_dwordx4 v{vWs}, {srd(SW)}, s{sTa} offen lds')

def late_prologue():
    for p in range(1, 7):
        I(f's_add_u32 s{sXo+p}, s{sXo+p-1}, 128')
        I(f's_cmp_eq_u32 s{sXo+p}, 896')
        I(f's_cselect_b32 s{sXo+p}, 0, s{sXo+p}')
        I(f's_mul_i32 s{sWo+p}, s{sXo+p}, 1344')
    mksrd(SWS, 94, WS_SIZE); mksrd(SDBG, 92, 256)
    mksrd(SWOA, 40, 401408); mksrd(SWOB, 46, 401408); mksrd(SOUT, 50, 1835008); mksrd(SGW, 48, 896)
    if DEBUG:
        for k in range(16): I(f's_mov_b32 s{sStamp+k}, s98')
        I(f's_mov_b32 s{sStamp+1}, s96')

def zero_duty():
    I('s_cmp_ge_u32 s2, 8')
    I('s_cbranch_scc1 L_nozero' + cur)
    for k in range(4): I(f'v_mov_b32 v{104+k}, 0')
    I(f'v_lshlrev_b32 v{vT[2]}, 4, v0')
    I(f's_lshl_b32 s{sT0}, s2, 13')
    I(f's_add_u32 s{sT0}, s{sT0}, {WS_KV}')
    e.Ix(f'buffer_store_dwordx4 {v4(104)}, v{vT[2]}, {srd(SWS)}, s{sT0} offen sc1')
    I(f's_cmp_lg_u32 s{sWave}, 0')
    I('s_cbranch_scc1 L_nozero' + cur)
    I(f's_lshl_b32 s{sT0}, s2, 10')
    I(f's_add_u32 s{sT0}, s{sT0}, {WS_CNT}')
    e.Ix(f'buffer_store_dwordx4 {v4(104)}, v{vT[2]}, {srd(SWS)}, s{sT0} offen sc1')
    e.label('L_nozero' + cur)

nlab = [0]
def run_gemm(NS, nf, ops_of, frag, xrd, mfmas, issue_at, tag0, setup, fillers, hooks, extra=None, extra_vm=None, fill_rate=2, skip=()):
    NT = 2 * NS
    tags = {0: tag0}
    for si in range(1, NS):
        if isinstance(issue_at[si], int) and issue_at[si] < 0:
            for o in ops_of(si):
                tg = o()
                if tg is not None: tags[si] = tg
    setup()
    stamp('setup')
    e.need_vm(tags[0])
    I('s_barrier')
    stamp('b0')
    ftag, xtag = {}, {}
    for t in (0,1):
        xtag[t] = xrd(t)
        for f in range(nf): ftag[(t, f)] = frag(t, f)
    fq = []
    for t in range(NT):
        si, ks = t >> 1, t & 1
        more = t + 2 < NT
        if ('pre', t) in hooks: hooks[('pre', t)]()
        if ks == 0 and si + 1 < NS and (si + 1) not in skip:
            b = si + 1
            if ('prebar', b) in hooks: hooks[('prebar', b)]()
            bb = b
            while bb + 1 in skip: bb += 1
            e.need_vm(max(tags[x] for x in range(b, bb + 1)))
            I('s_barrier')
            stamp(f'b{b}')
            if ('bar', b) in hooks: hooks[('bar', b)]()
        vops = []
        for sj in range(1, NS):
            if issue_at[sj] == t:
                vops += [(sj, o) for o in ops_of(sj)]
            elif isinstance(issue_at[sj], tuple) and t in issue_at[sj]:
                ops = ops_of(sj)
                n = len(issue_at[sj]); k = issue_at[sj].index(t)
                lo, hi = len(ops) * k // n, len(ops) * (k + 1) // n
                vops += [(sj, o) for o in ops[lo:hi]]
        if extra_vm and t in extra_vm: vops += [(None, o) for o in extra_vm[t]]
        fq += fillers.get(t, [])
        e.need_lg(xtag.get(t))
        for f in range(nf):
            e.need_lg(ftag[(t, f)])
            for m in mfmas(t, f):
                I(m)
                for _ in range(fill_rate):
                    if fq: fq.pop(0)()
            if more: ftag[(t + 2, f)] = frag(t + 2, f)
            nv = (len(vops) + nf - f - 1) // (nf - f)
            for _ in range(nv):
                sj, o = vops.pop(0); tg = o()
                if sj is not None and tg is not None: tags[sj] = tg
        if more: xtag[t + 2] = xrd(t + 2)
        if extra: extra(t)
        if ('post', t) in hooks:
            while fq: fq.pop(0)()
            hooks[('post', t)]()
    while fq: fq.pop(0)()

def mf(d, a, b, first):
    return f'v_mfma_f32_16x16x32_bf16 {v4(d)}, {a}, {b}, {"0" if first else v4(d)}'

def flag_store_hook():
    I('s_cmp_ge_u32 s2, 8')
    I('s_cbranch_scc1 L_nf' + cur)
    I(f's_cmp_lg_u32 s{sWave}, 0')
    I('s_cbranch_scc1 L_nf' + cur)
    I(f's_lshl_b32 s{sT0}, s2, 2')
    I(f'v_mov_b32 v{vFlag}, 1')
    I(f's_mov_b64 exec, 1')
    e.Ix(f'buffer_store_dword v{vFlag}, off, {srd(SDBG)}, s{sT0} sc1')
    I(f's_mov_b64 exec, -1')
    e.label('L_nf' + cur)

def flag_load_hook():
    I(f'v_lshlrev_b32 v{vMisc}, 2, v{vLane}')
    I(f's_cmp_lg_u32 s{sWave}, 0')
    I('s_cbranch_scc1 L_nl' + cur)
    I(f's_mov_b64 exec, 0xff')
    e.Ix(f'buffer_load_dword v{vFlag}, v{vMisc}, {srd(SDBG)}, 0 offen sc1')
    I(f's_mov_b64 exec, -1')
    e.label('L_nl' + cur)

def flag_check_hook():
    I(f's_cmp_lg_u32 s{sWave}, 0')
    I('s_cbranch_scc1 L_nc' + cur)
    I(f's_mov_b64 exec, 0xff')
    I(f's_mov_b32 s{sSpin}, 0')
    e.label('L_fc' + cur)
    I(f'v_cmp_eq_u32 vcc, 0, v{vFlag}')
    e.nop(4)
    I('s_cbranch_vccz L_fok' + cur)
    I(f's_add_u32 s{sSpin}, s{sSpin}, 1')
    I(f's_cmp_ge_u32 s{sSpin}, {SPIN_MAX}')
    I('s_cbranch_scc1 L_fok' + cur)
    I('s_sleep 2')
    e.Ix(f'buffer_load_dword v{vFlag}, v{vMisc}, {srd(SDBG)}, 0 offen sc1')
    I('s_waitcnt vmcnt(0)')
    I('s_branch L_fc' + cur)
    e.label('L_fok' + cur)
    I(f's_mov_b64 exec, -1')
    e.label('L_nc' + cur)

def lane_addrs():
    a, b, c = vT[2], vT[3], vT[4]
    q, g = vT[0], vT[1]
    I(f'v_and_b32 v{q}, 15, v{vLane}')
    I(f'v_lshrrev_b32 v{g}, 4, v{vLane}')
    I(f'v_bfe_u32 v{a}, v{vLane}, 2, 2')
    I(f'v_lshl_add_u32 v{a}, v{g}, 2, v{a}')
    I(f'v_mul_u32_u24 v{a}, 224, v{a}')
    I(f'v_and_b32 v{b}, 3, v{vLane}')
    I(f'v_lshl_add_u32 v{vLa}, v{b}, 3, v{a}')
    I(f's_mul_i32 s{sT0}, s{sH}, 56')
    I(f'v_add_u32 v{vLa}, s{sT0}, v{vLa}')
    I(f'v_lshrrev_b32 v{a}, 1, v{q}')
    I(f'v_xor_b32 v{a}, v{a}, v{g}')
    I(f'v_lshlrev_b32 v{a}, 4, v{a}')
    I(f'v_lshl_add_u32 v{a}, v{q}, 7, v{a}')
    I(f's_and_b32 s{sT0}, s{sWave}, 5')
    I(f's_lshl_b32 s{sT0}, s{sT0}, 11')
    I(f's_add_u32 s{sT0}, s{sT0}, s{sXm}')
    I(f'v_add_u32 v{vXr}, s{sT0}, v{a}')
    I(f'v_xor_b32 v{vXr+1}, 64, v{vXr}')

def setup2(out):
    a, b, c = vT[2], vT[3], vT[4]
    g = vT[1]
    A = lambda s: out.append(lambda: I(s))
    A(f'v_cmp_gt_u32 vcc, 3, v{g}')
    A(f'v_cndmask_b32 v{vPad}, 0, -1, vcc')
    A(f'v_lshrrev_b32 v{a}, 3, v{vLane}')
    A(f'v_mul_u32_u24 v{a}, 896, v{a}')
    A(f'v_lshlrev_b32 v{b}, 1, v{g}')
    A(f'v_and_b32 v{c}, 7, v{vLane}')
    A(f'v_xor_b32 v{b}, v{b}, v{c}')
    A(f'v_lshl_add_u32 v{vWo}, v{b}, 4, v{a}')
    def w3():
        I(f's_lshr_b32 s{sT1}, s{sR}, 2')
        I(f's_lshl_b32 s{sT1}, s{sT1}, 7')
        I(f's_cmp_ge_u32 s{sR}, 28')
        I(f's_cselect_b32 s{sT1}, 0x80000000, s{sT1}')
        I(f'v_add_u32 v{vWo}, s{sT1}, v{vWo}')
    out.append(w3)

def wo_init():
    I(f's_and_b32 s{sT0}, s{sR}, 3')
    I(f's_lshl_b32 s{sT0}, s{sT0}, 4')
    I(f's_add_u32 s{sT0}, s{sT0}, s{sWave}')
    I(f's_lshl_b32 s{sLo2}, s{sT0}, 10')
    I(f's_mul_i32 s{sSo2}, s{sLo2}, 7')

def wo_ops(halves=(0, 1)):
    ops = []
    for half in halves:
        for qq in range(7):
            def f(half=half):
                I(f's_add_u32 m0, s{sLo2}, {half*57344}')
                tg = I(f'buffer_load_dwordx4 v{vWo}, {srd(SWOA if half == 0 else SWOB)}, s{sSo2} offen lds')
                I(f's_add_u32 s{sLo2}, s{sLo2}, 8192')
                I(f's_cmp_ge_u32 s{sLo2}, 57344')
                I(f's_cselect_b32 s{sTb}, 57344, 0')
                I(f's_sub_u32 s{sLo2}, s{sLo2}, s{sTb}')
                I(f's_mul_i32 s{sSo2}, s{sLo2}, 7')
                return tg
            ops.append(f)
    return ops

def spread(ops, ts):
    n = len(ts)
    return {t: ops[len(ops) * k // n: len(ops) * (k + 1) // n] for k, t in enumerate(ts)}

def xlane(op, m, m2, out):
    out.append(lambda: I(f'v_mov_b32 v{m2}, v{m}'))
    out.append(lambda: I(f'v_permlane16_swap_b32 v{m}, v{m2}'))
    out.append(lambda: I(f'{op} v{m}, v{m}, v{m2}'))
    out.append(lambda: I(f'v_mov_b32 v{m2}, v{m}'))
    out.append(lambda: I(f'v_permlane32_swap_b32 v{m}, v{m2}'))
    out.append(lambda: I(f'{op} v{m}, v{m}, v{m2}'))

def interleave(lists):
    out = []
    for k in range(max(len(l) for l in lists)):
        for l in lists:
            if k < len(l): out.append(l[k])
    return out

sO = [94, 95]
def o_offsets():
    I(f's_lshl_b32 s{sT0}, s{sI}, 3')
    I(f's_and_b32 s{sT1}, s{sWave}, 5')
    I(f's_add_u32 s{sT0}, s{sT0}, s{sT1}')
    I(f's_lshl_b32 s{sT0}, s{sT0}, 5')
    I(f's_lshl_b32 s{sT1}, s{sType}, 4')
    I(f's_add_u32 s{sT0}, s{sT0}, s{sT1}')
    I(f's_lshl_b32 s{sT1}, s{sJ}, 1')
    I(f's_add_u32 s{sT0}, s{sT0}, s{sT1}')
    I(f's_add_u32 s{sT0}, s{sT0}, s{sH}')
    I(f's_lshl_b32 s{sO[0]}, s{sT0}, 10')
    I(f's_add_u32 s{sO[1]}, s{sO[0]}, 65536')

def pack_T(out, dst, acc0, acc1):
    out.append(lambda: I(f'v_cvt_pk_bf16_f32 v{dst}, v{acc0}, v{acc0+1}'))
    out.append(lambda: I(f'v_cvt_pk_bf16_f32 v{dst+1}, v{acc0+2}, v{acc0+3}'))
    out.append(lambda: I(f'v_cvt_pk_bf16_f32 v{dst+2}, v{acc1}, v{acc1+1}'))
    out.append(lambda: I(f'v_cvt_pk_bf16_f32 v{dst+3}, v{acc1+2}, v{acc1+3}'))
    out.append(lambda: I(f'v_and_b32 v{dst+2}, v{vPad}, v{dst+2}'))
    out.append(lambda: I(f'v_and_b32 v{dst+3}, v{vPad}, v{dst+3}'))

def Oacc(T, dt): return vO + (T * 2 + dt) * 4
def o_finish(T, inv):
    d = vOp + 4 * T
    for dt in range(2):
        a = Oacc(T, dt)
        for r in range(4): I(f'v_mul_f32 v{a+r}, v{inv}, v{a+r}')
        I(f'v_cvt_pk_bf16_f32 v{d+2*dt}, v{a}, v{a+1}')
        I(f'v_cvt_pk_bf16_f32 v{d+2*dt+1}, v{a+2}, v{a+3}')
    I(f'v_and_b32 v{d+2}, v{vPad}, v{d+2}')
    I(f'v_and_b32 v{d+3}, v{vPad}, v{d+3}')
    I(f'buffer_store_dwordx4 {v4(d)}, v{vL16}, {srd(SWS)}, s{sO[T]} offen sc1')

def cnt_add(sreg_off, lab):
    I(f's_cmp_lg_u32 s{sWave}, 0')
    I(f's_cbranch_scc1 {lab}')
    I(f'v_mov_b32 v{vFlag}, 1')
    I('s_mov_b64 exec, 1')
    e.Ix(f'buffer_atomic_add v{vFlag}, off, {srd(SWS)}, s{sreg_off}')
    I('s_mov_b64 exec, -1')
    e.label(lab)

def poll(sreg_off, n, lab):
    I('s_mov_b64 exec, 1')
    I(f's_mov_b32 s{sSpin}, 0')
    e.label(lab)
    e.Ix(f'buffer_load_dword v{vFlag}, off, {srd(SWS)}, s{sreg_off} sc1')
    I(f's_add_u32 s{sSpin}, s{sSpin}, 1')
    I('s_waitcnt vmcnt(0)')
    I(f'v_readfirstlane_b32 s{sT3}, v{vFlag}')
    I(f's_cmp_ge_u32 s{sT3}, {n}')
    I(f's_cbranch_scc1 {lab}_k')
    I(f's_cmp_ge_u32 s{sSpin}, {SPIN_MAX}')
    I(f's_cbranch_scc1 {lab}_k')
    I('s_sleep 1')
    I(f's_branch {lab}')
    e.label(lab + '_k')
    I('s_mov_b64 exec, -1')

def cnt_wait(sreg_off, n, lab, wv=1):
    I(f's_cmp_lg_u32 s{sWave}, {wv}')
    I(f's_cbranch_scc1 {lab}_d')
    poll(sreg_off, n, lab)
    e.label(lab + '_d')
    I('s_barrier')


I(f's_cmp_lg_u32 s{sType}, 0')
I('s_cbranch_scc1 L_typeB')
STATE = ('t', 'w', 'cread', 'stread', 'vm_issued', 'vm_done', 'lg_issued', 'lg_done')
snap = copy.deepcopy({k: getattr(e, k) for k in STATE})
ISS = {1: -1, 2: 0}
for si in range(3, 7): ISS[si] = (2 * si - 5, 2 * si - 4)

cur = 'A'
I(f's_add_u32 s{sT0}, s{sWave}, 1')
I(f's_sub_u32 s{sT1}, s{sWave}, 6')
I(f's_add_u32 s{sT2}, s{sJb}, 896')
I(f's_add_u32 s{sT3}, s{sJb}, 1792')
I(f's_cmp_ge_u32 s{sWave}, 6')
I(f's_cselect_b32 s{sT0}, s{sT1}, s{sT0}')
I(f's_cselect_b32 s{sT2}, s{sT3}, s{sT2}')
I(f's_lshl_b32 s{sT0}, s{sT0}, 6')
woff(vWs + 1, sT0, sT2)
I(f's_add_u32 m0, s{sM0a}, 8192')
I(f'buffer_load_dwordx4 v{vWs+1}, {srd(SW)}, s{sWo} offen lds')
I(f's_add_u32 s{sT0}, s{sWave}, 2')
I(f's_min_u32 s{sT0}, s{sT0}, 6')
I(f's_lshl_b32 s{sT0}, s{sT0}, 6')
woff(vWs + 2, sT0, sT3)
I(f's_sub_u32 s{sT1}, s{sWave}, 5')
I(f's_cmp_ge_u32 s{sWave}, 5')
I(f's_cselect_b32 s{sTb}, s{sT1}, 3')
I(f's_cselect_b32 s{sSel}, 0, 1')
I(f's_cselect_b64 s[{sSave}:{sSave+1}], -1, 0')
I(f's_cselect_b32 s{SX3}, s{SX}, s{SW}')
I(f's_cselect_b32 s{SX3+1}, s{SX+1}, s{SW+1}')
I(f's_cselect_b32 s{SX3+2}, s{SX+2}, s{SW+2}')
I(f's_mov_b32 s{SX3+3}, 0x20000')
I(f's_and_b32 s{sT1}, s{sTb}, 2')
I(f's_lshl_b32 s{sT1}, s{sT1}, 5')
I(f's_and_b32 s{sT2}, s{sTb}, 1')
I(f's_add_u32 s{sT1}, s{sT1}, s{sT2}')
I(f's_lshl_b32 s{sT0}, s{sI}, 7')
I(f's_add_u32 s{sT1}, s{sT1}, s{sT0}')
I(f'v_lshl_add_u32 v{vT[2]}, v{vT[0]}, 1, s{sT1}')
I(f'v_mul_u32_u24 v{vT[2]}, 896, v{vT[2]}')
I(f'v_and_b32 v{vT[4]}, 6, v{vT[0]}')
I(f'v_xor_b32 v{vT[4]}, v{vT[6]}, v{vT[4]}')
I(f'v_lshl_add_u32 v{vHd}, v{vT[4]}, 4, v{vT[2]}')
I(f'v_add_u32 v{vHd}, 0xffffc800, v{vHd}')
I(f'v_cndmask_b32 v{vWs+2}, v{vWs+2}, v{vHd}, s[{sSave}:{sSave+1}]')
sHm = sLo2
I(f's_lshl_b32 s{sTb}, s{sTb}, 10')
I(f's_add_u32 s{sHm}, s{sTb}, {HRA}')
I(f's_add_u32 s{sM0c}, s{sM0a}, 16384')
I(f's_cmp_eq_u32 s{sSel}, 0')
I(f's_cselect_b32 s{sM0c}, s{sHm}, s{sM0c}')
def opsA(si, first=False):
    base = WA + (si & 3) * 21504; hr = (si & 3) * 4096
    def fh():
        nlab[0] += 1
        I(f's_cmp_lg_u32 s{sWave}, 4')
        I(f's_cbranch_scc1 L_nh{nlab[0]}')
        I(f's_add_u32 m0, s{sHm}, {hr}')
        e.Ix(f'buffer_load_dwordx4 v{vHd}, {srd(SX)}, s{sXo+si} offen lds')
        e.label(f'L_nh{nlab[0]}')
    def fk(k):
        I(f's_add_u32 m0, s{sM0a}, {base + 8192 * k}')
        return I(f'buffer_load_dwordx4 v{vWs+k}, {srd(SW)}, s{sWo+si} offen lds')
    def f2():
        I(f's_mul_i32 m0, s{sSel}, {(base - hr) & 0xffffffff}')
        I(f's_cmp_lg_u32 s{sSel}, 0')
        I(f's_cselect_b32 s{sTa}, s{sWo+si}, s{sXo+si}')
        I(f's_add_u32 m0, m0, s{sM0c}')
        if hr: I(f's_add_u32 m0, m0, {hr}')
        return I(f'buffer_load_dwordx4 v{vWs+2}, {srd(SX3)}, s{sTa} offen lds')
    if first: return [fh, f2]
    return [fh, lambda: fk(0), lambda: fk(1), f2, lambda: x_op(si, 0), lambda: x_op(si, 1)]
for o in opsA(0, True): tagA0 = o()
late_prologue()
stamp('ld0')
def setupA():
    zero_duty()
    lane_addrs()
    q, g, c, d = vT[0], vT[1], vT[2], vT[3]
    I(f'v_add_u32 v{vLa2}, 43008, v{vLa}')
    I(f'v_and_b32 v{c}, 6, v{q}')
    I(f'v_xor_b32 v{c}, v{c}, v{g}')
    I(f'v_lshlrev_b32 v{c}, 4, v{c}')
    I(f'v_and_b32 v{d}, 7, v{q}')
    I(f'v_lshl_add_u32 v{c}, v{d}, 7, v{c}')
    I(f's_lshl_b32 s{sT0}, s{sU}, 1')
    I(f's_add_u32 s{sT0}, s{sT0}, s{sP}')
    I(f's_lshl_b32 s{sT0}, s{sT0}, 10')
    I(f's_add_u32 s{sT0}, s{sT0}, {HRA}')
    I(f'v_add_u32 v{vHr}, s{sT0}, v{c}')
    I(f'v_xor_b32 v{vHr+1}, 64, v{vHr}')
def setupA2(out):
    q, g, c, d = vT[0], vT[1], vT[2], vT[3]
    A = lambda s: out.append(lambda: I(s))
    A(f'v_mov_b32 v{vT[5]}, 0xff800000')
    A(f's_or_b32 s{sT2}, s{sI}, s{sU}')
    for r in range(4):
        A(f'v_lshl_add_u32 v{c}, v{g}, 2, {r}')
        A(f'v_cmp_le_u32 s[{sCur+2*r}:{sCur+2*r+1}], v{c}, v{q}')
        A(f'v_sub_u32 v{d}, v{q}, v{c}')
        A(f'v_and_b32 v{d}, 15, v{d}')
        A(f'v_cmp_gt_u32 vcc, 8, v{d}')
        A(f'v_cndmask_b32 v{vBias+r}, v{vT[5]}, 0, vcc')
        def blk(r=r):
            I(f's_and_b64 s[{sSave}:{sSave+1}], vcc, s[{sCur+2*r}:{sCur+2*r+1}]')
            I(f's_cmp_eq_u32 s{sT2}, 0')
            I(f's_cselect_b64 s[{sSave}:{sSave+1}], s[{sSave}:{sSave+1}], vcc')
        out.append(blk)
        A(f'v_cndmask_b32 v{vBias0+r}, v{vT[5]}, 0, s[{sSave}:{sSave+1}]')
    for (mc, mp, r) in ((vMC01, vMP01, 0), (vMC23, vMP23, 2)):
        A(f'v_mov_b32 v{c}, 0xffff')
        A(f'v_cndmask_b32 v{mc}, 0, v{c}, s[{sCur+2*r}:{sCur+2*r+1}]')
        A(f'v_mov_b32 v{c}, 0xffff0000')
        A(f'v_cndmask_b32 v{d}, 0, v{c}, s[{sCur+2*r+2}:{sCur+2*r+3}]')
        A(f'v_or_b32 v{mc}, v{mc}, v{d}')
        A(f'v_not_b32 v{mp}, v{mc}')
    A(f's_mov_b32 s{sScale}, 0x{f32(28 ** -0.5 * math.log2(math.e)):08x}')


def afr(t, f): return ((t & 1) * 6 + f) * 4
def axr(t, T): return 48 + ((t & 1) * 3 + T) * 4
def fragA(t, f):
    si, ks = t >> 1, t & 1
    off = (si & 1) * 21504 + (f >> 1) * 7168 + ks * 3584 + (f & 1) * 32
    va = vLa2 if si & 2 else vLa
    r = afr(t, f)
    I(f'ds_read_b64_tr_b16 a[{r}:{r+1}], v{va} offset:{off}')
    return I(f'ds_read_b64_tr_b16 a[{r+2}:{r+3}], v{va} offset:{off+112}')
def xrdA(t):
    si, ks = t >> 1, t & 1
    for T in range(2): I(f'ds_read_b128 {a4(axr(t, T))}, v{vXr+ks} offset:{(si % 3) * 16384 + T * 4096}')
    return I(f'ds_read_b128 {a4(axr(t, 2))}, v{vHr+ks} offset:{(si & 3) * 4096}')
def accQ(T, ct): return 40 + (T * 2 + ct) * 4
def accK(T, ct): return 56 + (T * 2 + ct) * 4
def accV(T, ct): return 80 + (T * 2 + ct) * 4
def mfA(t, f):
    fr = a4(afr(t, f)); ct = f & 1
    if f < 2: return [mf(accQ(T, ct), fr, a4(axr(t, T)), t == 0) for T in range(2)]
    if f < 4: return [mf(accK(T, ct), fr, a4(axr(t, T)), t == 0) for T in range(3)]
    return [mf(accV(T, ct), a4(axr(t, T)), fr, t == 0) for T in range(3)]
fA2 = []
setupA2(fA2); setup2(fA2)
hooksA = {('bar', 2): flag_store_hook, ('pre', 6): flag_load_hook}
run_gemm(7, 6, opsA, fragA, xrdA, mfA, ISS, tagA0, setupA, {1: fA2}, hooksA)
stamp('gend')
def Kp(T): return 104 + 4 * T
def Qp(T): return 116 + 4 * T
def Vp(dt): return 124 + 6 * dt
vS = 40; vPf = 56; vInv = 64; vTm = 68; vO = 80; vOp = 96
def softmax_valu(out, T):
    sc, sp, tm = vS + 8 * T, vS + 8 * T + 4, vTm + 4 * T
    bias = vBias if T == 1 else vBias0
    A = lambda s: out.append(lambda: I(s))
    for r in range(4): A(f'v_cndmask_b32 v{sc+r}, v{sp+r}, v{sc+r}, s[{sCur+2*r}:{sCur+2*r+1}]')
    for r in range(4): A(f'v_fma_f32 v{sc+r}, v{sc+r}, s{sScale}, v{bias+r}')
    m, m2 = tm, tm + 1
    A(f'v_max3_f32 v{m}, v{sc}, v{sc+1}, v{sc+2}')
    A(f'v_max_f32 v{m}, v{m}, v{sc+3}')
    xlane('v_max_f32', m, m2, out)
    for r in range(4): A(f'v_sub_f32 v{sc+r}, v{sc+r}, v{m}')
    for r in range(4): A(f'v_exp_f32 v{sc+r}, v{sc+r}')
    A(f'v_add_f32 v{m}, v{sc}, v{sc+1}')
    A(f'v_add_f32 v{m2}, v{sc+2}, v{sc+3}')
    A(f'v_cvt_pk_bf16_f32 v{tm+2}, v{sc}, v{sc+1}')
    A(f'v_add_f32 v{m}, v{m}, v{m2}')
    A(f'v_cvt_pk_bf16_f32 v{tm+3}, v{sc+2}, v{sc+3}')
    xlane('v_add_f32', m, m2, out)
    pf = vPf + 4 * T
    A(f'v_and_b32 v{pf}, v{vMP01}, v{tm+2}')
    A(f'v_and_b32 v{pf+1}, v{vMP23}, v{tm+3}')
    A(f'v_and_b32 v{pf+2}, v{vMC01}, v{tm+2}')
    A(f'v_and_b32 v{pf+3}, v{vMC23}, v{tm+3}')
    A(f'v_rcp_f32 v{vInv+T}, v{m}')

flag_check_hook()
wo_init()
I('s_barrier')
wl = wo_ops((1,))
l = []
for T in (0, 2, 1): pack_T(l, Kp(T), accK(T, 0), accK(T, 1))
for T in range(2): pack_T(l, Qp(T), accQ(T, 0), accQ(T, 1))
for T in range(2):
    sc, sp = vS + 8 * T, vS + 8 * T + 4
    l.append(lambda sc=sc, T=T: I(mf(sc, v4(Kp(T)), v4(Qp(T)), True)))
    l.append(lambda sp=sp, T=T: I(mf(sp, v4(Kp(0) if T == 1 else Kp(2)), v4(Qp(T)), True)))
for dt in range(2):
    for T in (2, 0, 1):
        a = accV(T, dt); d = Vp(dt) + (0 if T == 2 else 2 + 2 * T)
        l.append(lambda a=a, d=d: I(f'v_cvt_pk_bf16_f32 v{d}, v{a}, v{a+1}'))
        l.append(lambda a=a, d=d: I(f'v_cvt_pk_bf16_f32 v{d+1}, v{a+2}, v{a+3}'))
vl = []
for T in range(2):
    x = []; softmax_valu(x, T); vl.append(x)
l += interleave(vl)
for k, x in enumerate(l):
    x()
    if k % 6 == 0 and wl: wl.pop(0)()
for T in range(2):
    for dt in range(2): I(mf(Oacc(T, dt), v4(Vp(dt) + 2 * T), v4(vPf + 4 * T), True))
while wl: wl.pop(0)()
o_offsets()
for T in range(2): o_finish(T, vInv + T)
I('s_branch L_publish')

for k, v in copy.deepcopy(snap).items(): setattr(e, k, v)
cur = 'B'
e.label('L_typeB')
late_prologue()
stamp('ld0')
vGa = 20; vKm = 21; vOne = 26; vG = [124, 128]
sOne = 90; sKVc = 92; sGt = 93
SECB = [896, 1792, 0]
def opsB(si):
    pos = si % 7
    def fw():
        I(f's_mul_i32 m0, s{sSel}, {unitB(si)}')
        sec = SECB[si // 7]
        if sec: I(f's_add_u32 s{sTa}, s{sWo+pos}, {sec}')
        I(f's_add_u32 m0, m0, s{sM0c}')
        return I(f'buffer_load_dwordx4 v{vWs}, {srd(SW)}, s{sTa if sec else sWo+pos} offen lds')
    if si < 7: return [fw, lambda: x_op(si, 0), lambda: x_op(si, 1)]
    return [fw]
def setupB():
    zero_duty()
    I(f's_cmp_lg_u32 s{sWave}, 0')
    I('s_cbranch_scc1 L_nogw')
    I(f's_mov_b32 exec_hi, 0xffffff')
    I(f's_mov_b32 m0, {GW}')
    e.Ix(f'buffer_load_dwordx4 v{vL16}, {srd(SGW)}, 0 offen lds')
    I(f's_mov_b32 m0, {GW+896}')
    e.Ix(f'buffer_load_dwordx4 v{vL16}, {srd(SGW)}, 0 offen lds')
    I(f's_mov_b64 exec, -1')
    e.label('L_nogw')
    lane_addrs()
fB2 = []
def setupB2(out):
    q, g = vT[0], vT[1]
    A = lambda s: out.append(lambda: I(s))
    A(f'v_cmp_gt_u32 vcc, 12, v{q}')
    A(f'v_cndmask_b32 v{vKm}, 0, -1, vcc')
    A(f'v_cmp_eq_u32 s[{sOne}:{sOne+1}], 12, v{q}')
    A(f'v_mov_b32 v{vOne}, 0x3f803f80')
    A(f'v_lshlrev_b32 v{vGa}, 4, v{g}')
    A(f'v_add_u32 v{vGa}, s{sXo}, v{vGa}')
    A(f'v_add_u32 v{vGa}, {GW}, v{vGa}')
    def gs():
        I(f's_add_u32 s{sGt}, s{sH}, 1')
        I(f's_cmp_eq_u32 s{sWave}, s{sJ}')
        I(f's_cselect_b32 s{sGt}, s{sGt}, 0')
    out.append(gs)
    A(f's_mov_b32 s{sScale}, 0x{f32(math.log2(math.e)):08x}')
    A(f's_mov_b32 s{sScale+1}, 0x{f32(1e-6):08x}')
setupB2(fB2); setup2(fB2)
def xreg(T, t): return (T * 14 + t) * 4
class LB: base = 0
def bfr(t, f): return vF + ((t & 1) * 2 + f) * 4
def fragB(t, f):
    si, ks = t >> 1, t & 1
    off = unitB(si) + ks * 3584 + f * 32
    if off >= WT and LB.base == 0:
        I(f'v_add_u32 v{vLa}, {WT}, v{vLa}')
        LB.base = WT
    o = off - LB.base
    r = bfr(t, f)
    I(f'ds_read_b64_tr_b16 {v2(r)}, v{vLa} offset:{o}')
    return I(f'ds_read_b64_tr_b16 {v2(r+2)}, v{vLa} offset:{o+112}')
def xrdB(t):
    if t >= 14: return None
    si, ks = t >> 1, t & 1
    for T in range(2): tag = I(f'ds_read_b128 {a4(xreg(T, t))}, v{vXr+ks} offset:{(si % 3) * 16384 + T * 4096}')
    return tag
def baccK(T, ct): return 56 + (T * 2 + ct) * 4
def baccV(T, ct): return 72 + (T * 2 + ct) * 4
def baccQ(T, ct): return 88 + (T * 2 + ct) * 4
baccG = 104
def mfB(t, f):
    seg, tt = divmod(t, 14)
    fr = v4(bfr(t, f))
    if seg < 2:
        acc = baccK if seg == 0 else baccV
        return [mf(acc(T, f), a4(xreg(T, tt)), fr, tt == 0) for T in range(2)]
    return [mf(baccQ(T, f), fr, a4(xreg(T, tt)), tt == 0) for T in range(2)]
gmark = {}
def gate_step(t):
    if t < 27: return
    nlab[0] += 1; L = nlab[0]
    I(f's_cmp_eq_u32 s{sGt}, 0')
    I(f's_cbranch_scc1 L_g{L}')
    if t >= 28:
        I(f's_waitcnt lgkmcnt({min(15, e.lg_issued - gmark[t])})')
        I(f's_cmp_eq_u32 s{sGt}, 1')
        I(f's_cbranch_scc1 L_g{L}a')
        I(mf(baccG, v4(vG[t & 1]), a4(xreg(1, t - 28)), t == 28))
        I(f's_branch L_g{L}b')
        e.label(f'L_g{L}a')
        I(mf(baccG, v4(vG[t & 1]), a4(xreg(0, t - 28)), t == 28))
        e.label(f'L_g{L}b')
    if t < 41:
        e.Ix(f'ds_read_b128 {v4(vG[(t + 1) & 1])}, v{vGa} offset:{(t + 1 - 28) * 64}')
        gmark[t + 1] = e.lg_issued
    e.label(f'L_g{L}')
def phi(out, a, tmp):
    A = lambda s: out.append(lambda: I(s))
    for r in range(4): A(f'v_mul_f32 v{tmp+r}, s{sScale}, v{a+r}')
    for r in range(4): A(f'v_exp_f32 v{tmp+r}, -|v{tmp+r}|')
    for r in range(4): A(f'v_add_f32 v{a+r}, 1.0, v{a+r}')
    for r in range(4): A(f'v_max_f32 v{a+r}, v{a+r}, v{tmp+r}')
    for r in range(4): A(f'v_add_f32 v{a+r}, s{sScale+1}, v{a+r}')
vPK = 108; vVV = 116; vKV = 56; vRd = 72
bt = {}
fB14, fB28, fB30 = [], [], []
def mkB():
    A = lambda s: fB14.append(lambda: I(s))
    for ct in range(2):
        for T in range(2): phi(fB14, baccK(T, ct), vT[0] if T == 0 else vT[4])
        for T in range(2):
            a = baccK(T, ct); d = vPK + 4 * ct + 2 * T
            A(f'v_cvt_pk_bf16_f32 v{d}, v{a}, v{a+1}')
            A(f'v_cvt_pk_bf16_f32 v{d+1}, v{a+2}, v{a+3}')
    for k in range(4): A(f'v_and_b32 v{vPK+4+k}, v{vKm}, v{vPK+4+k}')
    A(f's_lshl_b32 s{sT0}, s{sU}, 1')
    A(f's_add_u32 s{sT0}, s{sT0}, s{sP}')
    A(f's_lshl_b32 s{sT0}, s{sT0}, 13')
    A(f's_lshl_b32 s{sT1}, s{sH}, 12')
    A(f's_add_u32 s{sT0}, s{sT0}, s{sT1}')
    A(f'v_add_u32 v{vMisc+1}, s{sT0}, v{vL16}')
    A(f's_lshl_b32 s{sT0}, s{sWave}, 10')
    A(f'v_lshlrev_b32 v{vMisc+2}, 2, v{vLane}')
    A(f'v_add_u32 v{vMisc+2}, s{sT0}, v{vMisc+2}')
    A(f's_lshl_b32 s{sT1}, s{sJ}, 13')
    A(f's_add_u32 s{sT1}, s{sT1}, {WS_KV}')
    A(f's_lshl_b32 s{sKVc}, s{sJ}, 10')
    A(f's_add_u32 s{sKVc}, s{sKVc}, {WS_CNT}')
    A = lambda s: fB28.append(lambda: I(s))
    for c in (1, 0):
        for T in range(2):
            a = baccV(T, c); d = vVV + 4 * c + 2 * T
            A(f'v_cvt_pk_bf16_f32 v{d}, v{a}, v{a+1}')
            A(f'v_cvt_pk_bf16_f32 v{d+1}, v{a+2}, v{a+3}')
        if c:
            for k in range(4): A(f'v_cndmask_b32 v{vVV+4+k}, v{vVV+4+k}, v{vOne}, s[{sOne}:{sOne+1}]')
    for c in range(2):
        for a in range(2): A(mf(vKV + 4 * (c * 2 + a), v4(vPK + 4 * a), v4(vVV + 4 * c), True))
    for k in range(4):
        def w(k=k): bt['tw'] = I(f'ds_write_b128 v{vMisc+1}, {v4(vKV+4*k)} offset:{k*1024}')
        fB28.append(w)
    rt = {}
    for m in range(4):
        for src in range(4):
            def rd(m=m, src=src): rt[(m, src)] = I(f'ds_read_b32 v{vRd + m * 4 + src}, v{vMisc+2} offset:{src*8192 + m*256}')
            fB30.append(rd)
    for m in range(4): fB30.append(lambda m=m: red(m, rt))
    fB30.append(lambda: stamp('kvend'))
def red(m, rt):
    b = vRd + m * 4
    e.need_lg(rt[(m, 3)])
    I(f'v_add_f32 v{b}, v{b}, v{b+1}')
    I(f'v_add_f32 v{b+2}, v{b+2}, v{b+3}')
    I(f'v_add_f32 v{b}, v{b}, v{b+2}')
    bt['at'] = I(f'buffer_atomic_add_f32 v{b}, v{vMisc+2}, {srd(SWS)}, s{sT1} offen offset:{m*256}')
mkB()
def B_img():
    stamp('vend')
    for x in fB28: x()
    flag_check_hook()
    e.need_lg(bt['tw'])
    I('s_barrier')
    for x in fB30: x()
def B_sig0(): e.need_vm(bt['at'])
def B_sig1(): cnt_add(sKVc, 'L_kvadd')
SIGB = int(OPT.get('sigb', 17))
issB = dict(ISS)
issB.update({7: 9, 8: 9, 9: 10, 10: 10, 11: 11, 12: 12, 13: 13})
issB.update({14: 14, 15: 15, 16: 16, 17: 17, 18: 18, 19: 32, 20: 32})
hooksB = {('bar', 2): flag_store_hook, ('pre', 6): flag_load_hook, ('post', 13): lambda: stamp('kend'), ('pre', 14): wo_init,
          ('post', 27): B_img, ('prebar', SIGB): B_sig0, ('bar', SIGB): B_sig1}
xv = spread(wo_ops((1,)), list(range(19, 26)))
xv.update(spread(wo_ops((0,)), list(range(33, 40))))
run_gemm(21, 2, opsB, fragB, xrdB, mfB, issB, TAG0, setupB, {1: fB2, 14: fB14}, hooksB, gate_step, extra_vm=xv,
         fill_rate=int(OPT.get('fillB', 3)), skip=eval(OPT.get('skipB', '(9,11,12,13,15,16,18,20)')))
stamp('gend')
vPQ = 40
def phiQ(T):
    l = []
    for ct in range(2): phi(l, baccQ(T, ct), vT[0] if ct == 0 else vT[4])
    pack_T(l, vPQ + 4 * T, baccQ(T, 0), baccQ(T, 1))
    for x in l: x()
phiQ(0)
e.all_vm()
cnt_wait(sKVc, 16, 'L_kvwait')
stamp('kvwait')
I(f's_lshl_b32 s{sT1}, s{sJ}, 13')
I(f's_lshl_b32 s{sT2}, s{sH}, 12')
I(f's_add_u32 s{sT1}, s{sT1}, s{sT2}')
I(f's_add_u32 s{sT1}, s{sT1}, {WS_KV}')
vKVf = 56
kt = {}
for k in range(4):
    kt[k] = I(f'buffer_load_dwordx4 {v4(vKVf+4*k)}, v{vL16}, {srd(SWS)}, s{sT1} offen offset:{k*1024} sc1')
phiQ(1)
I(f'v_lshlrev_b32 v{vMisc}, 2, v{vLane}')
I(f's_cmp_eq_u32 s{sGt}, 0')
I('s_cbranch_scc1 L_nog')
a = baccG
I(f'v_mul_f32 v{a}, s{sScale}, v{a}')
I(f'v_exp_f32 v{a}, -v{a}')
I(f's_lshl_b32 s{sT0}, s{sI}, 3')
I(f'v_add_f32 v{a}, 1.0, v{a}')
I(f's_add_u32 s{sT0}, s{sT0}, s{sJ}')
I(f'v_rcp_f32 v{a}, v{a}')
I(f's_lshl_b32 s{sT0}, s{sT0}, 6')
I(f's_add_u32 s{sT0}, s{sT0}, {WS_G}')
I('s_mov_b64 exec, 0xffff')
e.Ix(f'buffer_store_dword v{a}, v{vMisc}, {srd(SWS)}, s{sT0} offen sc1')
I('s_mov_b64 exec, -1')
e.label('L_nog')
stamp('phiq')
o_offsets()
vAf = 48; vZf = 108; vDen = 112; vO = 72; vOp = 120
for c in range(2):
    for a in range(2):
        k = c * 2 + a
        e.need_vm(kt[k])
        d = vAf + c * 4 + 2 * a
        I(f'v_cvt_pk_bf16_f32 v{d}, v{vKVf+4*k}, v{vKVf+4*k+1}')
        I(f'v_cvt_pk_bf16_f32 v{d+1}, v{vKVf+4*k+2}, v{vKVf+4*k+3}')
for k in range(4):
    I(f'v_mov_b32_dpp v{vZf+k}, v{vAf+4+k} row_newbcast:12 row_mask:0xf bank_mask:0xf')
for T in range(2):
    pq = v4(vPQ + 4 * T)
    I(mf(vDen + 4 * T, v4(vZf), pq, True))
    for c in range(2): I(mf(Oacc(T, c), v4(vAf + c * 4), pq, True))
for T in range(2):
    dn = vDen + 4 * T
    I(f'v_add_f32 v{dn}, s{sScale+1}, v{dn}')
    I(f'v_rcp_f32 v{dn}, v{dn}')
    o_finish(T, dn)

e.label('L_publish')
e.fence(2)
stamp('ost')
sR2, sN, sCn, sOb, sLh = 64, 65, 66, 68, 69
I(f's_lshr_b32 s{sT0}, s{sI}, 1')
I(f's_lshl_b32 s{sT0}, s{sT0}, 10')
I(f's_and_b32 s{sT1}, s{sI}, 1')
I(f's_lshl_b32 s{sT2}, s{sType}, 1')
I(f's_add_u32 s{sT1}, s{sT1}, s{sT2}')
I(f's_lshl_b32 s{sT1}, s{sT1}, 7')
I(f's_add_u32 s{sTa}, s{sT0}, s{sT1}')
I(f's_add_u32 s{sTa}, s{sTa}, {WS_CNT+128}')
I(f's_and_b32 s{sT0}, s{sR}, 3')
I(f's_and_b32 s{sR2}, s2, 7')
I(f's_lshl_b32 s{sR2}, s{sR2}, 2')
I(f's_add_u32 s{sR2}, s{sR2}, s{sT0}')
I(f's_lshr_b32 s{sN}, s{sR}, 2')
I(f's_lshl_b32 s{sN}, s{sN}, 1')
vP2 = 10; vQ2 = 18; vOut = 22; vGg = 23; vSw = 24; vSr = 25; vCm = 26
gq, rr = vT[1], vT[2]
I(f'v_lshrrev_b32 v{gq}, 4, v{vLane}')
I(f'v_bfe_u32 v{rr}, v{vLane}, 2, 2')
I(f'v_lshl_add_u32 v{vT[3]}, v{gq}, 2, v{rr}')
I(f'v_bfe_u32 v{vT[4]}, v{vT[3]}, 1, 2')
I(f'v_lshlrev_b32 v{vT[3]}, 7, v{vT[3]}')
I(f'v_and_b32 v{vT[5]}, 3, v{vLane}')
I(f'v_lshl_add_u32 v{vT[3]}, v{vT[5]}, 3, v{vT[3]}')
for t in range(4):
    I(f'v_xor_b32 v{vT[5]}, {t}, v{vT[4]}')
    I(f'v_lshl_add_u32 v{vP2+t}, v{vT[5]}, 5, v{vT[3]}')
I(f's_and_b32 s{sT3}, s{sWave}, 3')
I(f'v_and_b32 v{vT[5]}, 15, v{vLane}')
I(f's_lshl_b32 s{sT0}, s{sT3}, 11')
I(f's_add_u32 s{sT0}, s{sT0}, {STG}')
I(f'v_lshrrev_b32 v{vT[6]}, 1, v{gq}')
I(f'v_and_b32 v{vT[7]}, 7, v{vT[5]}')
I(f'v_xor_b32 v{vT[6]}, v{vT[6]}, v{vT[7]}')
I(f'v_lshlrev_b32 v{vT[6]}, 4, v{vT[6]}')
I(f'v_lshl_add_u32 v{vT[6]}, v{vT[5]}, 7, v{vT[6]}')
I(f'v_and_b32 v{vT[7]}, 1, v{gq}')
I(f'v_lshl_add_u32 v{vT[6]}, v{vT[7]}, 3, v{vT[6]}')
I(f'v_add_u32 v{vSw}, s{sT0}, v{vT[6]}')
I(f'v_lshrrev_b32 v{vT[6]}, 3, v{vLane}')
I(f'v_and_b32 v{vT[7]}, 7, v{vLane}')
I(f'v_xor_b32 v{vT[4]}, v{vT[7]}, v{vT[6]}')
I(f'v_lshlrev_b32 v{vT[4]}, 4, v{vT[4]}')
I(f'v_lshl_add_u32 v{vT[4]}, v{vT[6]}, 7, v{vT[4]}')
I(f'v_add_u32 v{vSr}, s{sT0}, v{vT[4]}')
I(f's_lshl_b32 s{sT0}, s{sT3}, 12')
I(f's_add_u32 s{sT0}, s{sT0}, {CMB}')
I(f'v_add_u32 v{vCm}, s{sT0}, v{vL16}')
I(f's_lshl_b32 s{sT0}, s{sR2}, 6')
I(f's_lshl_b32 s{sT1}, s{sH}, 5')
I(f's_add_u32 s{sT0}, s{sT0}, s{sT1}')
I(f's_add_u32 s{sT0}, s{sT0}, s{sP}')
I(f'v_lshl_add_u32 v{vT[6]}, v{vT[6]}, 1, s{sT0}')
I(f'v_mul_u32_u24 v{vT[6]}, 896, v{vT[6]}')
I(f'v_lshl_add_u32 v{vOut}, v{vT[7]}, 4, v{vT[6]}')
I(f's_lshl_b32 s{sT1}, s{sN}, 6')
I(f'v_add_u32 v{vOut}, s{sT1}, v{vOut}')
I(f'v_lshlrev_b32 v{vGg}, 2, v{vT[5]}')
I(f's_lshr_b32 s{sT0}, s{sR2}, 2')
I(f's_lshl_b32 s{sT0}, s{sT0}, 10')
I(f's_bfe_u32 s{sT1}, s{sR2}, 0x10001')
I(f's_lshl_b32 s{sT1}, s{sT1}, 7')
I(f's_add_u32 s{sCn}, s{sT0}, s{sT1}')
I(f's_add_u32 s{sCn}, s{sCn}, {WS_CNT+128}')
I(f's_lshl_b32 s{sOb}, s{sR2}, 2')
I(f's_add_u32 s{sOb}, s{sOb}, s{sT3}')
I(f's_lshl_b32 s{sT2}, s{sOb}, 6')
I(f's_add_u32 s{sT2}, s{sT2}, {WS_G}')
I(f'v_add_u32 v{vGg}, s{sT2}, v{vGg}')
I(f's_lshl_b32 s{sOb}, s{sOb}, 15')
I(f's_lshl_b32 s{sT1}, s{sU}, 3')
I(f's_add_u32 s{sN}, s{sN}, s{sT1}')
I(f's_add_u32 s{sLh}, s{sCn}, 256')
vAcc = 104
def wfr(pos, t):
    return ('a', 32 + (pos * 4 + t) * 4) if pos < 5 else ('v', 56 + ((pos - 5) * 4 + t) * 4)
def p2_addr(half, pos):
    I(f's_add_u32 s{sT2}, s{sN}, {pos}')
    I(f's_and_b32 s{sT2}, s{sT2}, 15')
    I(f's_mul_i32 s{sT2}, s{sT2}, 3584')
    if half: I(f's_add_u32 s{sT2}, s{sT2}, 57344')
    for t in range(4): I(f'v_add_u32 v{vQ2+t}, s{sT2}, v{vP2 + (t ^ (2 * (pos & 1)))}')
def p2_frags(half, pos):
    p2_addr(half, pos)
    for t in range(4):
        c, r = wfr(pos, t)
        I(f'ds_read_b64_tr_b16 {c}[{r}:{r+1}], v{vQ2+t}')
        I(f'ds_read_b64_tr_b16 {c}[{r+2}:{r+3}], v{vQ2+t} offset:2048')
I(f's_cmp_eq_u32 s{sType}, 0')
I('s_cbranch_scc1 L_pubA')
for pos in range(8): p2_frags(0, pos)
e.all_vm()
I('s_barrier')
cnt_add(sTa, 'L_oaddB')
stamp('pub')
I(f's_cmp_ge_u32 s{sR}, 28')
I('s_cbranch_scc1 L_fin')
I('s_branch L_p2')
e.label('L_pubA')
e.all_vm()
e.all_lg()
I('s_barrier')
cnt_add(sTa, 'L_oaddA')
stamp('pub')
I(f's_cmp_ge_u32 s{sR}, 28')
I('s_cbranch_scc1 L_fin')
for op in wo_ops((0,)): op()
e.all_vm()
I('s_barrier')
stamp('wo')
for pos in range(8): p2_frags(0, pos)
e.label('L_p2')
stamp('pre0')
for half in range(2):
    cnt_wait(sCn if half == 0 else sLh, 8, f'L_wait{half}', 1 + half)
    stamp(f'wait{half}')
    otag = {}
    for pos in range(8):
        I(f's_add_u32 s{sT1}, s{sN}, {pos}')
        I(f's_and_b32 s{sT1}, s{sT1}, 15')
        I(f's_lshl_b32 s{sT1}, s{sT1}, 10')
        I(f's_add_u32 s{sT1}, s{sT1}, s{sOb}')
        otag[pos] = I(f'buffer_load_dwordx4 {a4(pos*4)}, v{vL16}, {srd(SWS)}, s{sT1} offen{" offset:0" if half == 0 else ""} sc1')
    if half == 0: I(f's_add_u32 s{sOb}, s{sOb}, 16384')
    else: gtag = I(f'buffer_load_dword v{vGg}, v{vGg}, {srd(SWS)}, 0 offen sc1')
    e.all_lg()
    for pos in range(8):
        e.need_vm(otag[pos])
        if pos == 0: stamp(f'h{half}p0')
        for t in range(4):
            c, r = wfr(pos, t)
            I(mf(vAcc + (half * 4 + t) * 4, f'{c}[{r}:{r+3}]', a4(pos * 4), pos == 0))
        if half == 0: p2_frags(1, pos)
    stamp(f'half{half}')
I(f's_lshl_b32 s{sT0}, s{sU}, 14')
I(f'v_add_u32 v{vT[4]}, s{sT0}, v{vCm}')
I(f'v_xor_b32 v{vT[5]}, 16384, v{vT[4]}')
vRx = 72
I(f's_cmp_lg_u32 s{sU}, 0')
I('s_cbranch_scc1 L_x1')
def xch(keep, give, lab):
    for k, t in enumerate(give):
        I(f'ds_write_b128 v{vT[4]}, {v4(vAcc+4*t)} offset:{k*2048}')
        I(f'ds_write_b128 v{vT[4]}, {v4(vAcc+16+4*t)} offset:{k*2048+1024}')
    e.all_lg()
    I('s_barrier')
    for k in range(4): rt_ = I(f'ds_read_b128 {v4(vRx+4*k)}, v{vT[5]} offset:{k*1024}')
    e.need_vm(gtag)
    for k, t in enumerate(keep):
        a, b = vAcc + 4 * t, vAcc + 16 + 4 * t
        e.need_lg(rt_ - 2 + 2 * k)
        for r in range(4): I(f'v_add_f32 v{a+r}, v{a+r}, v{vRx+8*k+r}')
        for r in range(4): I(f'v_add_f32 v{b+r}, v{b+r}, v{vRx+8*k+4+r}')
        for r in range(4): I(f'v_sub_f32 v{a+r}, v{a+r}, v{b+r}')
        for r in range(4): I(f'v_fma_f32 v{a+r}, v{a+r}, v{vGg}, v{b+r}')
        I(f'v_cvt_pk_bf16_f32 v{b}, v{a}, v{a+1}')
        I(f'v_cvt_pk_bf16_f32 v{b+1}, v{a+2}, v{a+3}')
        I(f'v_xor_b32 v{vT[k]}, {32*t}, v{vSw}')
        I(f'ds_write_b64 v{vT[k]}, {v2(b)}')
st_ = copy.deepcopy({k: getattr(e, k) for k in STATE})
xch((0, 1), (2, 3), 'a')
I('s_branch L_x2')
for k, v in copy.deepcopy(st_).items(): setattr(e, k, v)
e.label('L_x1')
xch((2, 3), (0, 1), 'b')
e.label('L_x2')
e.all_lg()
I('s_barrier')
I(f's_lshl_b32 s{sT0}, s{sU}, 10')
I(f'v_add_u32 v{vSr}, s{sT0}, v{vSr}')
tr = I(f'ds_read_b128 {v4(vF)}, v{vSr}')
I(f's_mul_i32 s{sT0}, s{sU}, 14336')
e.need_lg(tr)
I(f'buffer_store_dwordx4 {v4(vF)}, v{vOut}, {srd(SOUT)}, s{sT0} offen')
e.label('L_fin')
if DEBUG and 'hdbg' in OPT:
    stamp('end')
    I('s_memrealtime s[96:97]')
    I('s_waitcnt vmcnt(0) lgkmcnt(0)')
    wg, wv = OPT['hdbg'].split(':')
    I(f's_cmp_lg_u32 s2, {wg}')
    I('s_cbranch_scc1 L_end')
    I(f's_cmp_lg_u32 s{sWave}, {wv}')
    I('s_cbranch_scc1 L_end')
    I('s_mov_b64 exec, 1')
    I(f's_sub_u32 s96, s96, s{sStamp+1}')
    I(f'v_mov_b32 v2, s96')
    I(f'buffer_store_dword v2, off, {srd(SDBG)}, 0 offset:32')
    for k in range(1, 8):
        I(f's_sub_u32 s96, s{sStamp+2*k}, s{sStamp}')
        I(f'v_mov_b32 v2, s96')
        I(f'buffer_store_dword v2, off, {srd(SDBG)}, 0 offset:{32+4*k}')
elif DEBUG:
    stamp('end')
    I('s_waitcnt vmcnt(0) lgkmcnt(0)')
    I(f's_lshl_b32 s{sT0}, s2, 3')
    I(f's_add_u32 s{sT0}, s{sT0}, s{sWave}')
    I(f's_lshl_b32 s{sT0}, s{sT0}, 7')
    I(f's_add_u32 s{sT0}, s{sT0}, {WS_DBG}')
    I('s_mov_b64 exec, 1')
    for k in range(8):
        I(f'v_mov_b32 v2, s{sStamp+2*k}')
        I(f'buffer_store_dword v2, off, {srd(SWS)}, s{sT0} offset:{4*k}')
    I(f's_getreg_b32 s{sT1}, hwreg(HW_REG_XCC_ID)')
    I(f'v_mov_b32 v2, s{sT1}')
    I(f'buffer_store_dword v2, off, {srd(SWS)}, s{sT0} offset:40')
    I(f'v_mov_b32 v2, s{sType}')
    I(f'buffer_store_dword v2, off, {srd(SWS)}, s{sT0} offset:44')
    I(f'v_mov_b32 v2, s{sStamp+1}')
    I(f'buffer_store_dword v2, off, {srd(SWS)}, s{sT0} offset:48')
    I('s_memrealtime s[96:97]')
    I('s_waitcnt lgkmcnt(0)')
    I(f'v_mov_b32 v2, s96')
    I(f'buffer_store_dword v2, off, {srd(SWS)}, s{sT0} offset:52')
e.label('L_end')
I('s_endpgm')
e.raw(f""".section .rodata,"a"
.p2align 6
.amdhsa_kernel {KNAME}
  .amdhsa_next_free_vgpr 256
  .amdhsa_next_free_sgpr 102
  .amdhsa_accum_offset {NV}
  .amdhsa_group_segment_fixed_size 0
  .amdhsa_kernarg_size 80
  .amdhsa_user_sgpr_count 2
  .amdhsa_user_sgpr_kernarg_segment_ptr 1
  .amdhsa_system_sgpr_workgroup_id_x 1
.end_amdhsa_kernel""")
open(OUT, 'w').write(e.text())
print('instructions', e.ninstr, 'nop states', e.nnop, file=sys.stderr)
```

```python
import sys, copy, math, struct
sys.path.insert(0, 'work')
from asmlib import Em

KNAME = 'gated_mix__sliding_local_dilated__linear_attn_block__prompt_kernel'
OPT = {a.split('=')[0][2:]: (a.split('=')[1] if '=' in a else True) for a in sys.argv[1:] if a.startswith('--')}
DEBUG = 'dbg' in OPT
OUT = [a for a in sys.argv[1:] if not a.startswith('--')][0]

def f32(x): return struct.unpack('<I', struct.pack('<f', x))[0]

WS_KV = 4 << 20
WS_CNT = WS_KV + 65536
WS_G = WS_KV + 131072
WS_DBG = 6 << 20
WS_SIZE = 8 << 20
LDS_SIZE = 163840
WA = 0; XRA = 86016; HRA = 135168
WB = 0; XRB = 57344; WT = 114688; DUMMY = 150528; GW = 159744
CMB = 131072; STG = 118784
def unitB(u): return WB + (u & 7) * 7168 if u < 14 else WT + ((u - 14) % 5) * 7168
sSpin = 3
SX, SW, SWS, SWOA, SWOB, SOUT, SDBG, SGW = 4, 8, 12, 16, 20, 24, 28, 32
sStamp = 36
SX3 = 52
sType, sI, sJ, sWave, sSel, sP, sU, sH = 56, 57, 58, 59, 60, 61, 62, 63
sWo = 64; sXo = 71
sR, sM0a, sM0c, sXm = 78, 79, 80, 81
sTa, sTb = 82, 83
sSo2, sLo2 = 84, 85
sT0, sT1, sT2, sT3 = 86, 87, 88, 89
sCur = 90
sScale = 98
sSave = 100
SPIN_MAX = 1 << 19

def srd(n): return f's[{n}:{n+3}]'
def v4(n): return f'v[{n}:{n+3}]'
def v2(n): return f'v[{n}:{n+1}]'
def a4(n): return f'a[{n}:{n+3}]'

NV = 136
vLane = 1
vT = [2, 3, 4, 5, 6, 7, 8, 9]
vWs = 10
vHd = 13
vXd = 14
vWo = 16
vLa = 17
vXr = 18
vHr = 20
vBias = 22; vBias0 = 26
vMC01, vMC23, vMP01, vMP23, vPad = 30, 31, 32, 33, 34
vL16 = 35
vFlag = 36
vMisc = 37
vLa2 = 39
vF = 40

e = Em()
I = e.I
cur = 'A'
SEL = OPT['stamps'].split(',') if 'stamps' in OPT else ['kend', 'vend', 'gend', 'pub', 'wait1', 'half1', 'end']
def stamp(name):
    if DEBUG and name in SEL:
        k = 1 + SEL.index(name)
        assert k < 8
        e.Ix(f's_memtime s[{sStamp+2*k}:{sStamp+2*k+1}]')

e.raw(f"""; fused gated-mix kernel: QKV GEMM + local attention / linear attention + out projection
; @launch grid=(256,1,1) block=(512,1,1) lds={LDS_SIZE}
.amdgcn_target "amdgcn-amd-amdhsa--gfx950"
.text
.globl {KNAME}
.p2align 8
.type {KNAME},@function
{KNAME}:""")
I('s_cmp_ge_u32 s2, 0x100')
I('s_cbranch_scc1 L_end')
if DEBUG: I('s_memtime s[98:99]')
if DEBUG: I('s_memrealtime s[96:97]')
I('s_load_dwordx16 s[36:51], s[0:1], 0')
I('s_load_dwordx4 s[92:95], s[0:1], 64')
if 'nocodepf' not in OPT:
    I('s_getpc_b64 s[90:91]')
    e.label('L_pc')
    I('v_lshlrev_b32 v3, 7, v0')
    I('v_min_u32 v3, L_end-L_pc, v3')
    e.Ix('global_load_dword v135, v3, s[90:91]')
I(f'v_and_b32 v{vLane}, 63, v0')
I(f'v_lshrrev_b32 v2, 6, v0')
sC = sT3
I(f's_and_b32 s{sC}, s2, 7')
I(f's_lshr_b32 s{sR}, s2, 3')
I(f'v_readfirstlane_b32 s{sWave}, v2')
sRot = sTa
I(f's_and_b32 s{sType}, s{sC}, 1')
I(f's_lshr_b32 s{sT0}, s{sC}, 2')
I(f's_lshl_b32 s{sI}, s{sT0}, 3')
I(f's_and_b32 s{sT1}, s{sR}, 7')
I(f's_add_u32 s{sI}, s{sI}, s{sT1}')
I(f's_bfe_u32 s{sT0}, s{sC}, 0x10001')
I(f's_lshl_b32 s{sJ}, s{sT0}, 2')
I(f's_lshr_b32 s{sT2}, s{sR}, 3')
I(f's_add_u32 s{sJ}, s{sJ}, s{sT2}')
I(f's_lshl_b32 s{sT2}, s{sT2}, 1')
I(f's_add_u32 s{sRot}, s{sT1}, s{sT2}')
I(f's_and_b32 s{sT0}, s{sC}, 3')
I(f's_add_u32 s{sRot}, s{sRot}, s{sT0}')
if OPT.get('rot') == 'none': I(f's_mov_b32 s{sRot}, 0')
if OPT.get('rot') == 'i': I(f's_mov_b32 s{sRot}, s{sT1}')
if OPT.get('rot') == 'noc': I(f's_sub_u32 s{sRot}, s{sRot}, s{sT0}')
for _ in range(2):
    I(f's_sub_u32 s{sT0}, s{sRot}, 7')
    I(f's_cmp_ge_u32 s{sRot}, 7')
    I(f's_cselect_b32 s{sRot}, s{sT0}, s{sRot}')
I(f's_and_b32 s{sP}, s{sWave}, 1')
I(f's_bfe_u32 s{sH}, s{sWave}, 0x10001')
I(f's_lshr_b32 s{sU}, s{sWave}, 2')
I(f's_lshl_b32 s{sXo}, s{sRot}, 7')
I(f's_mul_i32 s{sWo}, s{sXo}, 1344')
q, g = vT[0], vT[1]
I(f'v_lshrrev_b32 v{q}, 3, v{vLane}')
I(f'v_lshrrev_b32 v{g}, 4, v{vLane}')
I(f'v_and_b32 v{vT[6]}, 7, v{vLane}')
I(f's_lshl_b32 s{sT0}, s{sI}, 7')
I(f's_lshr_b32 s{sT2}, s{sWave}, 1')
I(f's_lshl_b32 s{sT1}, s{sT2}, 5')
I(f's_add_u32 s{sT1}, s{sT1}, s{sT0}')
I(f's_add_u32 s{sT1}, s{sT1}, s{sP}')
I(f'v_lshl_add_u32 v{vT[2]}, v{q}, 1, s{sT1}')
I(f'v_mul_u32_u24 v{vT[2]}, 896, v{vT[2]}')
I(f'v_xor_b32 v{vT[4]}, v{vT[6]}, v{g}')
I(f'v_lshl_add_u32 v{vXd}, v{vT[4]}, 4, v{vT[2]}')
I(f'v_xor_b32 v{vXd+1}, 64, v{vXd}')
I(f'v_add_u32 v{vXd+1}, 14336, v{vXd+1}')
I(f's_mul_i32 s{sXm}, s{sType}, {(XRB - XRA) & 0xffffffff}')
I(f's_add_u32 s{sXm}, s{sXm}, {XRA}')
I(f's_lshl_b32 s{sT1}, s{sWave}, 11')
I(f's_add_u32 s{sSo2}, s{sXm}, s{sT1}')
sXw = sSo2
I(f'v_mov_b32 v{vT[7]}, 2688')
def woff(dst, s_u0, s_base):
    a, b, c, d = vT[2], vT[3], vT[4], vT[5]
    I(f'v_add_u32 v{a}, s{s_u0}, v{vLane}')
    I(f'v_mul_u32_u24 v{b}, 9363, v{a}')
    I(f'v_lshrrev_b32 v{b}, 16, v{b}')
    I(f'v_mad_i32_i24 v{a}, v{b}, -7, v{a}')
    I(f'v_bfe_u32 v{c}, v{b}, 1, 2')
    I(f'v_and_b32 v{d}, 1, v{b}')
    I(f'v_lshl_or_b32 v{c}, v{d}, 2, v{c}')
    I(f'v_and_or_b32 v{c}, v{b}, 56, v{c}')
    I(f'v_mad_u32_u24 v{c}, v{c}, v{vT[7]}, s{s_base}')
    I(f'v_lshl_add_u32 v{dst}, v{a}, 4, v{c}')
sJb = sLo2
I(f's_mul_i32 s{sJb}, s{sJ}, 112')
I(f's_lshl_b32 s{sT0}, s{sWave}, 6')
I(f's_lshl_b32 s{sM0a}, s{sWave}, 10')
I(f's_lshl_b32 s{sT2}, s{sType}, 31')
I(f's_add_u32 s{sT2}, s{sT2}, 896')
I(f's_add_u32 s{sT2}, s{sT2}, s{sJb}')
I(f's_cmp_eq_u32 s{sWave}, 7')
I(f's_cselect_b32 s{sT0}, 0, s{sT0}')
I(f's_cselect_b32 s{sT1}, s{sT2}, s{sJb}')
I(f's_cselect_b32 s{sT2}, s{sType}, 0')
woff(vWs, sT0, sT1)
I(f's_cmp_eq_u32 s{sT2}, 1')
I(f's_cselect_b32 s{sM0c}, {DUMMY}, s{sM0a}')
I(f's_cselect_b32 s{sSel}, 0, 1')
I(f's_mul_i32 s{sTa}, s{sType}, 896')
I(f's_add_u32 s{sTa}, s{sTa}, s{sWo}')
I(f'v_lshlrev_b32 v{vL16}, 4, v{vLane}')
I('s_waitcnt lgkmcnt(0)')
def mksrd(n, lo, size):
    I(f's_mov_b32 s{n}, s{lo}'); I(f's_mov_b32 s{n+1}, s{lo+1}'); I(f's_mov_b32 s{n+2}, {size}'); I(f's_mov_b32 s{n+3}, 0x20000')
mksrd(SX, 36, 1835008)
def x_op(si, hq):
    I(f's_add_u32 m0, s{sXw}, {(si % 3) * 16384 + hq * 1024}')
    return I(f'buffer_load_dwordx4 v{vXd+hq}, {srd(SX)}, s{sXo+si} offen lds')
x_op(0, 0); x_op(0, 1)
I(f's_cmp_eq_u32 s{sType}, 0')
I(f's_cselect_b32 s{SW}, s38, s44')
I(f's_cselect_b32 s{SW+1}, s39, s45')
I(f's_mov_b32 s{SW+2}, 1204224'); I(f's_mov_b32 s{SW+3}, 0x20000')
I(f's_mov_b32 m0, s{sM0c}')
TAG0 = I(f'buffer_load_dwordx4 v{vWs}, {srd(SW)}, s{sTa} offen lds')

def late_prologue():
    for p in range(1, 7):
        I(f's_add_u32 s{sXo+p}, s{sXo+p-1}, 128')
        I(f's_cmp_eq_u32 s{sXo+p}, 896')
        I(f's_cselect_b32 s{sXo+p}, 0, s{sXo+p}')
        I(f's_mul_i32 s{sWo+p}, s{sXo+p}, 1344')
    mksrd(SWS, 94, WS_SIZE); mksrd(SDBG, 92, 256)
    mksrd(SWOA, 40, 401408); mksrd(SWOB, 46, 401408); mksrd(SOUT, 50, 1835008); mksrd(SGW, 48, 896)
    if DEBUG:
        for k in range(16): I(f's_mov_b32 s{sStamp+k}, s98')
        I(f's_mov_b32 s{sStamp+1}, s96')

def zero_duty():
    I('s_cmp_ge_u32 s2, 8')
    I('s_cbranch_scc1 L_nozero' + cur)
    for k in range(4): I(f'v_mov_b32 v{104+k}, 0')
    I(f'v_lshlrev_b32 v{vT[2]}, 4, v0')
    I(f's_lshl_b32 s{sT0}, s2, 13')
    I(f's_add_u32 s{sT0}, s{sT0}, {WS_KV}')
    e.Ix(f'buffer_store_dwordx4 {v4(104)}, v{vT[2]}, {srd(SWS)}, s{sT0} offen sc1')
    I(f's_cmp_lg_u32 s{sWave}, 0')
    I('s_cbranch_scc1 L_nozero' + cur)
    I(f's_lshl_b32 s{sT0}, s2, 10')
    I(f's_add_u32 s{sT0}, s{sT0}, {WS_CNT}')
    e.Ix(f'buffer_store_dwordx4 {v4(104)}, v{vT[2]}, {srd(SWS)}, s{sT0} offen sc1')
    e.label('L_nozero' + cur)

nlab = [0]
def run_gemm(NS, nf, ops_of, frag, xrd, mfmas, issue_at, tag0, setup, fillers, hooks, extra=None, extra_vm=None, fill_rate=2, skip=()):
    NT = 2 * NS
    tags = {0: tag0}
    for si in range(1, NS):
        if isinstance(issue_at[si], int) and issue_at[si] < 0:
            for o in ops_of(si):
                tg = o()
                if tg is not None: tags[si] = tg
    setup()
    stamp('setup')
    e.need_vm(tags[0])
    I('s_barrier')
    stamp('b0')
    ftag, xtag = {}, {}
    for t in (0,1):
        xtag[t] = xrd(t)
        for f in range(nf): ftag[(t, f)] = frag(t, f)
    fq = []
    for t in range(NT):
        si, ks = t >> 1, t & 1
        more = t + 2 < NT
        if ('pre', t) in hooks: hooks[('pre', t)]()
        if ks == 0 and si + 1 < NS and (si + 1) not in skip:
            b = si + 1
            if ('prebar', b) in hooks: hooks[('prebar', b)]()
            bb = b
            while bb + 1 in skip: bb += 1
            e.need_vm(max(tags[x] for x in range(b, bb + 1)))
            I('s_barrier')
            stamp(f'b{b}')
            if ('bar', b) in hooks: hooks[('bar', b)]()
        vops = []
        for sj in range(1, NS):
            if issue_at[sj] == t:
                vops += [(sj, o) for o in ops_of(sj)]
            elif isinstance(issue_at[sj], tuple) and t in issue_at[sj]:
                ops = ops_of(sj)
                n = len(issue_at[sj]); k = issue_at[sj].index(t)
                lo, hi = len(ops) * k // n, len(ops) * (k + 1) // n
                vops += [(sj, o) for o in ops[lo:hi]]
        if extra_vm and t in extra_vm: vops += [(None, o) for o in extra_vm[t]]
        fq += fillers.get(t, [])
        e.need_lg(xtag.get(t))
        for f in range(nf):
            e.need_lg(ftag[(t, f)])
            for m in mfmas(t, f):
                I(m)
                for _ in range(fill_rate):
                    if fq: fq.pop(0)()
            if more: ftag[(t + 2, f)] = frag(t + 2, f)
            nv = (len(vops) + nf - f - 1) // (nf - f)
            for _ in range(nv):
                sj, o = vops.pop(0); tg = o()
                if sj is not None and tg is not None: tags[sj] = tg
        if more: xtag[t + 2] = xrd(t + 2)
        if extra: extra(t)
        if ('post', t) in hooks:
            while fq: fq.pop(0)()
            hooks[('post', t)]()
    while fq: fq.pop(0)()

def mf(d, a, b, first):
    return f'v_mfma_f32_16x16x32_bf16 {v4(d)}, {a}, {b}, {"0" if first else v4(d)}'

def flag_store_hook():
    I('s_cmp_ge_u32 s2, 8')
    I('s_cbranch_scc1 L_nf' + cur)
    I(f's_cmp_lg_u32 s{sWave}, 0')
    I('s_cbranch_scc1 L_nf' + cur)
    I(f's_lshl_b32 s{sT0}, s2, 2')
    I(f'v_mov_b32 v{vFlag}, 1')
    I(f's_mov_b64 exec, 1')
    e.Ix(f'buffer_store_dword v{vFlag}, off, {srd(SDBG)}, s{sT0} sc1')
    I(f's_mov_b64 exec, -1')
    e.label('L_nf' + cur)

def flag_load_hook():
    I(f'v_lshlrev_b32 v{vMisc}, 2, v{vLane}')
    I(f's_cmp_lg_u32 s{sWave}, 0')
    I('s_cbranch_scc1 L_nl' + cur)
    I(f's_mov_b64 exec, 0xff')
    e.Ix(f'buffer_load_dword v{vFlag}, v{vMisc}, {srd(SDBG)}, 0 offen sc1')
    I(f's_mov_b64 exec, -1')
    e.label('L_nl' + cur)

def flag_check_hook():
    I(f's_cmp_lg_u32 s{sWave}, 0')
    I('s_cbranch_scc1 L_nc' + cur)
    I(f's_mov_b64 exec, 0xff')
    I(f's_mov_b32 s{sSpin}, 0')
    e.label('L_fc' + cur)
    I(f'v_cmp_eq_u32 vcc, 0, v{vFlag}')
    e.nop(4)
    I('s_cbranch_vccz L_fok' + cur)
    I(f's_add_u32 s{sSpin}, s{sSpin}, 1')
    I(f's_cmp_ge_u32 s{sSpin}, {SPIN_MAX}')
    I('s_cbranch_scc1 L_fok' + cur)
    I('s_sleep 2')
    e.Ix(f'buffer_load_dword v{vFlag}, v{vMisc}, {srd(SDBG)}, 0 offen sc1')
    I('s_waitcnt vmcnt(0)')
    I('s_branch L_fc' + cur)
    e.label('L_fok' + cur)
    I(f's_mov_b64 exec, -1')
    e.label('L_nc' + cur)

def lane_addrs():
    a, b, c = vT[2], vT[3], vT[4]
    q, g = vT[0], vT[1]
    I(f'v_and_b32 v{q}, 15, v{vLane}')
    I(f'v_lshrrev_b32 v{g}, 4, v{vLane}')
    I(f'v_bfe_u32 v{a}, v{vLane}, 2, 2')
    I(f'v_lshl_add_u32 v{a}, v{g}, 2, v{a}')
    I(f'v_mul_u32_u24 v{a}, 224, v{a}')
    I(f'v_and_b32 v{b}, 3, v{vLane}')
    I(f'v_lshl_add_u32 v{vLa}, v{b}, 3, v{a}')
    I(f's_mul_i32 s{sT0}, s{sH}, 56')
    I(f'v_add_u32 v{vLa}, s{sT0}, v{vLa}')
    I(f'v_lshrrev_b32 v{a}, 1, v{q}')
    I(f'v_xor_b32 v{a}, v{a}, v{g}')
    I(f'v_lshlrev_b32 v{a}, 4, v{a}')
    I(f'v_lshl_add_u32 v{a}, v{q}, 7, v{a}')
    I(f's_and_b32 s{sT0}, s{sWave}, 5')
    I(f's_lshl_b32 s{sT0}, s{sT0}, 11')
    I(f's_add_u32 s{sT0}, s{sT0}, s{sXm}')
    I(f'v_add_u32 v{vXr}, s{sT0}, v{a}')
    I(f'v_xor_b32 v{vXr+1}, 64, v{vXr}')

def setup2(out):
    a, b, c = vT[2], vT[3], vT[4]
    g = vT[1]
    A = lambda s: out.append(lambda: I(s))
    A(f'v_cmp_gt_u32 vcc, 3, v{g}')
    A(f'v_cndmask_b32 v{vPad}, 0, -1, vcc')
    A(f'v_lshrrev_b32 v{a}, 3, v{vLane}')
    A(f'v_mul_u32_u24 v{a}, 896, v{a}')
    A(f'v_lshlrev_b32 v{b}, 1, v{g}')
    A(f'v_and_b32 v{c}, 7, v{vLane}')
    A(f'v_xor_b32 v{b}, v{b}, v{c}')
    A(f'v_lshl_add_u32 v{vWo}, v{b}, 4, v{a}')
    def w3():
        I(f's_lshr_b32 s{sT1}, s{sR}, 2')
        I(f's_lshl_b32 s{sT1}, s{sT1}, 7')
        I(f's_cmp_ge_u32 s{sR}, 28')
        I(f's_cselect_b32 s{sT1}, 0x80000000, s{sT1}')
        I(f'v_add_u32 v{vWo}, s{sT1}, v{vWo}')
    out.append(w3)

def wo_init():
    I(f's_and_b32 s{sT0}, s{sR}, 3')
    I(f's_lshl_b32 s{sT0}, s{sT0}, 4')
    I(f's_add_u32 s{sT0}, s{sT0}, s{sWave}')
    I(f's_lshl_b32 s{sLo2}, s{sT0}, 10')
    I(f's_mul_i32 s{sSo2}, s{sLo2}, 7')

def wo_ops(halves=(0, 1)):
    ops = []
    for half in halves:
        for qq in range(7):
            def f(half=half):
                I(f's_add_u32 m0, s{sLo2}, {half*57344}')
                tg = I(f'buffer_load_dwordx4 v{vWo}, {srd(SWOA if half == 0 else SWOB)}, s{sSo2} offen lds')
                I(f's_add_u32 s{sLo2}, s{sLo2}, 8192')
                I(f's_cmp_ge_u32 s{sLo2}, 57344')
                I(f's_cselect_b32 s{sTb}, 57344, 0')
                I(f's_sub_u32 s{sLo2}, s{sLo2}, s{sTb}')
                I(f's_mul_i32 s{sSo2}, s{sLo2}, 7')
                return tg
            ops.append(f)
    return ops

def spread(ops, ts):
    n = len(ts)
    return {t: ops[len(ops) * k // n: len(ops) * (k + 1) // n] for k, t in enumerate(ts)}

def xlane(op, m, m2, out):
    out.append(lambda: I(f'v_mov_b32 v{m2}, v{m}'))
    out.append(lambda: I(f'v_permlane16_swap_b32 v{m}, v{m2}'))
    out.append(lambda: I(f'{op} v{m}, v{m}, v{m2}'))
    out.append(lambda: I(f'v_mov_b32 v{m2}, v{m}'))
    out.append(lambda: I(f'v_permlane32_swap_b32 v{m}, v{m2}'))
    out.append(lambda: I(f'{op} v{m}, v{m}, v{m2}'))

def interleave(lists):
    out = []
    for k in range(max(len(l) for l in lists)):
        for l in lists:
            if k < len(l): out.append(l[k])
    return out

sO = [94, 95]
def o_offsets():
    I(f's_lshl_b32 s{sT0}, s{sI}, 3')
    I(f's_and_b32 s{sT1}, s{sWave}, 5')
    I(f's_add_u32 s{sT0}, s{sT0}, s{sT1}')
    I(f's_lshl_b32 s{sT0}, s{sT0}, 5')
    I(f's_lshl_b32 s{sT1}, s{sType}, 4')
    I(f's_add_u32 s{sT0}, s{sT0}, s{sT1}')
    I(f's_lshl_b32 s{sT1}, s{sJ}, 1')
    I(f's_add_u32 s{sT0}, s{sT0}, s{sT1}')
    I(f's_add_u32 s{sT0}, s{sT0}, s{sH}')
    I(f's_lshl_b32 s{sO[0]}, s{sT0}, 10')
    I(f's_add_u32 s{sO[1]}, s{sO[0]}, 65536')

def pack_T(out, dst, acc0, acc1):
    out.append(lambda: I(f'v_cvt_pk_bf16_f32 v{dst}, v{acc0}, v{acc0+1}'))
    out.append(lambda: I(f'v_cvt_pk_bf16_f32 v{dst+1}, v{acc0+2}, v{acc0+3}'))
    out.append(lambda: I(f'v_cvt_pk_bf16_f32 v{dst+2}, v{acc1}, v{acc1+1}'))
    out.append(lambda: I(f'v_cvt_pk_bf16_f32 v{dst+3}, v{acc1+2}, v{acc1+3}'))
    out.append(lambda: I(f'v_and_b32 v{dst+2}, v{vPad}, v{dst+2}'))
    out.append(lambda: I(f'v_and_b32 v{dst+3}, v{vPad}, v{dst+3}'))

def Oacc(T, dt): return vO + (T * 2 + dt) * 4
def o_finish(T, inv):
    d = vOp + 4 * T
    for dt in range(2):
        a = Oacc(T, dt)
        for r in range(4): I(f'v_mul_f32 v{a+r}, v{inv}, v{a+r}')
        I(f'v_cvt_pk_bf16_f32 v{d+2*dt}, v{a}, v{a+1}')
        I(f'v_cvt_pk_bf16_f32 v{d+2*dt+1}, v{a+2}, v{a+3}')
    I(f'v_and_b32 v{d+2}, v{vPad}, v{d+2}')
    I(f'v_and_b32 v{d+3}, v{vPad}, v{d+3}')
    I(f'buffer_store_dwordx4 {v4(d)}, v{vL16}, {srd(SWS)}, s{sO[T]} offen sc1')

def cnt_add(sreg_off, lab):
    I(f's_cmp_lg_u32 s{sWave}, 0')
    I(f's_cbranch_scc1 {lab}')
    I(f'v_mov_b32 v{vFlag}, 1')
    I('s_mov_b64 exec, 1')
    e.Ix(f'buffer_atomic_add v{vFlag}, off, {srd(SWS)}, s{sreg_off}')
    I('s_mov_b64 exec, -1')
    e.label(lab)

def poll(sreg_off, n, lab):
    I('s_mov_b64 exec, 1')
    I(f's_mov_b32 s{sSpin}, 0')
    e.label(lab)
    e.Ix(f'buffer_load_dword v{vFlag}, off, {srd(SWS)}, s{sreg_off} sc1')
    I(f's_add_u32 s{sSpin}, s{sSpin}, 1')
    I('s_waitcnt vmcnt(0)')
    I(f'v_readfirstlane_b32 s{sT3}, v{vFlag}')
    I(f's_cmp_ge_u32 s{sT3}, {n}')
    I(f's_cbranch_scc1 {lab}_k')
    I(f's_cmp_ge_u32 s{sSpin}, {SPIN_MAX}')
    I(f's_cbranch_scc1 {lab}_k')
    I('s_sleep 1')
    I(f's_branch {lab}')
    e.label(lab + '_k')
    I('s_mov_b64 exec, -1')

def cnt_wait(sreg_off, n, lab, wv=1):
    I(f's_cmp_lg_u32 s{sWave}, {wv}')
    I(f's_cbranch_scc1 {lab}_d')
    poll(sreg_off, n, lab)
    e.label(lab + '_d')
    I('s_barrier')


I(f's_cmp_lg_u32 s{sType}, 0')
I('s_cbranch_scc1 L_typeB')
STATE = ('t', 'w', 'cread', 'stread', 'vm_issued', 'vm_done', 'lg_issued', 'lg_done')
snap = copy.deepcopy({k: getattr(e, k) for k in STATE})
ISS = {1: -1, 2: 0}
for si in range(3, 7): ISS[si] = (2 * si - 5, 2 * si - 4)
if OPT.get('iss') == 'late':
    for si in range(2, 7): ISS[si] = (2 * si - 4, 2 * si - 3)

cur = 'A'
I(f's_add_u32 s{sT0}, s{sWave}, 1')
I(f's_sub_u32 s{sT1}, s{sWave}, 6')
I(f's_add_u32 s{sT2}, s{sJb}, 896')
I(f's_add_u32 s{sT3}, s{sJb}, 1792')
I(f's_cmp_ge_u32 s{sWave}, 6')
I(f's_cselect_b32 s{sT0}, s{sT1}, s{sT0}')
I(f's_cselect_b32 s{sT2}, s{sT3}, s{sT2}')
I(f's_lshl_b32 s{sT0}, s{sT0}, 6')
woff(vWs + 1, sT0, sT2)
I(f's_add_u32 m0, s{sM0a}, 8192')
I(f'buffer_load_dwordx4 v{vWs+1}, {srd(SW)}, s{sWo} offen lds')
I(f's_add_u32 s{sT0}, s{sWave}, 2')
I(f's_min_u32 s{sT0}, s{sT0}, 6')
I(f's_lshl_b32 s{sT0}, s{sT0}, 6')
woff(vWs + 2, sT0, sT3)
I(f's_sub_u32 s{sT1}, s{sWave}, 5')
I(f's_cmp_ge_u32 s{sWave}, 5')
I(f's_cselect_b32 s{sTb}, s{sT1}, 3')
I(f's_cselect_b32 s{sSel}, 0, 1')
I(f's_cselect_b64 s[{sSave}:{sSave+1}], -1, 0')
I(f's_cselect_b32 s{SX3}, s{SX}, s{SW}')
I(f's_cselect_b32 s{SX3+1}, s{SX+1}, s{SW+1}')
I(f's_cselect_b32 s{SX3+2}, s{SX+2}, s{SW+2}')
I(f's_mov_b32 s{SX3+3}, 0x20000')
I(f's_and_b32 s{sT1}, s{sTb}, 2')
I(f's_lshl_b32 s{sT1}, s{sT1}, 5')
I(f's_and_b32 s{sT2}, s{sTb}, 1')
I(f's_add_u32 s{sT1}, s{sT1}, s{sT2}')
I(f's_lshl_b32 s{sT0}, s{sI}, 7')
I(f's_add_u32 s{sT1}, s{sT1}, s{sT0}')
I(f'v_lshl_add_u32 v{vT[2]}, v{vT[0]}, 1, s{sT1}')
I(f'v_mul_u32_u24 v{vT[2]}, 896, v{vT[2]}')
I(f'v_and_b32 v{vT[4]}, 6, v{vT[0]}')
I(f'v_xor_b32 v{vT[4]}, v{vT[6]}, v{vT[4]}')
I(f'v_lshl_add_u32 v{vHd}, v{vT[4]}, 4, v{vT[2]}')
I(f'v_add_u32 v{vHd}, 0xffffc800, v{vHd}')
I(f'v_cndmask_b32 v{vWs+2}, v{vWs+2}, v{vHd}, s[{sSave}:{sSave+1}]')
sHm = sLo2
I(f's_lshl_b32 s{sTb}, s{sTb}, 10')
I(f's_add_u32 s{sHm}, s{sTb}, {HRA}')
I(f's_add_u32 s{sM0c}, s{sM0a}, 16384')
I(f's_cmp_eq_u32 s{sSel}, 0')
I(f's_cselect_b32 s{sM0c}, s{sHm}, s{sM0c}')
def opsA(si, first=False):
    base = WA + (si & 3) * 21504; hr = (si & 3) * 4096
    def fh():
        nlab[0] += 1
        I(f's_cmp_lg_u32 s{sWave}, 4')
        I(f's_cbranch_scc1 L_nh{nlab[0]}')
        I(f's_add_u32 m0, s{sHm}, {hr}')
        e.Ix(f'buffer_load_dwordx4 v{vHd}, {srd(SX)}, s{sXo+si} offen lds')
        e.label(f'L_nh{nlab[0]}')
    def fk(k):
        I(f's_add_u32 m0, s{sM0a}, {base + 8192 * k}')
        return I(f'buffer_load_dwordx4 v{vWs+k}, {srd(SW)}, s{sWo+si} offen lds')
    def f2():
        I(f's_mul_i32 m0, s{sSel}, {(base - hr) & 0xffffffff}')
        I(f's_cmp_lg_u32 s{sSel}, 0')
        I(f's_cselect_b32 s{sTa}, s{sWo+si}, s{sXo+si}')
        I(f's_add_u32 m0, m0, s{sM0c}')
        if hr: I(f's_add_u32 m0, m0, {hr}')
        return I(f'buffer_load_dwordx4 v{vWs+2}, {srd(SX3)}, s{sTa} offen lds')
    if first: return [fh, f2]
    return [fh, lambda: fk(0), lambda: fk(1), f2, lambda: x_op(si, 0), lambda: x_op(si, 1)]
for o in opsA(0, True): tagA0 = o()
late_prologue()
stamp('ld0')
def setupA():
    zero_duty()
    lane_addrs()
    q, g, c, d = vT[0], vT[1], vT[2], vT[3]
    I(f'v_add_u32 v{vLa2}, 43008, v{vLa}')
    I(f'v_and_b32 v{c}, 6, v{q}')
    I(f'v_xor_b32 v{c}, v{c}, v{g}')
    I(f'v_lshlrev_b32 v{c}, 4, v{c}')
    I(f'v_and_b32 v{d}, 7, v{q}')
    I(f'v_lshl_add_u32 v{c}, v{d}, 7, v{c}')
    I(f's_lshl_b32 s{sT0}, s{sU}, 1')
    I(f's_add_u32 s{sT0}, s{sT0}, s{sP}')
    I(f's_lshl_b32 s{sT0}, s{sT0}, 10')
    I(f's_add_u32 s{sT0}, s{sT0}, {HRA}')
    I(f'v_add_u32 v{vHr}, s{sT0}, v{c}')
    I(f'v_xor_b32 v{vHr+1}, 64, v{vHr}')
def setupA2(out):
    q, g, c, d = vT[0], vT[1], vT[2], vT[3]
    A = lambda s: out.append(lambda: I(s))
    A(f'v_mov_b32 v{vT[5]}, 0xff800000')
    A(f's_or_b32 s{sT2}, s{sI}, s{sU}')
    for r in range(4):
        A(f'v_lshl_add_u32 v{c}, v{g}, 2, {r}')
        A(f'v_cmp_le_u32 s[{sCur+2*r}:{sCur+2*r+1}], v{c}, v{q}')
        A(f'v_sub_u32 v{d}, v{q}, v{c}')
        A(f'v_and_b32 v{d}, 15, v{d}')
        A(f'v_cmp_gt_u32 vcc, 8, v{d}')
        A(f'v_cndmask_b32 v{vBias+r}, v{vT[5]}, 0, vcc')
        def blk(r=r):
            I(f's_and_b64 s[{sSave}:{sSave+1}], vcc, s[{sCur+2*r}:{sCur+2*r+1}]')
            I(f's_cmp_eq_u32 s{sT2}, 0')
            I(f's_cselect_b64 s[{sSave}:{sSave+1}], s[{sSave}:{sSave+1}], vcc')
        out.append(blk)
        A(f'v_cndmask_b32 v{vBias0+r}, v{vT[5]}, 0, s[{sSave}:{sSave+1}]')
    for (mc, mp, r) in ((vMC01, vMP01, 0), (vMC23, vMP23, 2)):
        A(f'v_mov_b32 v{c}, 0xffff')
        A(f'v_cndmask_b32 v{mc}, 0, v{c}, s[{sCur+2*r}:{sCur+2*r+1}]')
        A(f'v_mov_b32 v{c}, 0xffff0000')
        A(f'v_cndmask_b32 v{d}, 0, v{c}, s[{sCur+2*r+2}:{sCur+2*r+3}]')
        A(f'v_or_b32 v{mc}, v{mc}, v{d}')
        A(f'v_not_b32 v{mp}, v{mc}')
    A(f's_mov_b32 s{sScale}, 0x{f32(28 ** -0.5 * math.log2(math.e)):08x}')


def afr(t, f): return ((t & 1) * 6 + f) * 4
def axr(t, T): return 48 + ((t & 1) * 3 + T) * 4
def fragA(t, f):
    si, ks = t >> 1, t & 1
    off = (si & 1) * 21504 + (f >> 1) * 7168 + ks * 3584 + (f & 1) * 32
    va = vLa2 if si & 2 else vLa
    r = afr(t, f)
    I(f'ds_read_b64_tr_b16 a[{r}:{r+1}], v{va} offset:{off}')
    return I(f'ds_read_b64_tr_b16 a[{r+2}:{r+3}], v{va} offset:{off+112}')
def xrdA(t):
    si, ks = t >> 1, t & 1
    for T in range(2): I(f'ds_read_b128 {a4(axr(t, T))}, v{vXr+ks} offset:{(si % 3) * 16384 + T * 4096}')
    return I(f'ds_read_b128 {a4(axr(t, 2))}, v{vHr+ks} offset:{(si & 3) * 4096}')
def accQ(T, ct): return 40 + (T * 2 + ct) * 4
def accK(T, ct): return 56 + (T * 2 + ct) * 4
def accV(T, ct): return 80 + (T * 2 + ct) * 4
def mfA(t, f):
    fr = a4(afr(t, f)); ct = f & 1
    if f < 2: return [mf(accQ(T, ct), fr, a4(axr(t, T)), t == 0) for T in range(2)]
    if f < 4: return [mf(accK(T, ct), fr, a4(axr(t, T)), t == 0) for T in range(3)]
    return [mf(accV(T, ct), a4(axr(t, T)), fr, t == 0) for T in range(3)]
fA2 = []
setupA2(fA2); setup2(fA2)
hooksA = {('bar', 2): flag_store_hook, ('pre', 6): flag_load_hook}
run_gemm(7, 6, opsA, fragA, xrdA, mfA, ISS, tagA0, setupA, {1: fA2}, hooksA)
stamp('gend')
def Kp(T): return 104 + 4 * T
def Qp(T): return 116 + 4 * T
def Vp(dt): return 124 + 6 * dt
vS = 40; vPf = 56; vInv = 64; vTm = 68; vO = 80; vOp = 96
def softmax_valu(out, T):
    sc, sp, tm = vS + 8 * T, vS + 8 * T + 4, vTm + 4 * T
    bias = vBias if T == 1 else vBias0
    A = lambda s: out.append(lambda: I(s))
    for r in range(4): A(f'v_cndmask_b32 v{sc+r}, v{sp+r}, v{sc+r}, s[{sCur+2*r}:{sCur+2*r+1}]')
    for r in range(4): A(f'v_fma_f32 v{sc+r}, v{sc+r}, s{sScale}, v{bias+r}')
    m, m2 = tm, tm + 1
    A(f'v_max3_f32 v{m}, v{sc}, v{sc+1}, v{sc+2}')
    A(f'v_max_f32 v{m}, v{m}, v{sc+3}')
    xlane('v_max_f32', m, m2, out)
    for r in range(4): A(f'v_sub_f32 v{sc+r}, v{sc+r}, v{m}')
    for r in range(4): A(f'v_exp_f32 v{sc+r}, v{sc+r}')
    A(f'v_add_f32 v{m}, v{sc}, v{sc+1}')
    A(f'v_add_f32 v{m2}, v{sc+2}, v{sc+3}')
    A(f'v_cvt_pk_bf16_f32 v{tm+2}, v{sc}, v{sc+1}')
    A(f'v_add_f32 v{m}, v{m}, v{m2}')
    A(f'v_cvt_pk_bf16_f32 v{tm+3}, v{sc+2}, v{sc+3}')
    xlane('v_add_f32', m, m2, out)
    pf = vPf + 4 * T
    A(f'v_and_b32 v{pf}, v{vMP01}, v{tm+2}')
    A(f'v_and_b32 v{pf+1}, v{vMP23}, v{tm+3}')
    A(f'v_and_b32 v{pf+2}, v{vMC01}, v{tm+2}')
    A(f'v_and_b32 v{pf+3}, v{vMC23}, v{tm+3}')
    A(f'v_rcp_f32 v{vInv+T}, v{m}')

flag_check_hook()
wo_init()
I('s_barrier')
wl = wo_ops((1,))
l = []
for T in (0, 2, 1): pack_T(l, Kp(T), accK(T, 0), accK(T, 1))
for T in range(2): pack_T(l, Qp(T), accQ(T, 0), accQ(T, 1))
for T in range(2):
    sc, sp = vS + 8 * T, vS + 8 * T + 4
    l.append(lambda sc=sc, T=T: I(mf(sc, v4(Kp(T)), v4(Qp(T)), True)))
    l.append(lambda sp=sp, T=T: I(mf(sp, v4(Kp(0) if T == 1 else Kp(2)), v4(Qp(T)), True)))
for dt in range(2):
    for T in (2, 0, 1):
        a = accV(T, dt); d = Vp(dt) + (0 if T == 2 else 2 + 2 * T)
        l.append(lambda a=a, d=d: I(f'v_cvt_pk_bf16_f32 v{d}, v{a}, v{a+1}'))
        l.append(lambda a=a, d=d: I(f'v_cvt_pk_bf16_f32 v{d+1}, v{a+2}, v{a+3}'))
vl = []
for T in range(2):
    x = []; softmax_valu(x, T); vl.append(x)
l += interleave(vl)
for k, x in enumerate(l):
    x()
    if k % 6 == 0 and wl: wl.pop(0)()
for T in range(2):
    for dt in range(2): I(mf(Oacc(T, dt), v4(Vp(dt) + 2 * T), v4(vPf + 4 * T), True))
while wl: wl.pop(0)()
o_offsets()
for T in range(2): o_finish(T, vInv + T)
I('s_branch L_publish')

for k, v in copy.deepcopy(snap).items(): setattr(e, k, v)
cur = 'B'
e.label('L_typeB')
late_prologue()
stamp('ld0')
vGa = 20; vKm = 21; vOne = 26; vG = [124, 128]
sOne = 90; sKVc = 92; sGt = 93
SECB = [896, 1792, 0]
def opsB(si):
    pos = si % 7
    def fw():
        I(f's_mul_i32 m0, s{sSel}, {unitB(si)}')
        sec = SECB[si // 7]
        if sec: I(f's_add_u32 s{sTa}, s{sWo+pos}, {sec}')
        I(f's_add_u32 m0, m0, s{sM0c}')
        return I(f'buffer_load_dwordx4 v{vWs}, {srd(SW)}, s{sTa if sec else sWo+pos} offen lds')
    if si < 7: return [fw, lambda: x_op(si, 0), lambda: x_op(si, 1)]
    return [fw]
def setupB():
    zero_duty()
    I(f's_cmp_lg_u32 s{sWave}, 0')
    I('s_cbranch_scc1 L_nogw')
    I(f's_mov_b32 exec_hi, 0xffffff')
    I(f's_mov_b32 m0, {GW}')
    e.Ix(f'buffer_load_dwordx4 v{vL16}, {srd(SGW)}, 0 offen lds')
    I(f's_mov_b32 m0, {GW+896}')
    e.Ix(f'buffer_load_dwordx4 v{vL16}, {srd(SGW)}, 0 offen lds')
    I(f's_mov_b64 exec, -1')
    e.label('L_nogw')
    lane_addrs()
fB2 = []
def setupB2(out):
    q, g = vT[0], vT[1]
    A = lambda s: out.append(lambda: I(s))
    A(f'v_cmp_gt_u32 vcc, 12, v{q}')
    A(f'v_cndmask_b32 v{vKm}, 0, -1, vcc')
    A(f'v_cmp_eq_u32 s[{sOne}:{sOne+1}], 12, v{q}')
    A(f'v_mov_b32 v{vOne}, 0x3f803f80')
    A(f'v_lshlrev_b32 v{vGa}, 4, v{g}')
    A(f'v_add_u32 v{vGa}, s{sXo}, v{vGa}')
    A(f'v_add_u32 v{vGa}, {GW}, v{vGa}')
    def gs():
        I(f's_add_u32 s{sGt}, s{sH}, 1')
        I(f's_cmp_eq_u32 s{sWave}, s{sJ}')
        I(f's_cselect_b32 s{sGt}, s{sGt}, 0')
    out.append(gs)
    A(f's_mov_b32 s{sScale}, 0x{f32(math.log2(math.e)):08x}')
    A(f's_mov_b32 s{sScale+1}, 0x{f32(1e-6):08x}')
setupB2(fB2); setup2(fB2)
def xreg(T, t): return (T * 14 + t) * 4
class LB: base = 0
def bfr(t, f): return vF + ((t & 1) * 2 + f) * 4
def fragB(t, f):
    si, ks = t >> 1, t & 1
    off = unitB(si) + ks * 3584 + f * 32
    if off >= WT and LB.base == 0:
        I(f'v_add_u32 v{vLa}, {WT}, v{vLa}')
        LB.base = WT
    o = off - LB.base
    r = bfr(t, f)
    I(f'ds_read_b64_tr_b16 {v2(r)}, v{vLa} offset:{o}')
    return I(f'ds_read_b64_tr_b16 {v2(r+2)}, v{vLa} offset:{o+112}')
def xrdB(t):
    if t >= 14: return None
    si, ks = t >> 1, t & 1
    for T in range(2): tag = I(f'ds_read_b128 {a4(xreg(T, t))}, v{vXr+ks} offset:{(si % 3) * 16384 + T * 4096}')
    return tag
def baccK(T, ct): return 56 + (T * 2 + ct) * 4
def baccV(T, ct): return 72 + (T * 2 + ct) * 4
def baccQ(T, ct): return 88 + (T * 2 + ct) * 4
baccG = 104
def mfB(t, f):
    seg, tt = divmod(t, 14)
    fr = v4(bfr(t, f))
    if seg < 2:
        acc = baccK if seg == 0 else baccV
        return [mf(acc(T, f), a4(xreg(T, tt)), fr, tt == 0) for T in range(2)]
    return [mf(baccQ(T, f), fr, a4(xreg(T, tt)), tt == 0) for T in range(2)]
gmark = {}
def gate_step(t):
    if t < 27: return
    nlab[0] += 1; L = nlab[0]
    I(f's_cmp_eq_u32 s{sGt}, 0')
    I(f's_cbranch_scc1 L_g{L}')
    if t >= 28:
        I(f's_waitcnt lgkmcnt({min(15, e.lg_issued - gmark[t])})')
        I(f's_cmp_eq_u32 s{sGt}, 1')
        I(f's_cbranch_scc1 L_g{L}a')
        I(mf(baccG, v4(vG[t & 1]), a4(xreg(1, t - 28)), t == 28))
        I(f's_branch L_g{L}b')
        e.label(f'L_g{L}a')
        I(mf(baccG, v4(vG[t & 1]), a4(xreg(0, t - 28)), t == 28))
        e.label(f'L_g{L}b')
    if t < 41:
        e.Ix(f'ds_read_b128 {v4(vG[(t + 1) & 1])}, v{vGa} offset:{(t + 1 - 28) * 64}')
        gmark[t + 1] = e.lg_issued
    e.label(f'L_g{L}')
def phi(out, a, tmp):
    A = lambda s: out.append(lambda: I(s))
    for r in range(4): A(f'v_mul_f32 v{tmp+r}, s{sScale}, v{a+r}')
    for r in range(4): A(f'v_exp_f32 v{tmp+r}, -|v{tmp+r}|')
    for r in range(4): A(f'v_add_f32 v{a+r}, 1.0, v{a+r}')
    for r in range(4): A(f'v_max_f32 v{a+r}, v{a+r}, v{tmp+r}')
    for r in range(4): A(f'v_add_f32 v{a+r}, s{sScale+1}, v{a+r}')
vPK = 108; vVV = 116; vKV = 56; vRd = 72
bt = {}
fB14, fB28, fB30 = [], [], []
def mkB():
    A = lambda s: fB14.append(lambda: I(s))
    for ct in range(2):
        for T in range(2): phi(fB14, baccK(T, ct), vT[0] if T == 0 else vT[4])
        for T in range(2):
            a = baccK(T, ct); d = vPK + 4 * ct + 2 * T
            A(f'v_cvt_pk_bf16_f32 v{d}, v{a}, v{a+1}')
            A(f'v_cvt_pk_bf16_f32 v{d+1}, v{a+2}, v{a+3}')
    for k in range(4): A(f'v_and_b32 v{vPK+4+k}, v{vKm}, v{vPK+4+k}')
    A(f's_lshl_b32 s{sT0}, s{sU}, 1')
    A(f's_add_u32 s{sT0}, s{sT0}, s{sP}')
    A(f's_lshl_b32 s{sT0}, s{sT0}, 13')
    A(f's_lshl_b32 s{sT1}, s{sH}, 12')
    A(f's_add_u32 s{sT0}, s{sT0}, s{sT1}')
    A(f'v_add_u32 v{vMisc+1}, s{sT0}, v{vL16}')
    A(f's_lshl_b32 s{sT0}, s{sWave}, 10')
    A(f'v_lshlrev_b32 v{vMisc+2}, 2, v{vLane}')
    A(f'v_add_u32 v{vMisc+2}, s{sT0}, v{vMisc+2}')
    A(f's_lshl_b32 s{sT1}, s{sJ}, 13')
    A(f's_add_u32 s{sT1}, s{sT1}, {WS_KV}')
    A(f's_lshl_b32 s{sKVc}, s{sJ}, 10')
    A(f's_add_u32 s{sKVc}, s{sKVc}, {WS_CNT}')
    A = lambda s: fB28.append(lambda: I(s))
    for c in (1, 0):
        for T in range(2):
            a = baccV(T, c); d = vVV + 4 * c + 2 * T
            A(f'v_cvt_pk_bf16_f32 v{d}, v{a}, v{a+1}')
            A(f'v_cvt_pk_bf16_f32 v{d+1}, v{a+2}, v{a+3}')
        if c:
            for k in range(4): A(f'v_cndmask_b32 v{vVV+4+k}, v{vVV+4+k}, v{vOne}, s[{sOne}:{sOne+1}]')
    for c in range(2):
        for a in range(2): A(mf(vKV + 4 * (c * 2 + a), v4(vPK + 4 * a), v4(vVV + 4 * c), True))
    for k in range(4):
        def w(k=k): bt['tw'] = I(f'ds_write_b128 v{vMisc+1}, {v4(vKV+4*k)} offset:{k*1024}')
        fB28.append(w)
    rt = {}
    for m in range(4):
        for src in range(4):
            def rd(m=m, src=src): rt[(m, src)] = I(f'ds_read_b32 v{vRd + m * 4 + src}, v{vMisc+2} offset:{src*8192 + m*256}')
            fB30.append(rd)
    for m in range(4): fB30.append(lambda m=m: red(m, rt))
    fB30.append(lambda: stamp('kvend'))
def red(m, rt):
    b = vRd + m * 4
    e.need_lg(rt[(m, 3)])
    I(f'v_add_f32 v{b}, v{b}, v{b+1}')
    I(f'v_add_f32 v{b+2}, v{b+2}, v{b+3}')
    I(f'v_add_f32 v{b}, v{b}, v{b+2}')
    bt['at'] = I(f'buffer_atomic_add_f32 v{b}, v{vMisc+2}, {srd(SWS)}, s{sT1} offen offset:{m*256}')
mkB()
def B_img():
    stamp('vend')
    for x in fB28: x()
    flag_check_hook()
    e.need_lg(bt['tw'])
    I('s_barrier')
    for x in fB30: x()
def B_sig0(): e.need_vm(bt['at'])
def B_sig1(): cnt_add(sKVc, 'L_kvadd')
SIGB = int(OPT.get('sigb', 17))
issB = dict(ISS)
issB.update({7: 9, 8: 9, 9: 10, 10: 10, 11: 11, 12: 12, 13: 13})
issB.update({14: 14, 15: 15, 16: 16, 17: 17, 18: 18, 19: 32, 20: 32})
hooksB = {('bar', 2): flag_store_hook, ('pre', 6): flag_load_hook, ('post', 13): lambda: stamp('kend'), ('pre', 14): wo_init,
          ('post', 27): B_img, ('prebar', SIGB): B_sig0, ('bar', SIGB): B_sig1}
xv = spread(wo_ops((1,)), list(range(19, 26)))
xv.update(spread(wo_ops((0,)), list(range(33, 40))))
run_gemm(21, 2, opsB, fragB, xrdB, mfB, issB, TAG0, setupB, {1: fB2, 14: fB14}, hooksB, gate_step, extra_vm=xv,
         fill_rate=int(OPT.get('fillB', 3)), skip=eval(OPT.get('skipB', '(9,11,12,13,15,16,18,20)')))
stamp('gend')
vPQ = 40
def phiQ(T):
    l = []
    for ct in range(2): phi(l, baccQ(T, ct), vT[0] if ct == 0 else vT[4])
    pack_T(l, vPQ + 4 * T, baccQ(T, 0), baccQ(T, 1))
    for x in l: x()
phiQ(0)
e.all_vm()
cnt_wait(sKVc, 16, 'L_kvwait')
stamp('kvwait')
I(f's_lshl_b32 s{sT1}, s{sJ}, 13')
I(f's_lshl_b32 s{sT2}, s{sH}, 12')
I(f's_add_u32 s{sT1}, s{sT1}, s{sT2}')
I(f's_add_u32 s{sT1}, s{sT1}, {WS_KV}')
vKVf = 56
kt = {}
for k in range(4):
    kt[k] = I(f'buffer_load_dwordx4 {v4(vKVf+4*k)}, v{vL16}, {srd(SWS)}, s{sT1} offen offset:{k*1024} sc1')
phiQ(1)
I(f'v_lshlrev_b32 v{vMisc}, 2, v{vLane}')
I(f's_cmp_eq_u32 s{sGt}, 0')
I('s_cbranch_scc1 L_nog')
a = baccG
I(f'v_mul_f32 v{a}, s{sScale}, v{a}')
I(f'v_exp_f32 v{a}, -v{a}')
I(f's_lshl_b32 s{sT0}, s{sI}, 3')
I(f'v_add_f32 v{a}, 1.0, v{a}')
I(f's_add_u32 s{sT0}, s{sT0}, s{sJ}')
I(f'v_rcp_f32 v{a}, v{a}')
I(f's_lshl_b32 s{sT0}, s{sT0}, 6')
I(f's_add_u32 s{sT0}, s{sT0}, {WS_G}')
I('s_mov_b64 exec, 0xffff')
e.Ix(f'buffer_store_dword v{a}, v{vMisc}, {srd(SWS)}, s{sT0} offen sc1')
I('s_mov_b64 exec, -1')
e.label('L_nog')
stamp('phiq')
o_offsets()
vAf = 48; vZf = 108; vDen = 112; vO = 72; vOp = 120
for c in range(2):
    for a in range(2):
        k = c * 2 + a
        e.need_vm(kt[k])
        d = vAf + c * 4 + 2 * a
        I(f'v_cvt_pk_bf16_f32 v{d}, v{vKVf+4*k}, v{vKVf+4*k+1}')
        I(f'v_cvt_pk_bf16_f32 v{d+1}, v{vKVf+4*k+2}, v{vKVf+4*k+3}')
for k in range(4):
    I(f'v_mov_b32_dpp v{vZf+k}, v{vAf+4+k} row_newbcast:12 row_mask:0xf bank_mask:0xf')
for T in range(2):
    pq = v4(vPQ + 4 * T)
    I(mf(vDen + 4 * T, v4(vZf), pq, True))
    for c in range(2): I(mf(Oacc(T, c), v4(vAf + c * 4), pq, True))
for T in range(2):
    dn = vDen + 4 * T
    I(f'v_add_f32 v{dn}, s{sScale+1}, v{dn}')
    I(f'v_rcp_f32 v{dn}, v{dn}')
    o_finish(T, dn)

e.label('L_publish')
e.fence(2)
stamp('ost')
sR2, sN, sCn, sOb, sLh = 64, 65, 66, 68, 69
I(f's_lshr_b32 s{sT0}, s{sI}, 1')
I(f's_lshl_b32 s{sT0}, s{sT0}, 10')
I(f's_and_b32 s{sT1}, s{sI}, 1')
I(f's_lshl_b32 s{sT2}, s{sType}, 1')
I(f's_add_u32 s{sT1}, s{sT1}, s{sT2}')
I(f's_lshl_b32 s{sT1}, s{sT1}, 7')
I(f's_add_u32 s{sTa}, s{sT0}, s{sT1}')
I(f's_add_u32 s{sTa}, s{sTa}, {WS_CNT+128}')
I(f's_and_b32 s{sT0}, s{sR}, 3')
I(f's_and_b32 s{sR2}, s2, 7')
I(f's_lshl_b32 s{sR2}, s{sR2}, 2')
I(f's_add_u32 s{sR2}, s{sR2}, s{sT0}')
I(f's_lshr_b32 s{sN}, s{sR}, 2')
I(f's_lshl_b32 s{sN}, s{sN}, 1')
vP2 = 10; vQ2 = 18; vOut = 22; vGg = 23; vSw = 24; vSr = 25; vCm = 26
gq, rr = vT[1], vT[2]
I(f'v_lshrrev_b32 v{gq}, 4, v{vLane}')
I(f'v_bfe_u32 v{rr}, v{vLane}, 2, 2')
I(f'v_lshl_add_u32 v{vT[3]}, v{gq}, 2, v{rr}')
I(f'v_bfe_u32 v{vT[4]}, v{vT[3]}, 1, 2')
I(f'v_lshlrev_b32 v{vT[3]}, 7, v{vT[3]}')
I(f'v_and_b32 v{vT[5]}, 3, v{vLane}')
I(f'v_lshl_add_u32 v{vT[3]}, v{vT[5]}, 3, v{vT[3]}')
for t in range(4):
    I(f'v_xor_b32 v{vT[5]}, {t}, v{vT[4]}')
    I(f'v_lshl_add_u32 v{vP2+t}, v{vT[5]}, 5, v{vT[3]}')
I(f's_and_b32 s{sT3}, s{sWave}, 3')
I(f'v_and_b32 v{vT[5]}, 15, v{vLane}')
I(f's_lshl_b32 s{sT0}, s{sT3}, 11')
I(f's_add_u32 s{sT0}, s{sT0}, {STG}')
I(f'v_lshrrev_b32 v{vT[6]}, 1, v{gq}')
I(f'v_and_b32 v{vT[7]}, 7, v{vT[5]}')
I(f'v_xor_b32 v{vT[6]}, v{vT[6]}, v{vT[7]}')
I(f'v_lshlrev_b32 v{vT[6]}, 4, v{vT[6]}')
I(f'v_lshl_add_u32 v{vT[6]}, v{vT[5]}, 7, v{vT[6]}')
I(f'v_and_b32 v{vT[7]}, 1, v{gq}')
I(f'v_lshl_add_u32 v{vT[6]}, v{vT[7]}, 3, v{vT[6]}')
I(f'v_add_u32 v{vSw}, s{sT0}, v{vT[6]}')
I(f'v_lshrrev_b32 v{vT[6]}, 3, v{vLane}')
I(f'v_and_b32 v{vT[7]}, 7, v{vLane}')
I(f'v_xor_b32 v{vT[4]}, v{vT[7]}, v{vT[6]}')
I(f'v_lshlrev_b32 v{vT[4]}, 4, v{vT[4]}')
I(f'v_lshl_add_u32 v{vT[4]}, v{vT[6]}, 7, v{vT[4]}')
I(f'v_add_u32 v{vSr}, s{sT0}, v{vT[4]}')
I(f's_lshl_b32 s{sT0}, s{sT3}, 12')
I(f's_add_u32 s{sT0}, s{sT0}, {CMB}')
I(f'v_add_u32 v{vCm}, s{sT0}, v{vL16}')
I(f's_lshl_b32 s{sT0}, s{sR2}, 6')
I(f's_lshl_b32 s{sT1}, s{sH}, 5')
I(f's_add_u32 s{sT0}, s{sT0}, s{sT1}')
I(f's_add_u32 s{sT0}, s{sT0}, s{sP}')
I(f'v_lshl_add_u32 v{vT[6]}, v{vT[6]}, 1, s{sT0}')
I(f'v_mul_u32_u24 v{vT[6]}, 896, v{vT[6]}')
I(f'v_lshl_add_u32 v{vOut}, v{vT[7]}, 4, v{vT[6]}')
I(f's_lshl_b32 s{sT1}, s{sN}, 6')
I(f'v_add_u32 v{vOut}, s{sT1}, v{vOut}')
I(f'v_lshlrev_b32 v{vGg}, 2, v{vT[5]}')
I(f's_lshr_b32 s{sT0}, s{sR2}, 2')
I(f's_lshl_b32 s{sT0}, s{sT0}, 10')
I(f's_bfe_u32 s{sT1}, s{sR2}, 0x10001')
I(f's_lshl_b32 s{sT1}, s{sT1}, 7')
I(f's_add_u32 s{sCn}, s{sT0}, s{sT1}')
I(f's_add_u32 s{sCn}, s{sCn}, {WS_CNT+128}')
I(f's_lshl_b32 s{sOb}, s{sR2}, 2')
I(f's_add_u32 s{sOb}, s{sOb}, s{sT3}')
I(f's_lshl_b32 s{sT2}, s{sOb}, 6')
I(f's_add_u32 s{sT2}, s{sT2}, {WS_G}')
I(f'v_add_u32 v{vGg}, s{sT2}, v{vGg}')
I(f's_lshl_b32 s{sOb}, s{sOb}, 15')
I(f's_lshl_b32 s{sT1}, s{sU}, 3')
I(f's_add_u32 s{sN}, s{sN}, s{sT1}')
I(f's_add_u32 s{sLh}, s{sCn}, 256')
vAcc = 104
def wfr(pos, t):
    return ('a', 32 + (pos * 4 + t) * 4) if pos < 5 else ('v', 56 + ((pos - 5) * 4 + t) * 4)
def p2_addr(half, pos):
    I(f's_add_u32 s{sT2}, s{sN}, {pos}')
    I(f's_and_b32 s{sT2}, s{sT2}, 15')
    I(f's_mul_i32 s{sT2}, s{sT2}, 3584')
    if half: I(f's_add_u32 s{sT2}, s{sT2}, 57344')
    for t in range(4): I(f'v_add_u32 v{vQ2+t}, s{sT2}, v{vP2 + (t ^ (2 * (pos & 1)))}')
def p2_frags(half, pos):
    p2_addr(half, pos)
    for t in range(4):
        c, r = wfr(pos, t)
        I(f'ds_read_b64_tr_b16 {c}[{r}:{r+1}], v{vQ2+t}')
        I(f'ds_read_b64_tr_b16 {c}[{r+2}:{r+3}], v{vQ2+t} offset:2048')
I(f's_cmp_eq_u32 s{sType}, 0')
I('s_cbranch_scc1 L_pubA')
for pos in range(8): p2_frags(0, pos)
e.all_vm()
I('s_barrier')
cnt_add(sTa, 'L_oaddB')
stamp('pub')
I(f's_cmp_ge_u32 s{sR}, 28')
I('s_cbranch_scc1 L_fin')
I('s_branch L_p2')
e.label('L_pubA')
e.all_vm()
e.all_lg()
I('s_barrier')
cnt_add(sTa, 'L_oaddA')
stamp('pub')
I(f's_cmp_ge_u32 s{sR}, 28')
I('s_cbranch_scc1 L_fin')
for op in wo_ops((0,)): op()
e.all_vm()
I('s_barrier')
stamp('wo')
for pos in range(8): p2_frags(0, pos)
e.label('L_p2')
stamp('pre0')
for half in range(2):
    cnt_wait(sCn if half == 0 else sLh, 8, f'L_wait{half}', 1 + half)
    stamp(f'wait{half}')
    otag = {}
    for pos in range(8):
        I(f's_add_u32 s{sT1}, s{sN}, {pos}')
        I(f's_and_b32 s{sT1}, s{sT1}, 15')
        I(f's_lshl_b32 s{sT1}, s{sT1}, 10')
        I(f's_add_u32 s{sT1}, s{sT1}, s{sOb}')
        otag[pos] = I(f'buffer_load_dwordx4 {a4(pos*4)}, v{vL16}, {srd(SWS)}, s{sT1} offen{" offset:0" if half == 0 else ""} sc1')
    if half == 0: I(f's_add_u32 s{sOb}, s{sOb}, 16384')
    else: gtag = I(f'buffer_load_dword v{vGg}, v{vGg}, {srd(SWS)}, 0 offen sc1')
    e.all_lg()
    for pos in range(8):
        e.need_vm(otag[pos])
        if pos == 0: stamp(f'h{half}p0')
        for t in range(4):
            c, r = wfr(pos, t)
            I(mf(vAcc + (half * 4 + t) * 4, f'{c}[{r}:{r+3}]', a4(pos * 4), pos == 0))
        if half == 0: p2_frags(1, pos)
    stamp(f'half{half}')
I(f's_lshl_b32 s{sT0}, s{sU}, 14')
I(f'v_add_u32 v{vT[4]}, s{sT0}, v{vCm}')
I(f'v_xor_b32 v{vT[5]}, 16384, v{vT[4]}')
vRx = 72
I(f's_cmp_lg_u32 s{sU}, 0')
I('s_cbranch_scc1 L_x1')
def xch(keep, give, lab):
    for k, t in enumerate(give):
        I(f'ds_write_b128 v{vT[4]}, {v4(vAcc+4*t)} offset:{k*2048}')
        I(f'ds_write_b128 v{vT[4]}, {v4(vAcc+16+4*t)} offset:{k*2048+1024}')
    e.all_lg()
    I('s_barrier')
    for k in range(4): rt_ = I(f'ds_read_b128 {v4(vRx+4*k)}, v{vT[5]} offset:{k*1024}')
    e.need_vm(gtag)
    for k, t in enumerate(keep):
        a, b = vAcc + 4 * t, vAcc + 16 + 4 * t
        e.need_lg(rt_ - 2 + 2 * k)
        for r in range(4): I(f'v_add_f32 v{a+r}, v{a+r}, v{vRx+8*k+r}')
        for r in range(4): I(f'v_add_f32 v{b+r}, v{b+r}, v{vRx+8*k+4+r}')
        for r in range(4): I(f'v_sub_f32 v{a+r}, v{a+r}, v{b+r}')
        for r in range(4): I(f'v_fma_f32 v{a+r}, v{a+r}, v{vGg}, v{b+r}')
        I(f'v_cvt_pk_bf16_f32 v{b}, v{a}, v{a+1}')
        I(f'v_cvt_pk_bf16_f32 v{b+1}, v{a+2}, v{a+3}')
        I(f'v_xor_b32 v{vT[k]}, {32*t}, v{vSw}')
        I(f'ds_write_b64 v{vT[k]}, {v2(b)}')
st_ = copy.deepcopy({k: getattr(e, k) for k in STATE})
xch((0, 1), (2, 3), 'a')
I('s_branch L_x2')
for k, v in copy.deepcopy(st_).items(): setattr(e, k, v)
e.label('L_x1')
xch((2, 3), (0, 1), 'b')
e.label('L_x2')
e.all_lg()
I('s_barrier')
I(f's_lshl_b32 s{sT0}, s{sU}, 10')
I(f'v_add_u32 v{vSr}, s{sT0}, v{vSr}')
tr = I(f'ds_read_b128 {v4(vF)}, v{vSr}')
I(f's_mul_i32 s{sT0}, s{sU}, 14336')
e.need_lg(tr)
I(f'buffer_store_dwordx4 {v4(vF)}, v{vOut}, {srd(SOUT)}, s{sT0} offen')
e.label('L_fin')
if DEBUG and 'hdbg' in OPT:
    stamp('end')
    I('s_memrealtime s[96:97]')
    I('s_waitcnt vmcnt(0) lgkmcnt(0)')
    wg, wv = OPT['hdbg'].split(':')
    I(f's_cmp_lg_u32 s2, {wg}')
    I('s_cbranch_scc1 L_end')
    I(f's_cmp_lg_u32 s{sWave}, {wv}')
    I('s_cbranch_scc1 L_end')
    I('s_mov_b64 exec, 1')
    I(f's_sub_u32 s96, s96, s{sStamp+1}')
    I(f'v_mov_b32 v2, s96')
    I(f'buffer_store_dword v2, off, {srd(SDBG)}, 0 offset:32')
    for k in range(1, 8):
        I(f's_sub_u32 s96, s{sStamp+2*k}, s{sStamp}')
        I(f'v_mov_b32 v2, s96')
        I(f'buffer_store_dword v2, off, {srd(SDBG)}, 0 offset:{32+4*k}')
elif DEBUG:
    stamp('end')
    I('s_waitcnt vmcnt(0) lgkmcnt(0)')
    I(f's_lshl_b32 s{sT0}, s2, 3')
    I(f's_add_u32 s{sT0}, s{sT0}, s{sWave}')
    I(f's_lshl_b32 s{sT0}, s{sT0}, 7')
    I(f's_add_u32 s{sT0}, s{sT0}, {WS_DBG}')
    I('s_mov_b64 exec, 1')
    for k in range(8):
        I(f'v_mov_b32 v2, s{sStamp+2*k}')
        I(f'buffer_store_dword v2, off, {srd(SWS)}, s{sT0} offset:{4*k}')
    I(f's_getreg_b32 s{sT1}, hwreg(HW_REG_XCC_ID)')
    I(f'v_mov_b32 v2, s{sT1}')
    I(f'buffer_store_dword v2, off, {srd(SWS)}, s{sT0} offset:40')
    I(f'v_mov_b32 v2, s{sType}')
    I(f'buffer_store_dword v2, off, {srd(SWS)}, s{sT0} offset:44')
    I(f'v_mov_b32 v2, s{sStamp+1}')
    I(f'buffer_store_dword v2, off, {srd(SWS)}, s{sT0} offset:48')
    I('s_memrealtime s[96:97]')
    I('s_waitcnt lgkmcnt(0)')
    I(f'v_mov_b32 v2, s96')
    I(f'buffer_store_dword v2, off, {srd(SWS)}, s{sT0} offset:52')
e.label('L_end')
I('s_endpgm')
e.raw(f""".section .rodata,"a"
.p2align 6
.amdhsa_kernel {KNAME}
  .amdhsa_next_free_vgpr 256
  .amdhsa_next_free_sgpr 102
  .amdhsa_accum_offset {NV}
  .amdhsa_group_segment_fixed_size 0
  .amdhsa_kernarg_size 80
  .amdhsa_user_sgpr_count 2
  .amdhsa_user_sgpr_kernarg_segment_ptr 1
  .amdhsa_system_sgpr_workgroup_id_x 1
.end_amdhsa_kernel""")
open(OUT, 'w').write(e.text())
print('instructions', e.ninstr, 'nop states', e.nnop, file=sys.stderr)
```

```python
import sys, copy, math, struct
sys.path.insert(0, 'work')
from asmlib import Em

KNAME = 'gated_mix__sliding_local_dilated__linear_attn_block__prompt_kernel'
OPT = {a.split('=')[0][2:]: (a.split('=')[1] if '=' in a else True) for a in sys.argv[1:] if a.startswith('--')}
DEBUG = 'dbg' in OPT
OUT = [a for a in sys.argv[1:] if not a.startswith('--')][0]

def f32(x): return struct.unpack('<I', struct.pack('<f', x))[0]

WS_KV = 4 << 20
WS_CNT = WS_KV + 65536
WS_G = WS_KV + 131072
WS_DBG = 6 << 20
WS_SIZE = 8 << 20
LDS_SIZE = 163840
WA = 0; XRA = 86016; HRA = 135168
WB = 0; XRB = 57344; WT = 114688; DUMMY = 150528; GW = 159744
CMB = 131072; STG = 118784
def unitB(u): return WB + (u & 7) * 7168 if u < 14 else WT + ((u - 14) % 5) * 7168
sSpin = 3
SX, SW, SWS, SWOA, SWOB, SOUT, SDBG, SGW = 4, 8, 12, 16, 20, 24, 28, 32
sStamp = 36
SX3 = 52
sType, sI, sJ, sWave, sSel, sP, sU, sH = 56, 57, 58, 59, 60, 61, 62, 63
sWo = 64; sXo = 71
sR, sM0a, sM0c, sXm = 78, 79, 80, 81
sTa, sTb = 82, 83
sSo2, sLo2 = 84, 85
sT0, sT1, sT2, sT3 = 86, 87, 88, 89
sCur = 90
sScale = 98
sSave = 100
SPIN_MAX = 1 << 19

def srd(n): return f's[{n}:{n+3}]'
def v4(n): return f'v[{n}:{n+3}]'
def v2(n): return f'v[{n}:{n+1}]'
def a4(n): return f'a[{n}:{n+3}]'

NV = 136
vLane = 1
vT = [2, 3, 4, 5, 6, 7, 8, 9]
vWs = 10
vHd = 13
vXd = 14
vWo = 16
vLa = 17
vXr = 18
vHr = 20
vBias = 22; vBias0 = 26
vMC01, vMC23, vMP01, vMP23, vPad = 30, 31, 32, 33, 34
vL16 = 35
vFlag = 36
vMisc = 37
vLa2 = 39
vF = 40

e = Em()
I = e.I
cur = 'A'
SEL = OPT['stamps'].split(',') if 'stamps' in OPT else ['kend', 'vend', 'gend', 'pub', 'wait1', 'half1', 'end']
def stamp(name):
    if DEBUG and name in SEL:
        k = 1 + SEL.index(name)
        assert k < 8
        e.Ix(f's_memtime s[{sStamp+2*k}:{sStamp+2*k+1}]')

e.raw(f"""; fused gated-mix kernel: QKV GEMM + local attention / linear attention + out projection
; @launch grid=(256,1,1) block=(512,1,1) lds={LDS_SIZE}
.amdgcn_target "amdgcn-amd-amdhsa--gfx950"
.text
.globl {KNAME}
.p2align 8
.type {KNAME},@function
{KNAME}:""")
I('s_cmp_ge_u32 s2, 0x100')
I('s_cbranch_scc1 L_end')
if DEBUG: I('s_memtime s[98:99]')
if DEBUG: I('s_memrealtime s[96:97]')
I('s_load_dwordx16 s[36:51], s[0:1], 0')
I('s_load_dwordx4 s[92:95], s[0:1], 64')
if 'nocodepf' not in OPT:
    I('s_getpc_b64 s[90:91]')
    e.label('L_pc')
    I('v_lshlrev_b32 v3, 7, v0')
    I('v_min_u32 v3, L_end-L_pc, v3')
    e.Ix('global_load_dword v135, v3, s[90:91]')
I(f'v_and_b32 v{vLane}, 63, v0')
I(f'v_lshrrev_b32 v2, 6, v0')
sC = sT3
I(f's_and_b32 s{sC}, s2, 7')
I(f's_lshr_b32 s{sR}, s2, 3')
I(f'v_readfirstlane_b32 s{sWave}, v2')
sRot = sTa
I(f's_and_b32 s{sType}, s{sC}, 1')
I(f's_lshr_b32 s{sT0}, s{sC}, 2')
I(f's_lshl_b32 s{sI}, s{sT0}, 3')
I(f's_and_b32 s{sT1}, s{sR}, 7')
I(f's_add_u32 s{sI}, s{sI}, s{sT1}')
I(f's_bfe_u32 s{sT0}, s{sC}, 0x10001')
I(f's_lshl_b32 s{sJ}, s{sT0}, 2')
I(f's_lshr_b32 s{sT2}, s{sR}, 3')
I(f's_add_u32 s{sJ}, s{sJ}, s{sT2}')
I(f's_lshl_b32 s{sT2}, s{sT2}, 1')
I(f's_add_u32 s{sRot}, s{sT1}, s{sT2}')
I(f's_and_b32 s{sT0}, s{sC}, 3')
I(f's_add_u32 s{sRot}, s{sRot}, s{sT0}')
if OPT.get('rot') == 'none': I(f's_mov_b32 s{sRot}, 0')
if OPT.get('rot') == 'i': I(f's_mov_b32 s{sRot}, s{sT1}')
if OPT.get('rot') == 'noc': I(f's_sub_u32 s{sRot}, s{sRot}, s{sT0}')
for _ in range(2):
    I(f's_sub_u32 s{sT0}, s{sRot}, 7')
    I(f's_cmp_ge_u32 s{sRot}, 7')
    I(f's_cselect_b32 s{sRot}, s{sT0}, s{sRot}')
I(f's_and_b32 s{sP}, s{sWave}, 1')
I(f's_bfe_u32 s{sH}, s{sWave}, 0x10001')
I(f's_lshr_b32 s{sU}, s{sWave}, 2')
I(f's_lshl_b32 s{sXo}, s{sRot}, 7')
I(f's_mul_i32 s{sWo}, s{sXo}, 1344')
q, g = vT[0], vT[1]
I(f'v_lshrrev_b32 v{q}, 3, v{vLane}')
I(f'v_lshrrev_b32 v{g}, 4, v{vLane}')
I(f'v_and_b32 v{vT[6]}, 7, v{vLane}')
I(f's_lshl_b32 s{sT0}, s{sI}, 7')
I(f's_lshr_b32 s{sT2}, s{sWave}, 1')
I(f's_lshl_b32 s{sT1}, s{sT2}, 5')
I(f's_add_u32 s{sT1}, s{sT1}, s{sT0}')
I(f's_add_u32 s{sT1}, s{sT1}, s{sP}')
I(f'v_lshl_add_u32 v{vT[2]}, v{q}, 1, s{sT1}')
I(f'v_mul_u32_u24 v{vT[2]}, 896, v{vT[2]}')
I(f'v_xor_b32 v{vT[4]}, v{vT[6]}, v{g}')
I(f'v_lshl_add_u32 v{vXd}, v{vT[4]}, 4, v{vT[2]}')
I(f'v_xor_b32 v{vXd+1}, 64, v{vXd}')
I(f'v_add_u32 v{vXd+1}, 14336, v{vXd+1}')
I(f's_mul_i32 s{sXm}, s{sType}, {(XRB - XRA) & 0xffffffff}')
I(f's_add_u32 s{sXm}, s{sXm}, {XRA}')
I(f's_lshl_b32 s{sT1}, s{sWave}, 11')
I(f's_add_u32 s{sSo2}, s{sXm}, s{sT1}')
sXw = sSo2
I(f'v_mov_b32 v{vT[7]}, 2688')
def woff(dst, s_u0, s_base):
    a, b, c, d = vT[2], vT[3], vT[4], vT[5]
    I(f'v_add_u32 v{a}, s{s_u0}, v{vLane}')
    I(f'v_mul_u32_u24 v{b}, 9363, v{a}')
    I(f'v_lshrrev_b32 v{b}, 16, v{b}')
    I(f'v_mad_i32_i24 v{a}, v{b}, -7, v{a}')
    I(f'v_bfe_u32 v{c}, v{b}, 1, 2')
    I(f'v_and_b32 v{d}, 1, v{b}')
    I(f'v_lshl_or_b32 v{c}, v{d}, 2, v{c}')
    I(f'v_and_or_b32 v{c}, v{b}, 56, v{c}')
    I(f'v_mad_u32_u24 v{c}, v{c}, v{vT[7]}, s{s_base}')
    I(f'v_lshl_add_u32 v{dst}, v{a}, 4, v{c}')
sJb = sLo2
I(f's_mul_i32 s{sJb}, s{sJ}, 112')
I(f's_lshl_b32 s{sT0}, s{sWave}, 6')
I(f's_lshl_b32 s{sM0a}, s{sWave}, 10')
I(f's_lshl_b32 s{sT2}, s{sType}, 31')
I(f's_add_u32 s{sT2}, s{sT2}, 896')
I(f's_add_u32 s{sT2}, s{sT2}, s{sJb}')
I(f's_cmp_eq_u32 s{sWave}, 7')
I(f's_cselect_b32 s{sT0}, 0, s{sT0}')
I(f's_cselect_b32 s{sT1}, s{sT2}, s{sJb}')
I(f's_cselect_b32 s{sT2}, s{sType}, 0')
woff(vWs, sT0, sT1)
I(f's_cmp_eq_u32 s{sT2}, 1')
I(f's_cselect_b32 s{sM0c}, {DUMMY}, s{sM0a}')
I(f's_cselect_b32 s{sSel}, 0, 1')
I(f's_mul_i32 s{sTa}, s{sType}, 896')
I(f's_add_u32 s{sTa}, s{sTa}, s{sWo}')
I(f'v_lshlrev_b32 v{vL16}, 4, v{vLane}')
I('s_waitcnt lgkmcnt(0)')
def mksrd(n, lo, size):
    I(f's_mov_b32 s{n}, s{lo}'); I(f's_mov_b32 s{n+1}, s{lo+1}'); I(f's_mov_b32 s{n+2}, {size}'); I(f's_mov_b32 s{n+3}, 0x20000')
mksrd(SX, 36, 1835008)
def x_op(si, hq):
    I(f's_add_u32 m0, s{sXw}, {(si % 3) * 16384 + hq * 1024}')
    return I(f'buffer_load_dwordx4 v{vXd+hq}, {srd(SX)}, s{sXo+si} offen lds')
x_op(0, 0); x_op(0, 1)
I(f's_cmp_eq_u32 s{sType}, 0')
I(f's_cselect_b32 s{SW}, s38, s44')
I(f's_cselect_b32 s{SW+1}, s39, s45')
I(f's_mov_b32 s{SW+2}, 1204224'); I(f's_mov_b32 s{SW+3}, 0x20000')
I(f's_mov_b32 m0, s{sM0c}')
TAG0 = I(f'buffer_load_dwordx4 v{vWs}, {srd(SW)}, s{sTa} offen lds')

def late_prologue():
    for p in range(1, 7):
        I(f's_add_u32 s{sXo+p}, s{sXo+p-1}, 128')
        I(f's_cmp_eq_u32 s{sXo+p}, 896')
        I(f's_cselect_b32 s{sXo+p}, 0, s{sXo+p}')
        I(f's_mul_i32 s{sWo+p}, s{sXo+p}, 1344')
    mksrd(SWS, 94, WS_SIZE); mksrd(SDBG, 92, 256)
    mksrd(SWOA, 40, 401408); mksrd(SWOB, 46, 401408); mksrd(SOUT, 50, 1835008); mksrd(SGW, 48, 896)
    if DEBUG:
        for k in range(16): I(f's_mov_b32 s{sStamp+k}, s98')
        I(f's_mov_b32 s{sStamp+1}, s96')

def zero_duty():
    I('s_cmp_ge_u32 s2, 8')
    I('s_cbranch_scc1 L_nozero' + cur)
    for k in range(4): I(f'v_mov_b32 v{104+k}, 0')
    I(f'v_lshlrev_b32 v{vT[2]}, 4, v0')
    I(f's_lshl_b32 s{sT0}, s2, 13')
    I(f's_add_u32 s{sT0}, s{sT0}, {WS_KV}')
    e.Ix(f'buffer_store_dwordx4 {v4(104)}, v{vT[2]}, {srd(SWS)}, s{sT0} offen sc1')
    I(f's_cmp_lg_u32 s{sWave}, 0')
    I('s_cbranch_scc1 L_nozero' + cur)
    I(f's_lshl_b32 s{sT0}, s2, 10')
    I(f's_add_u32 s{sT0}, s{sT0}, {WS_CNT}')
    e.Ix(f'buffer_store_dwordx4 {v4(104)}, v{vT[2]}, {srd(SWS)}, s{sT0} offen sc1')
    e.label('L_nozero' + cur)

nlab = [0]
def run_gemm(NS, nf, ops_of, frag, xrd, mfmas, issue_at, tag0, setup, fillers, hooks, extra=None, extra_vm=None, fill_rate=2, skip=()):
    NT = 2 * NS
    tags = {0: tag0}
    for si in range(1, NS):
        if isinstance(issue_at[si], int) and issue_at[si] < 0:
            for o in ops_of(si):
                tg = o()
                if tg is not None: tags[si] = tg
    setup()
    stamp('setup')
    e.need_vm(tags[0])
    I('s_barrier')
    stamp('b0')
    ftag, xtag = {}, {}
    for t in (0,1):
        xtag[t] = xrd(t)
        for f in range(nf): ftag[(t, f)] = frag(t, f)
    fq = []
    for t in range(NT):
        si, ks = t >> 1, t & 1
        more = t + 2 < NT
        if ('pre', t) in hooks: hooks[('pre', t)]()
        if ks == 0 and si + 1 < NS and (si + 1) not in skip:
            b = si + 1
            if ('prebar', b) in hooks: hooks[('prebar', b)]()
            bb = b
            while bb + 1 in skip: bb += 1
            e.need_vm(max(tags[x] for x in range(b, bb + 1)))
            I('s_barrier')
            stamp(f'b{b}')
            if ('bar', b) in hooks: hooks[('bar', b)]()
        vops = []
        for sj in range(1, NS):
            if issue_at[sj] == t:
                vops += [(sj, o) for o in ops_of(sj)]
            elif isinstance(issue_at[sj], tuple) and t in issue_at[sj]:
                ops = ops_of(sj)
                n = len(issue_at[sj]); k = issue_at[sj].index(t)
                lo, hi = len(ops) * k // n, len(ops) * (k + 1) // n
                vops += [(sj, o) for o in ops[lo:hi]]
        if extra_vm and t in extra_vm: vops += [(None, o) for o in extra_vm[t]]
        fq += fillers.get(t, [])
        e.need_lg(xtag.get(t))
        for f in range(nf):
            e.need_lg(ftag[(t, f)])
            for m in mfmas(t, f):
                I(m)
                for _ in range(fill_rate):
                    if fq: fq.pop(0)()
            if more: ftag[(t + 2, f)] = frag(t + 2, f)
            nv = (len(vops) + nf - f - 1) // (nf - f)
            for _ in range(nv):
                sj, o = vops.pop(0); tg = o()
                if sj is not None and tg is not None: tags[sj] = tg
        if more: xtag[t + 2] = xrd(t + 2)
        if extra: extra(t)
        if ('post', t) in hooks:
            while fq: fq.pop(0)()
            hooks[('post', t)]()
    while fq: fq.pop(0)()

def mf(d, a, b, first):
    return f'v_mfma_f32_16x16x32_bf16 {v4(d)}, {a}, {b}, {"0" if first else v4(d)}'

def flag_store_hook():
    I('s_cmp_ge_u32 s2, 8')
    I('s_cbranch_scc1 L_nf' + cur)
    I(f's_cmp_lg_u32 s{sWave}, 0')
    I('s_cbranch_scc1 L_nf' + cur)
    I(f's_lshl_b32 s{sT0}, s2, 2')
    I(f'v_mov_b32 v{vFlag}, 1')
    I(f's_mov_b64 exec, 1')
    e.Ix(f'buffer_store_dword v{vFlag}, off, {srd(SDBG)}, s{sT0} sc1')
    I(f's_mov_b64 exec, -1')
    e.label('L_nf' + cur)

def flag_load_hook():
    I(f'v_lshlrev_b32 v{vMisc}, 2, v{vLane}')
    I(f's_cmp_lg_u32 s{sWave}, 0')
    I('s_cbranch_scc1 L_nl' + cur)
    I(f's_mov_b64 exec, 0xff')
    e.Ix(f'buffer_load_dword v{vFlag}, v{vMisc}, {srd(SDBG)}, 0 offen sc1')
    I(f's_mov_b64 exec, -1')
    e.label('L_nl' + cur)

def flag_check_hook():
    I(f's_cmp_lg_u32 s{sWave}, 0')
    I('s_cbranch_scc1 L_nc' + cur)
    I(f's_mov_b64 exec, 0xff')
    I(f's_mov_b32 s{sSpin}, 0')
    e.label('L_fc' + cur)
    I(f'v_cmp_eq_u32 vcc, 0, v{vFlag}')
    e.nop(4)
    I('s_cbranch_vccz L_fok' + cur)
    I(f's_add_u32 s{sSpin}, s{sSpin}, 1')
    I(f's_cmp_ge_u32 s{sSpin}, {SPIN_MAX}')
    I('s_cbranch_scc1 L_fok' + cur)
    I('s_sleep 2')
    e.Ix(f'buffer_load_dword v{vFlag}, v{vMisc}, {srd(SDBG)}, 0 offen sc1')
    I('s_waitcnt vmcnt(0)')
    I('s_branch L_fc' + cur)
    e.label('L_fok' + cur)
    I(f's_mov_b64 exec, -1')
    e.label('L_nc' + cur)

def lane_addrs():
    a, b, c = vT[2], vT[3], vT[4]
    q, g = vT[0], vT[1]
    I(f'v_and_b32 v{q}, 15, v{vLane}')
    I(f'v_lshrrev_b32 v{g}, 4, v{vLane}')
    I(f'v_bfe_u32 v{a}, v{vLane}, 2, 2')
    I(f'v_lshl_add_u32 v{a}, v{g}, 2, v{a}')
    I(f'v_mul_u32_u24 v{a}, 224, v{a}')
    I(f'v_and_b32 v{b}, 3, v{vLane}')
    I(f'v_lshl_add_u32 v{vLa}, v{b}, 3, v{a}')
    I(f's_mul_i32 s{sT0}, s{sH}, 56')
    I(f'v_add_u32 v{vLa}, s{sT0}, v{vLa}')
    I(f'v_lshrrev_b32 v{a}, 1, v{q}')
    I(f'v_xor_b32 v{a}, v{a}, v{g}')
    I(f'v_lshlrev_b32 v{a}, 4, v{a}')
    I(f'v_lshl_add_u32 v{a}, v{q}, 7, v{a}')
    I(f's_and_b32 s{sT0}, s{sWave}, 5')
    I(f's_lshl_b32 s{sT0}, s{sT0}, 11')
    I(f's_add_u32 s{sT0}, s{sT0}, s{sXm}')
    I(f'v_add_u32 v{vXr}, s{sT0}, v{a}')
    I(f'v_xor_b32 v{vXr+1}, 64, v{vXr}')

def setup2(out):
    a, b, c = vT[2], vT[3], vT[4]
    g = vT[1]
    A = lambda s: out.append(lambda: I(s))
    A(f'v_cmp_gt_u32 vcc, 3, v{g}')
    A(f'v_cndmask_b32 v{vPad}, 0, -1, vcc')
    A(f'v_lshrrev_b32 v{a}, 3, v{vLane}')
    A(f'v_mul_u32_u24 v{a}, 896, v{a}')
    A(f'v_lshlrev_b32 v{b}, 1, v{g}')
    A(f'v_and_b32 v{c}, 7, v{vLane}')
    A(f'v_xor_b32 v{b}, v{b}, v{c}')
    A(f'v_lshl_add_u32 v{vWo}, v{b}, 4, v{a}')
    def w3():
        I(f's_lshr_b32 s{sT1}, s{sR}, 2')
        I(f's_lshl_b32 s{sT1}, s{sT1}, 7')
        I(f's_cmp_ge_u32 s{sR}, 28')
        I(f's_cselect_b32 s{sT1}, 0x80000000, s{sT1}')
        I(f'v_add_u32 v{vWo}, s{sT1}, v{vWo}')
    out.append(w3)

def wo_init():
    I(f's_and_b32 s{sT0}, s{sR}, 3')
    I(f's_lshl_b32 s{sT0}, s{sT0}, 4')
    I(f's_add_u32 s{sT0}, s{sT0}, s{sWave}')
    I(f's_lshl_b32 s{sLo2}, s{sT0}, 10')
    I(f's_mul_i32 s{sSo2}, s{sLo2}, 7')

def wo_ops(halves=(0, 1)):
    ops = []
    for half in halves:
        for qq in range(7):
            def f(half=half):
                I(f's_add_u32 m0, s{sLo2}, {half*57344}')
                tg = I(f'buffer_load_dwordx4 v{vWo}, {srd(SWOA if half == 0 else SWOB)}, s{sSo2} offen lds')
                I(f's_add_u32 s{sLo2}, s{sLo2}, 8192')
                I(f's_cmp_ge_u32 s{sLo2}, 57344')
                I(f's_cselect_b32 s{sTb}, 57344, 0')
                I(f's_sub_u32 s{sLo2}, s{sLo2}, s{sTb}')
                I(f's_mul_i32 s{sSo2}, s{sLo2}, 7')
                return tg
            ops.append(f)
    return ops

def spread(ops, ts):
    n = len(ts)
    return {t: ops[len(ops) * k // n: len(ops) * (k + 1) // n] for k, t in enumerate(ts)}

def xlane(op, m, m2, out):
    out.append(lambda: I(f'v_mov_b32 v{m2}, v{m}'))
    out.append(lambda: I(f'v_permlane16_swap_b32 v{m}, v{m2}'))
    out.append(lambda: I(f'{op} v{m}, v{m}, v{m2}'))
    out.append(lambda: I(f'v_mov_b32 v{m2}, v{m}'))
    out.append(lambda: I(f'v_permlane32_swap_b32 v{m}, v{m2}'))
    out.append(lambda: I(f'{op} v{m}, v{m}, v{m2}'))

def interleave(lists):
    out = []
    for k in range(max(len(l) for l in lists)):
        for l in lists:
            if k < len(l): out.append(l[k])
    return out

sO = [94, 95]
def o_offsets():
    I(f's_lshl_b32 s{sT0}, s{sI}, 3')
    I(f's_and_b32 s{sT1}, s{sWave}, 5')
    I(f's_add_u32 s{sT0}, s{sT0}, s{sT1}')
    I(f's_lshl_b32 s{sT0}, s{sT0}, 5')
    I(f's_lshl_b32 s{sT1}, s{sType}, 4')
    I(f's_add_u32 s{sT0}, s{sT0}, s{sT1}')
    I(f's_lshl_b32 s{sT1}, s{sJ}, 1')
    I(f's_add_u32 s{sT0}, s{sT0}, s{sT1}')
    I(f's_add_u32 s{sT0}, s{sT0}, s{sH}')
    I(f's_lshl_b32 s{sO[0]}, s{sT0}, 10')
    I(f's_add_u32 s{sO[1]}, s{sO[0]}, 65536')

def pack_T(out, dst, acc0, acc1):
    out.append(lambda: I(f'v_cvt_pk_bf16_f32 v{dst}, v{acc0}, v{acc0+1}'))
    out.append(lambda: I(f'v_cvt_pk_bf16_f32 v{dst+1}, v{acc0+2}, v{acc0+3}'))
    out.append(lambda: I(f'v_cvt_pk_bf16_f32 v{dst+2}, v{acc1}, v{acc1+1}'))
    out.append(lambda: I(f'v_cvt_pk_bf16_f32 v{dst+3}, v{acc1+2}, v{acc1+3}'))
    out.append(lambda: I(f'v_and_b32 v{dst+2}, v{vPad}, v{dst+2}'))
    out.append(lambda: I(f'v_and_b32 v{dst+3}, v{vPad}, v{dst+3}'))

def Oacc(T, dt): return vO + (T * 2 + dt) * 4
def o_finish(T, inv):
    d = vOp + 4 * T
    for dt in range(2):
        a = Oacc(T, dt)
        for r in range(4): I(f'v_mul_f32 v{a+r}, v{inv}, v{a+r}')
        I(f'v_cvt_pk_bf16_f32 v{d+2*dt}, v{a}, v{a+1}')
        I(f'v_cvt_pk_bf16_f32 v{d+2*dt+1}, v{a+2}, v{a+3}')
    I(f'v_and_b32 v{d+2}, v{vPad}, v{d+2}')
    I(f'v_and_b32 v{d+3}, v{vPad}, v{d+3}')
    I(f'buffer_store_dwordx4 {v4(d)}, v{vL16}, {srd(SWS)}, s{sO[T]} offen sc1')

def cnt_add(sreg_off, lab):
    I(f's_cmp_lg_u32 s{sWave}, 0')
    I(f's_cbranch_scc1 {lab}')
    I(f'v_mov_b32 v{vFlag}, 1')
    I('s_mov_b64 exec, 1')
    e.Ix(f'buffer_atomic_add v{vFlag}, off, {srd(SWS)}, s{sreg_off}')
    I('s_mov_b64 exec, -1')
    e.label(lab)

def poll(sreg_off, n, lab):
    I('s_mov_b64 exec, 1')
    I(f's_mov_b32 s{sSpin}, 0')
    e.label(lab)
    e.Ix(f'buffer_load_dword v{vFlag}, off, {srd(SWS)}, s{sreg_off} sc1')
    I(f's_add_u32 s{sSpin}, s{sSpin}, 1')
    I('s_waitcnt vmcnt(0)')
    I(f'v_readfirstlane_b32 s{sT3}, v{vFlag}')
    I(f's_cmp_ge_u32 s{sT3}, {n}')
    I(f's_cbranch_scc1 {lab}_k')
    I(f's_cmp_ge_u32 s{sSpin}, {SPIN_MAX}')
    I(f's_cbranch_scc1 {lab}_k')
    I('s_sleep 1')
    I(f's_branch {lab}')
    e.label(lab + '_k')
    I('s_mov_b64 exec, -1')

def cnt_wait(sreg_off, n, lab, wv=1):
    I(f's_cmp_lg_u32 s{sWave}, {wv}')
    I(f's_cbranch_scc1 {lab}_d')
    poll(sreg_off, n, lab)
    e.label(lab + '_d')
    I('s_barrier')


I(f's_cmp_lg_u32 s{sType}, 0')
I('s_cbranch_scc1 L_typeB')
STATE = ('t', 'w', 'cread', 'stread', 'vm_issued', 'vm_done', 'lg_issued', 'lg_done')
snap = copy.deepcopy({k: getattr(e, k) for k in STATE})
ISS = {1: -1, 2: 0}
for si in range(3, 7): ISS[si] = (2 * si - 5, 2 * si - 4)
if OPT.get('iss') == 'late':
    for si in range(2, 7): ISS[si] = (2 * si - 4, 2 * si - 3)

cur = 'A'
I(f's_add_u32 s{sT0}, s{sWave}, 1')
I(f's_sub_u32 s{sT1}, s{sWave}, 6')
I(f's_add_u32 s{sT2}, s{sJb}, 896')
I(f's_add_u32 s{sT3}, s{sJb}, 1792')
I(f's_cmp_ge_u32 s{sWave}, 6')
I(f's_cselect_b32 s{sT0}, s{sT1}, s{sT0}')
I(f's_cselect_b32 s{sT2}, s{sT3}, s{sT2}')
I(f's_lshl_b32 s{sT0}, s{sT0}, 6')
woff(vWs + 1, sT0, sT2)
I(f's_add_u32 m0, s{sM0a}, 8192')
I(f'buffer_load_dwordx4 v{vWs+1}, {srd(SW)}, s{sWo} offen lds')
I(f's_add_u32 s{sT0}, s{sWave}, 2')
I(f's_min_u32 s{sT0}, s{sT0}, 6')
I(f's_lshl_b32 s{sT0}, s{sT0}, 6')
woff(vWs + 2, sT0, sT3)
I(f's_sub_u32 s{sT1}, s{sWave}, 5')
I(f's_cmp_ge_u32 s{sWave}, 5')
I(f's_cselect_b32 s{sTb}, s{sT1}, 3')
I(f's_cselect_b32 s{sSel}, 0, 1')
I(f's_cselect_b64 s[{sSave}:{sSave+1}], -1, 0')
I(f's_cselect_b32 s{SX3}, s{SX}, s{SW}')
I(f's_cselect_b32 s{SX3+1}, s{SX+1}, s{SW+1}')
I(f's_cselect_b32 s{SX3+2}, s{SX+2}, s{SW+2}')
I(f's_mov_b32 s{SX3+3}, 0x20000')
I(f's_and_b32 s{sT1}, s{sTb}, 2')
I(f's_lshl_b32 s{sT1}, s{sT1}, 5')
I(f's_and_b32 s{sT2}, s{sTb}, 1')
I(f's_add_u32 s{sT1}, s{sT1}, s{sT2}')
I(f's_lshl_b32 s{sT0}, s{sI}, 7')
I(f's_add_u32 s{sT1}, s{sT1}, s{sT0}')
I(f'v_lshl_add_u32 v{vT[2]}, v{vT[0]}, 1, s{sT1}')
I(f'v_mul_u32_u24 v{vT[2]}, 896, v{vT[2]}')
I(f'v_and_b32 v{vT[4]}, 6, v{vT[0]}')
I(f'v_xor_b32 v{vT[4]}, v{vT[6]}, v{vT[4]}')
I(f'v_lshl_add_u32 v{vHd}, v{vT[4]}, 4, v{vT[2]}')
I(f'v_add_u32 v{vHd}, 0xffffc800, v{vHd}')
I(f'v_cndmask_b32 v{vWs+2}, v{vWs+2}, v{vHd}, s[{sSave}:{sSave+1}]')
sHm = sLo2
I(f's_lshl_b32 s{sTb}, s{sTb}, 10')
I(f's_add_u32 s{sHm}, s{sTb}, {HRA}')
I(f's_add_u32 s{sM0c}, s{sM0a}, 16384')
I(f's_cmp_eq_u32 s{sSel}, 0')
I(f's_cselect_b32 s{sM0c}, s{sHm}, s{sM0c}')
def opsA(si, first=False):
    base = WA + (si & 3) * 21504; hr = (si & 3) * 4096
    def fh():
        nlab[0] += 1
        I(f's_cmp_lg_u32 s{sWave}, 4')
        I(f's_cbranch_scc1 L_nh{nlab[0]}')
        I(f's_add_u32 m0, s{sHm}, {hr}')
        e.Ix(f'buffer_load_dwordx4 v{vHd}, {srd(SX)}, s{sXo+si} offen lds')
        e.label(f'L_nh{nlab[0]}')
    def fk(k):
        I(f's_add_u32 m0, s{sM0a}, {base + 8192 * k}')
        return I(f'buffer_load_dwordx4 v{vWs+k}, {srd(SW)}, s{sWo+si} offen lds')
    def f2():
        I(f's_mul_i32 m0, s{sSel}, {(base - hr) & 0xffffffff}')
        I(f's_cmp_lg_u32 s{sSel}, 0')
        I(f's_cselect_b32 s{sTa}, s{sWo+si}, s{sXo+si}')
        I(f's_add_u32 m0, m0, s{sM0c}')
        if hr: I(f's_add_u32 m0, m0, {hr}')
        return I(f'buffer_load_dwordx4 v{vWs+2}, {srd(SX3)}, s{sTa} offen lds')
    if first: return [fh, f2]
    return [fh, lambda: fk(0), lambda: fk(1), f2, lambda: x_op(si, 0), lambda: x_op(si, 1)]
for o in opsA(0, True): tagA0 = o()
late_prologue()
stamp('ld0')
def setupA():
    zero_duty()
    lane_addrs()
    q, g, c, d = vT[0], vT[1], vT[2], vT[3]
    I(f'v_add_u32 v{vLa2}, 43008, v{vLa}')
    I(f'v_and_b32 v{c}, 6, v{q}')
    I(f'v_xor_b32 v{c}, v{c}, v{g}')
    I(f'v_lshlrev_b32 v{c}, 4, v{c}')
    I(f'v_and_b32 v{d}, 7, v{q}')
    I(f'v_lshl_add_u32 v{c}, v{d}, 7, v{c}')
    I(f's_lshl_b32 s{sT0}, s{sU}, 1')
    I(f's_add_u32 s{sT0}, s{sT0}, s{sP}')
    I(f's_lshl_b32 s{sT0}, s{sT0}, 10')
    I(f's_add_u32 s{sT0}, s{sT0}, {HRA}')
    I(f'v_add_u32 v{vHr}, s{sT0}, v{c}')
    I(f'v_xor_b32 v{vHr+1}, 64, v{vHr}')
def setupA2(out):
    q, g, c, d = vT[0], vT[1], vT[2], vT[3]
    A = lambda s: out.append(lambda: I(s))
    A(f'v_mov_b32 v{vT[5]}, 0xff800000')
    A(f's_or_b32 s{sT2}, s{sI}, s{sU}')
    for r in range(4):
        A(f'v_lshl_add_u32 v{c}, v{g}, 2, {r}')
        A(f'v_cmp_le_u32 s[{sCur+2*r}:{sCur+2*r+1}], v{c}, v{q}')
        A(f'v_sub_u32 v{d}, v{q}, v{c}')
        A(f'v_and_b32 v{d}, 15, v{d}')
        A(f'v_cmp_gt_u32 vcc, 8, v{d}')
        A(f'v_cndmask_b32 v{vBias+r}, v{vT[5]}, 0, vcc')
        def blk(r=r):
            I(f's_and_b64 s[{sSave}:{sSave+1}], vcc, s[{sCur+2*r}:{sCur+2*r+1}]')
            I(f's_cmp_eq_u32 s{sT2}, 0')
            I(f's_cselect_b64 s[{sSave}:{sSave+1}], s[{sSave}:{sSave+1}], vcc')
        out.append(blk)
        A(f'v_cndmask_b32 v{vBias0+r}, v{vT[5]}, 0, s[{sSave}:{sSave+1}]')
    for (mc, mp, r) in ((vMC01, vMP01, 0), (vMC23, vMP23, 2)):
        A(f'v_mov_b32 v{c}, 0xffff')
        A(f'v_cndmask_b32 v{mc}, 0, v{c}, s[{sCur+2*r}:{sCur+2*r+1}]')
        A(f'v_mov_b32 v{c}, 0xffff0000')
        A(f'v_cndmask_b32 v{d}, 0, v{c}, s[{sCur+2*r+2}:{sCur+2*r+3}]')
        A(f'v_or_b32 v{mc}, v{mc}, v{d}')
        A(f'v_not_b32 v{mp}, v{mc}')
    A(f's_mov_b32 s{sScale}, 0x{f32(28 ** -0.5 * math.log2(math.e)):08x}')


def afr(t, f): return ((t & 1) * 6 + f) * 4
def axr(t, T): return 48 + ((t & 1) * 3 + T) * 4
def fragA(t, f):
    si, ks = t >> 1, t & 1
    off = (si & 1) * 21504 + (f >> 1) * 7168 + ks * 3584 + (f & 1) * 32
    va = vLa2 if si & 2 else vLa
    r = afr(t, f)
    I(f'ds_read_b64_tr_b16 a[{r}:{r+1}], v{va} offset:{off}')
    return I(f'ds_read_b64_tr_b16 a[{r+2}:{r+3}], v{va} offset:{off+112}')
def xrdA(t):
    si, ks = t >> 1, t & 1
    for T in range(2): I(f'ds_read_b128 {a4(axr(t, T))}, v{vXr+ks} offset:{(si % 3) * 16384 + T * 4096}')
    return I(f'ds_read_b128 {a4(axr(t, 2))}, v{vHr+ks} offset:{(si & 3) * 4096}')
def accQ(T, ct): return 40 + (T * 2 + ct) * 4
def accK(T, ct): return 56 + (T * 2 + ct) * 4
def accV(T, ct): return 80 + (T * 2 + ct) * 4
def mfA(t, f):
    fr = a4(afr(t, f)); ct = f & 1
    if f < 2: return [mf(accQ(T, ct), fr, a4(axr(t, T)), t == 0) for T in range(2)]
    if f < 4: return [mf(accK(T, ct), fr, a4(axr(t, T)), t == 0) for T in range(3)]
    return [mf(accV(T, ct), a4(axr(t, T)), fr, t == 0) for T in range(3)]
fA2 = []
setupA2(fA2); setup2(fA2)
hooksA = {('bar', 2): flag_store_hook, ('pre', 6): flag_load_hook}
run_gemm(7, 6, opsA, fragA, xrdA, mfA, ISS, tagA0, setupA, {1: fA2}, hooksA)
stamp('gend')
def Kp(T): return 104 + 4 * T
def Qp(T): return 116 + 4 * T
def Vp(dt): return 124 + 6 * dt
vS = 40; vPf = 56; vInv = 64; vTm = 68; vO = 80; vOp = 96
def softmax_valu(out, T):
    sc, sp, tm = vS + 8 * T, vS + 8 * T + 4, vTm + 4 * T
    bias = vBias if T == 1 else vBias0
    A = lambda s: out.append(lambda: I(s))
    for r in range(4): A(f'v_cndmask_b32 v{sc+r}, v{sp+r}, v{sc+r}, s[{sCur+2*r}:{sCur+2*r+1}]')
    for r in range(4): A(f'v_fma_f32 v{sc+r}, v{sc+r}, s{sScale}, v{bias+r}')
    m, m2 = tm, tm + 1
    A(f'v_max3_f32 v{m}, v{sc}, v{sc+1}, v{sc+2}')
    A(f'v_max_f32 v{m}, v{m}, v{sc+3}')
    xlane('v_max_f32', m, m2, out)
    for r in range(4): A(f'v_sub_f32 v{sc+r}, v{sc+r}, v{m}')
    for r in range(4): A(f'v_exp_f32 v{sc+r}, v{sc+r}')
    A(f'v_add_f32 v{m}, v{sc}, v{sc+1}')
    A(f'v_add_f32 v{m2}, v{sc+2}, v{sc+3}')
    A(f'v_cvt_pk_bf16_f32 v{tm+2}, v{sc}, v{sc+1}')
    A(f'v_add_f32 v{m}, v{m}, v{m2}')
    A(f'v_cvt_pk_bf16_f32 v{tm+3}, v{sc+2}, v{sc+3}')
    xlane('v_add_f32', m, m2, out)
    pf = vPf + 4 * T
    A(f'v_and_b32 v{pf}, v{vMP01}, v{tm+2}')
    A(f'v_and_b32 v{pf+1}, v{vMP23}, v{tm+3}')
    A(f'v_and_b32 v{pf+2}, v{vMC01}, v{tm+2}')
    A(f'v_and_b32 v{pf+3}, v{vMC23}, v{tm+3}')
    A(f'v_rcp_f32 v{vInv+T}, v{m}')

flag_check_hook()
wo_init()
I('s_barrier')
wl = wo_ops((1,))
l = []
for T in (0, 2, 1): pack_T(l, Kp(T), accK(T, 0), accK(T, 1))
for T in range(2): pack_T(l, Qp(T), accQ(T, 0), accQ(T, 1))
for T in range(2):
    sc, sp = vS + 8 * T, vS + 8 * T + 4
    l.append(lambda sc=sc, T=T: I(mf(sc, v4(Kp(T)), v4(Qp(T)), True)))
    l.append(lambda sp=sp, T=T: I(mf(sp, v4(Kp(0) if T == 1 else Kp(2)), v4(Qp(T)), True)))
for dt in range(2):
    for T in (2, 0, 1):
        a = accV(T, dt); d = Vp(dt) + (0 if T == 2 else 2 + 2 * T)
        l.append(lambda a=a, d=d: I(f'v_cvt_pk_bf16_f32 v{d}, v{a}, v{a+1}'))
        l.append(lambda a=a, d=d: I(f'v_cvt_pk_bf16_f32 v{d+1}, v{a+2}, v{a+3}'))
vl = []
for T in range(2):
    x = []; softmax_valu(x, T); vl.append(x)
l += interleave(vl)
for k, x in enumerate(l):
    x()
    if k % 6 == 0 and wl: wl.pop(0)()
for T in range(2):
    for dt in range(2): I(mf(Oacc(T, dt), v4(Vp(dt) + 2 * T), v4(vPf + 4 * T), True))
while wl: wl.pop(0)()
o_offsets()
for T in range(2): o_finish(T, vInv + T)
I('s_branch L_publish')

for k, v in copy.deepcopy(snap).items(): setattr(e, k, v)
cur = 'B'
e.label('L_typeB')
late_prologue()
stamp('ld0')
vGa = 20; vKm = 21; vOne = 26; vG = [124, 128]
sOne = 90; sKVc = 92; sGt = 93
SECB = [896, 1792, 0]
def opsB(si):
    pos = si % 7
    def fw():
        I(f's_mul_i32 m0, s{sSel}, {unitB(si)}')
        sec = SECB[si // 7]
        if sec: I(f's_add_u32 s{sTa}, s{sWo+pos}, {sec}')
        I(f's_add_u32 m0, m0, s{sM0c}')
        return I(f'buffer_load_dwordx4 v{vWs}, {srd(SW)}, s{sTa if sec else sWo+pos} offen lds')
    if si < 7: return [fw, lambda: x_op(si, 0), lambda: x_op(si, 1)]
    return [fw]
def setupB():
    zero_duty()
    I(f's_cmp_lg_u32 s{sWave}, 0')
    I('s_cbranch_scc1 L_nogw')
    I(f's_mov_b32 exec_hi, 0xffffff')
    I(f's_mov_b32 m0, {GW}')
    e.Ix(f'buffer_load_dwordx4 v{vL16}, {srd(SGW)}, 0 offen lds')
    I(f's_mov_b32 m0, {GW+896}')
    e.Ix(f'buffer_load_dwordx4 v{vL16}, {srd(SGW)}, 0 offen lds')
    I(f's_mov_b64 exec, -1')
    e.label('L_nogw')
    lane_addrs()
fB2 = []
def setupB2(out):
    q, g = vT[0], vT[1]
    A = lambda s: out.append(lambda: I(s))
    A(f'v_cmp_gt_u32 vcc, 12, v{q}')
    A(f'v_cndmask_b32 v{vKm}, 0, -1, vcc')
    A(f'v_cmp_eq_u32 s[{sOne}:{sOne+1}], 12, v{q}')
    A(f'v_mov_b32 v{vOne}, 0x3f803f80')
    A(f'v_lshlrev_b32 v{vGa}, 4, v{g}')
    A(f'v_add_u32 v{vGa}, s{sXo}, v{vGa}')
    A(f'v_add_u32 v{vGa}, {GW}, v{vGa}')
    def gs():
        I(f's_add_u32 s{sGt}, s{sH}, 1')
        I(f's_cmp_eq_u32 s{sWave}, s{sJ}')
        I(f's_cselect_b32 s{sGt}, s{sGt}, 0')
    out.append(gs)
    A(f's_mov_b32 s{sScale}, 0x{f32(math.log2(math.e)):08x}')
    A(f's_mov_b32 s{sScale+1}, 0x{f32(1e-6):08x}')
setupB2(fB2); setup2(fB2)
def xreg(T, t): return (T * 14 + t) * 4
class LB: base = 0
def bfr(t, f): return vF + ((t & 1) * 2 + f) * 4
def fragB(t, f):
    si, ks = t >> 1, t & 1
    off = unitB(si) + ks * 3584 + f * 32
    if off >= WT and LB.base == 0:
        I(f'v_add_u32 v{vLa}, {WT}, v{vLa}')
        LB.base = WT
    o = off - LB.base
    r = bfr(t, f)
    I(f'ds_read_b64_tr_b16 {v2(r)}, v{vLa} offset:{o}')
    return I(f'ds_read_b64_tr_b16 {v2(r+2)}, v{vLa} offset:{o+112}')
def xrdB(t):
    if t >= 14: return None
    si, ks = t >> 1, t & 1
    for T in range(2): tag = I(f'ds_read_b128 {a4(xreg(T, t))}, v{vXr+ks} offset:{(si % 3) * 16384 + T * 4096}')
    return tag
def baccK(T, ct): return 56 + (T * 2 + ct) * 4
def baccV(T, ct): return 72 + (T * 2 + ct) * 4
def baccQ(T, ct): return 88 + (T * 2 + ct) * 4
baccG = 104
def mfB(t, f):
    seg, tt = divmod(t, 14)
    fr = v4(bfr(t, f))
    if seg < 2:
        acc = baccK if seg == 0 else baccV
        return [mf(acc(T, f), a4(xreg(T, tt)), fr, tt == 0) for T in range(2)]
    return [mf(baccQ(T, f), fr, a4(xreg(T, tt)), tt == 0) for T in range(2)]
gmark = {}
def gate_step(t):
    if t < 27: return
    nlab[0] += 1; L = nlab[0]
    I(f's_cmp_eq_u32 s{sGt}, 0')
    I(f's_cbranch_scc1 L_g{L}')
    if t >= 28:
        I(f's_waitcnt lgkmcnt({min(15, e.lg_issued - gmark[t])})')
        I(f's_cmp_eq_u32 s{sGt}, 1')
        I(f's_cbranch_scc1 L_g{L}a')
        I(mf(baccG, v4(vG[t & 1]), a4(xreg(1, t - 28)), t == 28))
        I(f's_branch L_g{L}b')
        e.label(f'L_g{L}a')
        I(mf(baccG, v4(vG[t & 1]), a4(xreg(0, t - 28)), t == 28))
        e.label(f'L_g{L}b')
    if t < 41:
        e.Ix(f'ds_read_b128 {v4(vG[(t + 1) & 1])}, v{vGa} offset:{(t + 1 - 28) * 64}')
        gmark[t + 1] = e.lg_issued
    e.label(f'L_g{L}')
def phi(out, a, tmp):
    A = lambda s: out.append(lambda: I(s))
    for r in range(4): A(f'v_mul_f32 v{tmp+r}, s{sScale}, v{a+r}')
    for r in range(4): A(f'v_exp_f32 v{tmp+r}, -|v{tmp+r}|')
    for r in range(4): A(f'v_add_f32 v{a+r}, 1.0, v{a+r}')
    for r in range(4): A(f'v_max_f32 v{a+r}, v{a+r}, v{tmp+r}')
    for r in range(4): A(f'v_add_f32 v{a+r}, s{sScale+1}, v{a+r}')
vPK = 108; vVV = 116; vKV = 56; vRd = 72
bt = {}
fB14, fB28, fB30 = [], [], []
def mkB():
    A = lambda s: fB14.append(lambda: I(s))
    for ct in range(2):
        for T in range(2): phi(fB14, baccK(T, ct), vT[0] if T == 0 else vT[4])
        for T in range(2):
            a = baccK(T, ct); d = vPK + 4 * ct + 2 * T
            A(f'v_cvt_pk_bf16_f32 v{d}, v{a}, v{a+1}')
            A(f'v_cvt_pk_bf16_f32 v{d+1}, v{a+2}, v{a+3}')
    for k in range(4): A(f'v_and_b32 v{vPK+4+k}, v{vKm}, v{vPK+4+k}')
    A(f's_lshl_b32 s{sT0}, s{sU}, 1')
    A(f's_add_u32 s{sT0}, s{sT0}, s{sP}')
    A(f's_lshl_b32 s{sT0}, s{sT0}, 13')
    A(f's_lshl_b32 s{sT1}, s{sH}, 12')
    A(f's_add_u32 s{sT0}, s{sT0}, s{sT1}')
    A(f'v_add_u32 v{vMisc+1}, s{sT0}, v{vL16}')
    A(f's_lshl_b32 s{sT0}, s{sWave}, 10')
    A(f'v_lshlrev_b32 v{vMisc+2}, 2, v{vLane}')
    A(f'v_add_u32 v{vMisc+2}, s{sT0}, v{vMisc+2}')
    A(f's_lshl_b32 s{sT1}, s{sJ}, 13')
    A(f's_add_u32 s{sT1}, s{sT1}, {WS_KV}')
    A(f's_lshl_b32 s{sKVc}, s{sJ}, 10')
    A(f's_add_u32 s{sKVc}, s{sKVc}, {WS_CNT}')
    A = lambda s: fB28.append(lambda: I(s))
    for c in (1, 0):
        for T in range(2):
            a = baccV(T, c); d = vVV + 4 * c + 2 * T
            A(f'v_cvt_pk_bf16_f32 v{d}, v{a}, v{a+1}')
            A(f'v_cvt_pk_bf16_f32 v{d+1}, v{a+2}, v{a+3}')
        if c:
            for k in range(4): A(f'v_cndmask_b32 v{vVV+4+k}, v{vVV+4+k}, v{vOne}, s[{sOne}:{sOne+1}]')
    for c in range(2):
        for a in range(2): A(mf(vKV + 4 * (c * 2 + a), v4(vPK + 4 * a), v4(vVV + 4 * c), True))
    for k in range(4):
        def w(k=k): bt['tw'] = I(f'ds_write_b128 v{vMisc+1}, {v4(vKV+4*k)} offset:{k*1024}')
        fB28.append(w)
    rt = {}
    for m in range(4):
        for src in range(4):
            def rd(m=m, src=src): rt[(m, src)] = I(f'ds_read_b32 v{vRd + m * 4 + src}, v{vMisc+2} offset:{src*8192 + m*256}')
            fB30.append(rd)
    for m in range(4): fB30.append(lambda m=m: red(m, rt))
    fB30.append(lambda: stamp('kvend'))
def red(m, rt):
    b = vRd + m * 4
    e.need_lg(rt[(m, 3)])
    I(f'v_add_f32 v{b}, v{b}, v{b+1}')
    I(f'v_add_f32 v{b+2}, v{b+2}, v{b+3}')
    I(f'v_add_f32 v{b}, v{b}, v{b+2}')
    bt['at'] = I(f'buffer_atomic_add_f32 v{b}, v{vMisc+2}, {srd(SWS)}, s{sT1} offen offset:{m*256}')
mkB()
def B_img():
    stamp('vend')
    for x in fB28: x()
    flag_check_hook()
    e.need_lg(bt['tw'])
    I('s_barrier')
    for x in fB30: x()
def B_sig0(): e.need_vm(bt['at'])
def B_sig1(): cnt_add(sKVc, 'L_kvadd')
SIGB = int(OPT.get('sigb', 17))
issB = dict(ISS)
issB.update({7: 9, 8: 9, 9: 10, 10: 10, 11: 11, 12: 12, 13: 13})
issB.update({14: 14, 15: 15, 16: 16, 17: 17, 18: 18, 19: 32, 20: 32})
QD = int(OPT.get('qd', 0))
if QD: issB.update({14: QD, 15: QD, 16: QD + 1, 17: QD + 2, 18: QD + 3})
hooksB = {('bar', 2): flag_store_hook, ('pre', 6): flag_load_hook, ('post', 13): lambda: stamp('kend'), ('pre', 14): wo_init,
          ('post', 27): B_img, ('prebar', SIGB): B_sig0, ('bar', SIGB): B_sig1}
xv = spread(wo_ops((1,)), list(range(int(OPT.get('wo1', 19)), int(OPT.get('wo1', 19)) + int(OPT.get('wo1n', 7)))))
_w0 = spread(wo_ops((0,)), list(range(int(OPT.get('wo0', 33)), int(OPT.get('wo0', 33)) + 7)))
for _k, _v in _w0.items(): xv[_k] = xv.get(_k, []) + _v
run_gemm(21, 2, opsB, fragB, xrdB, mfB, issB, TAG0, setupB, {1: fB2, 14: fB14}, hooksB, gate_step, extra_vm=xv,
         fill_rate=int(OPT.get('fillB', 3)), skip=eval(OPT.get('skipB', '(9,11,12,13,15,16,18,20)')))
stamp('gend')
vPQ = 40
def phiQ(T):
    l = []
    for ct in range(2): phi(l, baccQ(T, ct), vT[0] if ct == 0 else vT[4])
    pack_T(l, vPQ + 4 * T, baccQ(T, 0), baccQ(T, 1))
    for x in l: x()
phiQ(0)
e.all_vm()
cnt_wait(sKVc, 16, 'L_kvwait')
stamp('kvwait')
I(f's_lshl_b32 s{sT1}, s{sJ}, 13')
I(f's_lshl_b32 s{sT2}, s{sH}, 12')
I(f's_add_u32 s{sT1}, s{sT1}, s{sT2}')
I(f's_add_u32 s{sT1}, s{sT1}, {WS_KV}')
vKVf = 56
kt = {}
for k in range(4):
    kt[k] = I(f'buffer_load_dwordx4 {v4(vKVf+4*k)}, v{vL16}, {srd(SWS)}, s{sT1} offen offset:{k*1024} sc1')
phiQ(1)
I(f'v_lshlrev_b32 v{vMisc}, 2, v{vLane}')
I(f's_cmp_eq_u32 s{sGt}, 0')
I('s_cbranch_scc1 L_nog')
a = baccG
I(f'v_mul_f32 v{a}, s{sScale}, v{a}')
I(f'v_exp_f32 v{a}, -v{a}')
I(f's_lshl_b32 s{sT0}, s{sI}, 3')
I(f'v_add_f32 v{a}, 1.0, v{a}')
I(f's_add_u32 s{sT0}, s{sT0}, s{sJ}')
I(f'v_rcp_f32 v{a}, v{a}')
I(f's_lshl_b32 s{sT0}, s{sT0}, 6')
I(f's_add_u32 s{sT0}, s{sT0}, {WS_G}')
I('s_mov_b64 exec, 0xffff')
e.Ix(f'buffer_store_dword v{a}, v{vMisc}, {srd(SWS)}, s{sT0} offen sc1')
I('s_mov_b64 exec, -1')
e.label('L_nog')
stamp('phiq')
o_offsets()
vAf = 48; vZf = 108; vDen = 112; vO = 72; vOp = 120
for c in range(2):
    for a in range(2):
        k = c * 2 + a
        e.need_vm(kt[k])
        d = vAf + c * 4 + 2 * a
        I(f'v_cvt_pk_bf16_f32 v{d}, v{vKVf+4*k}, v{vKVf+4*k+1}')
        I(f'v_cvt_pk_bf16_f32 v{d+1}, v{vKVf+4*k+2}, v{vKVf+4*k+3}')
for k in range(4):
    I(f'v_mov_b32_dpp v{vZf+k}, v{vAf+4+k} row_newbcast:12 row_mask:0xf bank_mask:0xf')
for T in range(2):
    pq = v4(vPQ + 4 * T)
    I(mf(vDen + 4 * T, v4(vZf), pq, True))
    for c in range(2): I(mf(Oacc(T, c), v4(vAf + c * 4), pq, True))
for T in range(2):
    dn = vDen + 4 * T
    I(f'v_add_f32 v{dn}, s{sScale+1}, v{dn}')
    I(f'v_rcp_f32 v{dn}, v{dn}')
    o_finish(T, dn)

e.label('L_publish')
e.fence(2)
stamp('ost')
sR2, sN, sCn, sOb, sLh = 64, 65, 66, 68, 69
I(f's_lshr_b32 s{sT0}, s{sI}, 1')
I(f's_lshl_b32 s{sT0}, s{sT0}, 10')
I(f's_and_b32 s{sT1}, s{sI}, 1')
I(f's_lshl_b32 s{sT2}, s{sType}, 1')
I(f's_add_u32 s{sT1}, s{sT1}, s{sT2}')
I(f's_lshl_b32 s{sT1}, s{sT1}, 7')
I(f's_add_u32 s{sTa}, s{sT0}, s{sT1}')
I(f's_add_u32 s{sTa}, s{sTa}, {WS_CNT+128}')
I(f's_and_b32 s{sT0}, s{sR}, 3')
I(f's_and_b32 s{sR2}, s2, 7')
I(f's_lshl_b32 s{sR2}, s{sR2}, 2')
I(f's_add_u32 s{sR2}, s{sR2}, s{sT0}')
I(f's_lshr_b32 s{sN}, s{sR}, 2')
I(f's_lshl_b32 s{sN}, s{sN}, 1')
vP2 = 10; vQ2 = 18; vOut = 22; vGg = 23; vSw = 24; vSr = 25; vCm = 26
gq, rr = vT[1], vT[2]
I(f'v_lshrrev_b32 v{gq}, 4, v{vLane}')
I(f'v_bfe_u32 v{rr}, v{vLane}, 2, 2')
I(f'v_lshl_add_u32 v{vT[3]}, v{gq}, 2, v{rr}')
I(f'v_bfe_u32 v{vT[4]}, v{vT[3]}, 1, 2')
I(f'v_lshlrev_b32 v{vT[3]}, 7, v{vT[3]}')
I(f'v_and_b32 v{vT[5]}, 3, v{vLane}')
I(f'v_lshl_add_u32 v{vT[3]}, v{vT[5]}, 3, v{vT[3]}')
for t in range(4):
    I(f'v_xor_b32 v{vT[5]}, {t}, v{vT[4]}')
    I(f'v_lshl_add_u32 v{vP2+t}, v{vT[5]}, 5, v{vT[3]}')
I(f's_and_b32 s{sT3}, s{sWave}, 3')
I(f'v_and_b32 v{vT[5]}, 15, v{vLane}')
I(f's_lshl_b32 s{sT0}, s{sT3}, 11')
I(f's_add_u32 s{sT0}, s{sT0}, {STG}')
I(f'v_lshrrev_b32 v{vT[6]}, 1, v{gq}')
I(f'v_and_b32 v{vT[7]}, 7, v{vT[5]}')
I(f'v_xor_b32 v{vT[6]}, v{vT[6]}, v{vT[7]}')
I(f'v_lshlrev_b32 v{vT[6]}, 4, v{vT[6]}')
I(f'v_lshl_add_u32 v{vT[6]}, v{vT[5]}, 7, v{vT[6]}')
I(f'v_and_b32 v{vT[7]}, 1, v{gq}')
I(f'v_lshl_add_u32 v{vT[6]}, v{vT[7]}, 3, v{vT[6]}')
I(f'v_add_u32 v{vSw}, s{sT0}, v{vT[6]}')
I(f'v_lshrrev_b32 v{vT[6]}, 3, v{vLane}')
I(f'v_and_b32 v{vT[7]}, 7, v{vLane}')
I(f'v_xor_b32 v{vT[4]}, v{vT[7]}, v{vT[6]}')
I(f'v_lshlrev_b32 v{vT[4]}, 4, v{vT[4]}')
I(f'v_lshl_add_u32 v{vT[4]}, v{vT[6]}, 7, v{vT[4]}')
I(f'v_add_u32 v{vSr}, s{sT0}, v{vT[4]}')
I(f's_lshl_b32 s{sT0}, s{sT3}, 12')
I(f's_add_u32 s{sT0}, s{sT0}, {CMB}')
I(f'v_add_u32 v{vCm}, s{sT0}, v{vL16}')
I(f's_lshl_b32 s{sT0}, s{sR2}, 6')
I(f's_lshl_b32 s{sT1}, s{sH}, 5')
I(f's_add_u32 s{sT0}, s{sT0}, s{sT1}')
I(f's_add_u32 s{sT0}, s{sT0}, s{sP}')
I(f'v_lshl_add_u32 v{vT[6]}, v{vT[6]}, 1, s{sT0}')
I(f'v_mul_u32_u24 v{vT[6]}, 896, v{vT[6]}')
I(f'v_lshl_add_u32 v{vOut}, v{vT[7]}, 4, v{vT[6]}')
I(f's_lshl_b32 s{sT1}, s{sN}, 6')
I(f'v_add_u32 v{vOut}, s{sT1}, v{vOut}')
I(f'v_lshlrev_b32 v{vGg}, 2, v{vT[5]}')
I(f's_lshr_b32 s{sT0}, s{sR2}, 2')
I(f's_lshl_b32 s{sT0}, s{sT0}, 10')
I(f's_bfe_u32 s{sT1}, s{sR2}, 0x10001')
I(f's_lshl_b32 s{sT1}, s{sT1}, 7')
I(f's_add_u32 s{sCn}, s{sT0}, s{sT1}')
I(f's_add_u32 s{sCn}, s{sCn}, {WS_CNT+128}')
I(f's_lshl_b32 s{sOb}, s{sR2}, 2')
I(f's_add_u32 s{sOb}, s{sOb}, s{sT3}')
I(f's_lshl_b32 s{sT2}, s{sOb}, 6')
I(f's_add_u32 s{sT2}, s{sT2}, {WS_G}')
I(f'v_add_u32 v{vGg}, s{sT2}, v{vGg}')
I(f's_lshl_b32 s{sOb}, s{sOb}, 15')
I(f's_lshl_b32 s{sT1}, s{sU}, 3')
I(f's_add_u32 s{sN}, s{sN}, s{sT1}')
I(f's_add_u32 s{sLh}, s{sCn}, 256')
vAcc = 104
def wfr(pos, t):
    return ('a', 32 + (pos * 4 + t) * 4) if pos < 5 else ('v', 56 + ((pos - 5) * 4 + t) * 4)
def p2_addr(half, pos):
    I(f's_add_u32 s{sT2}, s{sN}, {pos}')
    I(f's_and_b32 s{sT2}, s{sT2}, 15')
    I(f's_mul_i32 s{sT2}, s{sT2}, 3584')
    if half: I(f's_add_u32 s{sT2}, s{sT2}, 57344')
    for t in range(4): I(f'v_add_u32 v{vQ2+t}, s{sT2}, v{vP2 + (t ^ (2 * (pos & 1)))}')
def p2_frags(half, pos):
    p2_addr(half, pos)
    for t in range(4):
        c, r = wfr(pos, t)
        I(f'ds_read_b64_tr_b16 {c}[{r}:{r+1}], v{vQ2+t}')
        I(f'ds_read_b64_tr_b16 {c}[{r+2}:{r+3}], v{vQ2+t} offset:2048')
I(f's_cmp_eq_u32 s{sType}, 0')
I('s_cbranch_scc1 L_pubA')
NP0 = 8
MERGE = 'nomerge' not in OPT
if MERGE:
    I(f's_cmp_lg_u32 s{sWave}, 1')
    I('s_cbranch_scc1 L_pw_d')
    I(f's_cmp_ge_u32 s{sR}, 28')
    I('s_cbranch_scc1 L_pw_d')
    poll(sCn, 8, 'L_pw')
    e.label('L_pw_d')
for pos in range(NP0): p2_frags(0, pos)
e.all_vm()
I('s_barrier')
cnt_add(sTa, 'L_oaddB')
stamp('pub')
I(f's_cmp_ge_u32 s{sR}, 28')
I('s_cbranch_scc1 L_fin')
I('s_branch L_p2b' if MERGE else 's_branch L_p2')
e.label('L_pubA')
e.all_vm()
e.all_lg()
I('s_barrier')
cnt_add(sTa, 'L_oaddA')
stamp('pub')
I(f's_cmp_ge_u32 s{sR}, 28')
I('s_cbranch_scc1 L_fin')
for op in wo_ops((0,)): op()
e.all_vm()
I('s_barrier')
stamp('wo')
for pos in range(NP0): p2_frags(0, pos)
e.label('L_p2')
stamp('pre0')
for half in range(2):
    if half == 0:
        I(f's_cmp_lg_u32 s{sWave}, 1')
        I('s_cbranch_scc1 L_wait0_d')
        poll(sCn, 8, 'L_wait0')
        e.label('L_wait0_d')
        for pos in range(NP0, 8): p2_frags(0, pos)
        I('s_barrier')
        e.label('L_p2b')
    else:
        cnt_wait(sLh, 8, 'L_wait1', 2)
    stamp(f'wait{half}')
    otag = {}
    for pos in range(8):
        I(f's_add_u32 s{sT1}, s{sN}, {pos}')
        I(f's_and_b32 s{sT1}, s{sT1}, 15')
        I(f's_lshl_b32 s{sT1}, s{sT1}, 10')
        I(f's_add_u32 s{sT1}, s{sT1}, s{sOb}')
        otag[pos] = I(f'buffer_load_dwordx4 {a4(pos*4)}, v{vL16}, {srd(SWS)}, s{sT1} offen{" offset:0" if half == 0 else ""} sc1')
    if half == 0: I(f's_add_u32 s{sOb}, s{sOb}, 16384')
    else: gtag = I(f'buffer_load_dword v{vGg}, v{vGg}, {srd(SWS)}, 0 offen sc1')
    e.all_lg()
    for pos in range(8):
        e.need_vm(otag[pos])
        if pos == 0: stamp(f'h{half}p0')
        for t in range(4):
            c, r = wfr(pos, t)
            I(mf(vAcc + (half * 4 + t) * 4, f'{c}[{r}:{r+3}]', a4(pos * 4), pos == 0))
        if half == 0: p2_frags(1, pos)
    stamp(f'half{half}')
I(f's_lshl_b32 s{sT0}, s{sU}, 14')
I(f'v_add_u32 v{vT[4]}, s{sT0}, v{vCm}')
I(f'v_xor_b32 v{vT[5]}, 16384, v{vT[4]}')
vRx = 72
I(f's_cmp_lg_u32 s{sU}, 0')
I('s_cbranch_scc1 L_x1')
def xch(keep, give, lab):
    for k, t in enumerate(give):
        I(f'ds_write_b128 v{vT[4]}, {v4(vAcc+4*t)} offset:{k*2048}')
        I(f'ds_write_b128 v{vT[4]}, {v4(vAcc+16+4*t)} offset:{k*2048+1024}')
    e.all_lg()
    I('s_barrier')
    for k in range(4): rt_ = I(f'ds_read_b128 {v4(vRx+4*k)}, v{vT[5]} offset:{k*1024}')
    e.need_vm(gtag)
    for k, t in enumerate(keep):
        a, b = vAcc + 4 * t, vAcc + 16 + 4 * t
        e.need_lg(rt_ - 2 + 2 * k)
        for r in range(4): I(f'v_add_f32 v{a+r}, v{a+r}, v{vRx+8*k+r}')
        for r in range(4): I(f'v_add_f32 v{b+r}, v{b+r}, v{vRx+8*k+4+r}')
        for r in range(4): I(f'v_sub_f32 v{a+r}, v{a+r}, v{b+r}')
        for r in range(4): I(f'v_fma_f32 v{a+r}, v{a+r}, v{vGg}, v{b+r}')
        I(f'v_cvt_pk_bf16_f32 v{b}, v{a}, v{a+1}')
        I(f'v_cvt_pk_bf16_f32 v{b+1}, v{a+2}, v{a+3}')
        I(f'v_xor_b32 v{vT[k]}, {32*t}, v{vSw}')
        I(f'ds_write_b64 v{vT[k]}, {v2(b)}')
st_ = copy.deepcopy({k: getattr(e, k) for k in STATE})
xch((0, 1), (2, 3), 'a')
I('s_branch L_x2')
for k, v in copy.deepcopy(st_).items(): setattr(e, k, v)
e.label('L_x1')
xch((2, 3), (0, 1), 'b')
e.label('L_x2')
e.all_lg()
I('s_barrier')
I(f's_lshl_b32 s{sT0}, s{sU}, 10')
I(f'v_add_u32 v{vSr}, s{sT0}, v{vSr}')
tr = I(f'ds_read_b128 {v4(vF)}, v{vSr}')
I(f's_mul_i32 s{sT0}, s{sU}, 14336')
e.need_lg(tr)
I(f'buffer_store_dwordx4 {v4(vF)}, v{vOut}, {srd(SOUT)}, s{sT0} offen')
e.label('L_fin')
if DEBUG and 'hdbg' in OPT:
    stamp('end')
    I('s_memrealtime s[96:97]')
    I('s_waitcnt vmcnt(0) lgkmcnt(0)')
    wg, wv = OPT['hdbg'].split(':')
    I(f's_cmp_lg_u32 s2, {wg}')
    I('s_cbranch_scc1 L_end')
    I(f's_cmp_lg_u32 s{sWave}, {wv}')
    I('s_cbranch_scc1 L_end')
    I('s_mov_b64 exec, 1')
    I(f's_sub_u32 s96, s96, s{sStamp+1}')
    I(f'v_mov_b32 v2, s96')
    I(f'buffer_store_dword v2, off, {srd(SDBG)}, 0 offset:32')
    for k in range(1, 8):
        I(f's_sub_u32 s96, s{sStamp+2*k}, s{sStamp}')
        I(f'v_mov_b32 v2, s96')
        I(f'buffer_store_dword v2, off, {srd(SDBG)}, 0 offset:{32+4*k}')
elif DEBUG:
    stamp('end')
    I('s_waitcnt vmcnt(0) lgkmcnt(0)')
    I(f's_lshl_b32 s{sT0}, s2, 3')
    I(f's_add_u32 s{sT0}, s{sT0}, s{sWave}')
    I(f's_lshl_b32 s{sT0}, s{sT0}, 7')
    I(f's_add_u32 s{sT0}, s{sT0}, {WS_DBG}')
    I('s_mov_b64 exec, 1')
    for k in range(8):
        I(f'v_mov_b32 v2, s{sStamp+2*k}')
        I(f'buffer_store_dword v2, off, {srd(SWS)}, s{sT0} offset:{4*k}')
    I(f's_getreg_b32 s{sT1}, hwreg(HW_REG_XCC_ID)')
    I(f'v_mov_b32 v2, s{sT1}')
    I(f'buffer_store_dword v2, off, {srd(SWS)}, s{sT0} offset:40')
    I(f'v_mov_b32 v2, s{sType}')
    I(f'buffer_store_dword v2, off, {srd(SWS)}, s{sT0} offset:44')
    I(f'v_mov_b32 v2, s{sStamp+1}')
    I(f'buffer_store_dword v2, off, {srd(SWS)}, s{sT0} offset:48')
    I('s_memrealtime s[96:97]')
    I('s_waitcnt lgkmcnt(0)')
    I(f'v_mov_b32 v2, s96')
    I(f'buffer_store_dword v2, off, {srd(SWS)}, s{sT0} offset:52')
e.label('L_end')
I('s_endpgm')
e.raw(f""".section .rodata,"a"
.p2align 6
.amdhsa_kernel {KNAME}
  .amdhsa_next_free_vgpr 256
  .amdhsa_next_free_sgpr 102
  .amdhsa_accum_offset {NV}
  .amdhsa_group_segment_fixed_size 0
  .amdhsa_kernarg_size 80
  .amdhsa_user_sgpr_count 2
  .amdhsa_user_sgpr_kernarg_segment_ptr 1
  .amdhsa_system_sgpr_workgroup_id_x 1
.end_amdhsa_kernel""")
open(OUT, 'w').write(e.text())
print('instructions', e.ninstr, 'nop states', e.nnop, file=sys.stderr)
```

```python
import sys, copy, math, struct
sys.path.insert(0, 'work')
from asmlib import Em

KNAME = 'gated_mix__sliding_local_dilated__linear_attn_block__prompt_kernel'
OPT = {a.split('=')[0][2:]: (a.split('=')[1] if '=' in a else True) for a in sys.argv[1:] if a.startswith('--')}
DEBUG = 'dbg' in OPT
OUT = [a for a in sys.argv[1:] if not a.startswith('--')][0]

def f32(x): return struct.unpack('<I', struct.pack('<f', x))[0]

WS_KV = 4 << 20
WS_CNT = WS_KV + 65536
WS_G = WS_KV + 131072
WS_DBG = 6 << 20
WS_SIZE = 8 << 20
LDS_SIZE = 163840
WA = 0; XRA = 86016; HRA = 135168
WB = 0; XRB = 57344; WT = 114688; DUMMY = 150528; GW = 159744
CMB = 131072; STG = 118784
def unitB(u): return WB + (u & 7) * 7168 if u < 14 else WT + ((u - 14) % 5) * 7168
sSpin = 3
SX, SW, SWS, SWOA, SWOB, SOUT, SDBG, SGW = 4, 8, 12, 16, 20, 24, 28, 32
sStamp = 36
SX3 = 52
sType, sI, sJ, sWave, sSel, sP, sU, sH = 56, 57, 58, 59, 60, 61, 62, 63
sWo = 64; sXo = 71
sR, sM0a, sM0c, sXm = 78, 79, 80, 81
sTa, sTb = 82, 83
sSo2, sLo2 = 84, 85
sT0, sT1, sT2, sT3 = 86, 87, 88, 89
sCur = 90
sScale = 98
sSave = 100
SPIN_MAX = 1 << 19

def srd(n): return f's[{n}:{n+3}]'
def v4(n): return f'v[{n}:{n+3}]'
def v2(n): return f'v[{n}:{n+1}]'
def a4(n): return f'a[{n}:{n+3}]'

NV = 136
vLane = 1
vT = [2, 3, 4, 5, 6, 7, 8, 9]
vWs = 10
vHd = 13
vXd = 14
vWo = 16
vLa = 17
vXr = 18
vHr = 20
vBias = 22; vBias0 = 26
vMC01, vMC23, vMP01, vMP23, vPad = 30, 31, 32, 33, 34
vL16 = 35
vFlag = 36
vMisc = 37
vLa2 = 39
vF = 40

e = Em()
I = e.I
cur = 'A'
SEL = OPT['stamps'].split(',') if 'stamps' in OPT else ['kend', 'vend', 'gend', 'pub', 'wait1', 'half1', 'end']
def stamp(name):
    if DEBUG and name in SEL:
        k = 1 + SEL.index(name)
        assert k < 8
        e.Ix(f's_memtime s[{sStamp+2*k}:{sStamp+2*k+1}]')

e.raw(f"""; fused gated-mix kernel: QKV GEMM + local attention / linear attention + out projection
; @launch grid=(256,1,1) block=(512,1,1) lds={LDS_SIZE}
.amdgcn_target "amdgcn-amd-amdhsa--gfx950"
.text
.globl {KNAME}
.p2align 8
.type {KNAME},@function
{KNAME}:""")
I('s_cmp_ge_u32 s2, 0x100')
I('s_cbranch_scc1 L_end')
if DEBUG: I('s_memtime s[98:99]')
if DEBUG: I('s_memrealtime s[96:97]')
I('s_load_dwordx16 s[36:51], s[0:1], 0')
I('s_load_dwordx4 s[92:95], s[0:1], 64')
if 'nocodepf' not in OPT:
    I('s_getpc_b64 s[90:91]')
    e.label('L_pc')
    I('v_lshlrev_b32 v3, 7, v0')
    I('v_min_u32 v3, L_end-L_pc, v3')
    e.Ix('global_load_dword v135, v3, s[90:91]')
I(f'v_and_b32 v{vLane}, 63, v0')
I(f'v_lshrrev_b32 v2, 6, v0')
sC = sT3
I(f's_and_b32 s{sC}, s2, 7')
I(f's_lshr_b32 s{sR}, s2, 3')
I(f'v_readfirstlane_b32 s{sWave}, v2')
sRot = sTa
I(f's_and_b32 s{sType}, s{sC}, 1')
I(f's_lshr_b32 s{sT0}, s{sC}, 2')
I(f's_lshl_b32 s{sI}, s{sT0}, 3')
I(f's_and_b32 s{sT1}, s{sR}, 7')
I(f's_add_u32 s{sI}, s{sI}, s{sT1}')
I(f's_bfe_u32 s{sT0}, s{sC}, 0x10001')
I(f's_lshl_b32 s{sJ}, s{sT0}, 2')
I(f's_lshr_b32 s{sT2}, s{sR}, 3')
I(f's_add_u32 s{sJ}, s{sJ}, s{sT2}')
I(f's_lshl_b32 s{sT2}, s{sT2}, 1')
I(f's_add_u32 s{sRot}, s{sT1}, s{sT2}')
I(f's_and_b32 s{sT0}, s{sC}, 3')
I(f's_add_u32 s{sRot}, s{sRot}, s{sT0}')
if OPT.get('rot') == 'none': I(f's_mov_b32 s{sRot}, 0')
if OPT.get('rot') == 'i': I(f's_mov_b32 s{sRot}, s{sT1}')
if OPT.get('rot') == 'noc': I(f's_sub_u32 s{sRot}, s{sRot}, s{sT0}')
for _ in range(2):
    I(f's_sub_u32 s{sT0}, s{sRot}, 7')
    I(f's_cmp_ge_u32 s{sRot}, 7')
    I(f's_cselect_b32 s{sRot}, s{sT0}, s{sRot}')
I(f's_and_b32 s{sP}, s{sWave}, 1')
I(f's_bfe_u32 s{sH}, s{sWave}, 0x10001')
I(f's_lshr_b32 s{sU}, s{sWave}, 2')
I(f's_lshl_b32 s{sXo}, s{sRot}, 7')
I(f's_mul_i32 s{sWo}, s{sXo}, 1344')
q, g = vT[0], vT[1]
I(f'v_lshrrev_b32 v{q}, 3, v{vLane}')
I(f'v_lshrrev_b32 v{g}, 4, v{vLane}')
I(f'v_and_b32 v{vT[6]}, 7, v{vLane}')
I(f's_lshl_b32 s{sT0}, s{sI}, 7')
I(f's_lshr_b32 s{sT2}, s{sWave}, 1')
I(f's_lshl_b32 s{sT1}, s{sT2}, 5')
I(f's_add_u32 s{sT1}, s{sT1}, s{sT0}')
I(f's_add_u32 s{sT1}, s{sT1}, s{sP}')
I(f'v_lshl_add_u32 v{vT[2]}, v{q}, 1, s{sT1}')
I(f'v_mul_u32_u24 v{vT[2]}, 896, v{vT[2]}')
I(f'v_xor_b32 v{vT[4]}, v{vT[6]}, v{g}')
I(f'v_lshl_add_u32 v{vXd}, v{vT[4]}, 4, v{vT[2]}')
I(f'v_xor_b32 v{vXd+1}, 64, v{vXd}')
I(f'v_add_u32 v{vXd+1}, 14336, v{vXd+1}')
I(f's_mul_i32 s{sXm}, s{sType}, {(XRB - XRA) & 0xffffffff}')
I(f's_add_u32 s{sXm}, s{sXm}, {XRA}')
I(f's_lshl_b32 s{sT1}, s{sWave}, 11')
I(f's_add_u32 s{sSo2}, s{sXm}, s{sT1}')
sXw = sSo2
I(f'v_mov_b32 v{vT[7]}, 2688')
def woff(dst, s_u0, s_base):
    a, b, c, d = vT[2], vT[3], vT[4], vT[5]
    I(f'v_add_u32 v{a}, s{s_u0}, v{vLane}')
    I(f'v_mul_u32_u24 v{b}, 9363, v{a}')
    I(f'v_lshrrev_b32 v{b}, 16, v{b}')
    I(f'v_mad_i32_i24 v{a}, v{b}, -7, v{a}')
    I(f'v_bfe_u32 v{c}, v{b}, 1, 2')
    I(f'v_and_b32 v{d}, 1, v{b}')
    I(f'v_lshl_or_b32 v{c}, v{d}, 2, v{c}')
    I(f'v_and_or_b32 v{c}, v{b}, 56, v{c}')
    I(f'v_mad_u32_u24 v{c}, v{c}, v{vT[7]}, s{s_base}')
    I(f'v_lshl_add_u32 v{dst}, v{a}, 4, v{c}')
sJb = sLo2
I(f's_mul_i32 s{sJb}, s{sJ}, 112')
I(f's_lshl_b32 s{sT0}, s{sWave}, 6')
I(f's_lshl_b32 s{sM0a}, s{sWave}, 10')
I(f's_lshl_b32 s{sT2}, s{sType}, 31')
I(f's_add_u32 s{sT2}, s{sT2}, 896')
I(f's_add_u32 s{sT2}, s{sT2}, s{sJb}')
I(f's_cmp_eq_u32 s{sWave}, 7')
I(f's_cselect_b32 s{sT0}, 0, s{sT0}')
I(f's_cselect_b32 s{sT1}, s{sT2}, s{sJb}')
I(f's_cselect_b32 s{sT2}, s{sType}, 0')
woff(vWs, sT0, sT1)
I(f's_cmp_eq_u32 s{sT2}, 1')
I(f's_cselect_b32 s{sM0c}, {DUMMY}, s{sM0a}')
I(f's_cselect_b32 s{sSel}, 0, 1')
I(f's_mul_i32 s{sTa}, s{sType}, 896')
I(f's_add_u32 s{sTa}, s{sTa}, s{sWo}')
I(f'v_lshlrev_b32 v{vL16}, 4, v{vLane}')
I('s_waitcnt lgkmcnt(0)')
def mksrd(n, lo, size):
    I(f's_mov_b32 s{n}, s{lo}'); I(f's_mov_b32 s{n+1}, s{lo+1}'); I(f's_mov_b32 s{n+2}, {size}'); I(f's_mov_b32 s{n+3}, 0x20000')
mksrd(SX, 36, 1835008)
def x_op(si, hq):
    I(f's_add_u32 m0, s{sXw}, {(si % 3) * 16384 + hq * 1024}')
    return I(f'buffer_load_dwordx4 v{vXd+hq}, {srd(SX)}, s{sXo+si} offen lds')
x_op(0, 0); x_op(0, 1)
I(f's_cmp_eq_u32 s{sType}, 0')
I(f's_cselect_b32 s{SW}, s38, s44')
I(f's_cselect_b32 s{SW+1}, s39, s45')
I(f's_mov_b32 s{SW+2}, 1204224'); I(f's_mov_b32 s{SW+3}, 0x20000')
I(f's_mov_b32 m0, s{sM0c}')
TAG0 = I(f'buffer_load_dwordx4 v{vWs}, {srd(SW)}, s{sTa} offen lds')

def late_prologue():
    for p in range(1, 7):
        I(f's_add_u32 s{sXo+p}, s{sXo+p-1}, 128')
        I(f's_cmp_eq_u32 s{sXo+p}, 896')
        I(f's_cselect_b32 s{sXo+p}, 0, s{sXo+p}')
        I(f's_mul_i32 s{sWo+p}, s{sXo+p}, 1344')
    mksrd(SWS, 94, WS_SIZE); mksrd(SDBG, 92, 256)
    mksrd(SWOA, 40, 401408); mksrd(SWOB, 46, 401408); mksrd(SOUT, 50, 1835008); mksrd(SGW, 48, 896)
    if DEBUG:
        for k in range(16): I(f's_mov_b32 s{sStamp+k}, s98')
        I(f's_mov_b32 s{sStamp+1}, s96')

def touch_prefetch():
    if 'notouch' in OPT: return
    L = 'L_tp' + cur
    I(f's_cmp_ge_u32 s{sWave}, 4')
    I(f's_cbranch_scc1 {L}w')
    I(f's_and_b32 s{sT0}, s{sR}, 15')
    I(f's_mul_i32 s{sT0}, s{sT0}, 25088')
    I(f'v_lshlrev_b32 v{vT[3]}, 7, v0')
    I(f's_cmp_ge_u32 s{sR}, 16')
    I(f's_cbranch_scc1 {L}b')
    e.Ix(f'buffer_load_dword v134, v{vT[3]}, {srd(SWOA)}, s{sT0} offen')
    I(f's_branch {L}e')
    e.label(L + 'b')
    e.Ix(f'buffer_load_dword v134, v{vT[3]}, {srd(SWOB)}, s{sT0} offen')
    I(f's_branch {L}e')
    e.label(L + 'w')
    if cur == 'B':
        I(f's_mul_i32 s{sT0}, s{sJ}, 112')
        I(f's_mul_i32 s{sT1}, s{sP}, 108')
        I(f's_add_u32 s{sT0}, s{sT0}, s{sT1}')
        I(f's_add_u32 s{sT1}, s{sT0}, 1792')
        I(f's_cmp_eq_u32 s{sH}, 0')
        I(f's_cselect_b32 s{sT0}, s{sT1}, s{sT0}')
        I(f's_add_u32 s{sT0}, s{sT0}, s{sWo}')
        I(f'v_mul_u32_u24 v{vT[3]}, 2688, v{vLane}')
        e.Ix(f'buffer_load_dword v134, v{vT[3]}, {srd(SW)}, s{sT0} offen')
    e.label(L + 'e')

def zero_duty():
    I('s_cmp_ge_u32 s2, 8')
    I('s_cbranch_scc1 L_nozero' + cur)
    for k in range(4): I(f'v_mov_b32 v{104+k}, 0')
    I(f'v_lshlrev_b32 v{vT[2]}, 4, v0')
    I(f's_lshl_b32 s{sT0}, s2, 13')
    I(f's_add_u32 s{sT0}, s{sT0}, {WS_KV}')
    e.Ix(f'buffer_store_dwordx4 {v4(104)}, v{vT[2]}, {srd(SWS)}, s{sT0} offen sc1')
    I(f's_cmp_lg_u32 s{sWave}, 0')
    I('s_cbranch_scc1 L_nozero' + cur)
    I(f's_lshl_b32 s{sT0}, s2, 10')
    I(f's_add_u32 s{sT0}, s{sT0}, {WS_CNT}')
    e.Ix(f'buffer_store_dwordx4 {v4(104)}, v{vT[2]}, {srd(SWS)}, s{sT0} offen sc1')
    e.label('L_nozero' + cur)

nlab = [0]
def run_gemm(NS, nf, ops_of, frag, xrd, mfmas, issue_at, tag0, setup, fillers, hooks, extra=None, extra_vm=None, fill_rate=2, skip=()):
    NT = 2 * NS
    tags = {0: tag0}
    for si in range(1, NS):
        if isinstance(issue_at[si], int) and issue_at[si] < 0:
            for o in ops_of(si):
                tg = o()
                if tg is not None: tags[si] = tg
    setup()
    stamp('setup')
    e.need_vm(tags[0])
    I('s_barrier')
    stamp('b0')
    ftag, xtag = {}, {}
    for t in (0,1):
        xtag[t] = xrd(t)
        for f in range(nf): ftag[(t, f)] = frag(t, f)
    fq = []
    for t in range(NT):
        si, ks = t >> 1, t & 1
        more = t + 2 < NT
        if ('pre', t) in hooks: hooks[('pre', t)]()
        if ks == 0 and si + 1 < NS and (si + 1) not in skip:
            b = si + 1
            if ('prebar', b) in hooks: hooks[('prebar', b)]()
            bb = b
            while bb + 1 in skip: bb += 1
            e.need_vm(max(tags[x] for x in range(b, bb + 1)))
            I('s_barrier')
            stamp(f'b{b}')
            if ('bar', b) in hooks: hooks[('bar', b)]()
        vops = []
        for sj in range(1, NS):
            if issue_at[sj] == t:
                vops += [(sj, o) for o in ops_of(sj)]
            elif isinstance(issue_at[sj], tuple) and t in issue_at[sj]:
                ops = ops_of(sj)
                n = len(issue_at[sj]); k = issue_at[sj].index(t)
                lo, hi = len(ops) * k // n, len(ops) * (k + 1) // n
                vops += [(sj, o) for o in ops[lo:hi]]
        if extra_vm and t in extra_vm: vops += [(None, o) for o in extra_vm[t]]
        fq += fillers.get(t, [])
        e.need_lg(xtag.get(t))
        for f in range(nf):
            e.need_lg(ftag[(t, f)])
            for m in mfmas(t, f):
                I(m)
                for _ in range(fill_rate):
                    if fq: fq.pop(0)()
            if more: ftag[(t + 2, f)] = frag(t + 2, f)
            nv = (len(vops) + nf - f - 1) // (nf - f)
            for _ in range(nv):
                sj, o = vops.pop(0); tg = o()
                if sj is not None and tg is not None: tags[sj] = tg
        if more: xtag[t + 2] = xrd(t + 2)
        if extra: extra(t)
        if ('post', t) in hooks:
            while fq: fq.pop(0)()
            hooks[('post', t)]()
    while fq: fq.pop(0)()

def mf(d, a, b, first):
    return f'v_mfma_f32_16x16x32_bf16 {v4(d)}, {a}, {b}, {"0" if first else v4(d)}'

def flag_store_hook():
    I('s_cmp_ge_u32 s2, 8')
    I('s_cbranch_scc1 L_nf' + cur)
    I(f's_cmp_lg_u32 s{sWave}, 0')
    I('s_cbranch_scc1 L_nf' + cur)
    I(f's_lshl_b32 s{sT0}, s2, 2')
    I(f'v_mov_b32 v{vFlag}, 1')
    I(f's_mov_b64 exec, 1')
    e.Ix(f'buffer_store_dword v{vFlag}, off, {srd(SDBG)}, s{sT0} sc1')
    I(f's_mov_b64 exec, -1')
    e.label('L_nf' + cur)

def flag_load_hook():
    I(f'v_lshlrev_b32 v{vMisc}, 2, v{vLane}')
    I(f's_cmp_lg_u32 s{sWave}, 0')
    I('s_cbranch_scc1 L_nl' + cur)
    I(f's_mov_b64 exec, 0xff')
    e.Ix(f'buffer_load_dword v{vFlag}, v{vMisc}, {srd(SDBG)}, 0 offen sc1')
    I(f's_mov_b64 exec, -1')
    e.label('L_nl' + cur)

def flag_check_hook():
    I(f's_cmp_lg_u32 s{sWave}, 0')
    I('s_cbranch_scc1 L_nc' + cur)
    I(f's_mov_b64 exec, 0xff')
    I(f's_mov_b32 s{sSpin}, 0')
    e.label('L_fc' + cur)
    I(f'v_cmp_eq_u32 vcc, 0, v{vFlag}')
    e.nop(4)
    I('s_cbranch_vccz L_fok' + cur)
    I(f's_add_u32 s{sSpin}, s{sSpin}, 1')
    I(f's_cmp_ge_u32 s{sSpin}, {SPIN_MAX}')
    I('s_cbranch_scc1 L_fok' + cur)
    I('s_sleep 2')
    e.Ix(f'buffer_load_dword v{vFlag}, v{vMisc}, {srd(SDBG)}, 0 offen sc1')
    I('s_waitcnt vmcnt(0)')
    I('s_branch L_fc' + cur)
    e.label('L_fok' + cur)
    I(f's_mov_b64 exec, -1')
    e.label('L_nc' + cur)

def lane_addrs():
    a, b, c = vT[2], vT[3], vT[4]
    q, g = vT[0], vT[1]
    I(f'v_and_b32 v{q}, 15, v{vLane}')
    I(f'v_lshrrev_b32 v{g}, 4, v{vLane}')
    I(f'v_bfe_u32 v{a}, v{vLane}, 2, 2')
    I(f'v_lshl_add_u32 v{a}, v{g}, 2, v{a}')
    I(f'v_mul_u32_u24 v{a}, 224, v{a}')
    I(f'v_and_b32 v{b}, 3, v{vLane}')
    I(f'v_lshl_add_u32 v{vLa}, v{b}, 3, v{a}')
    I(f's_mul_i32 s{sT0}, s{sH}, 56')
    I(f'v_add_u32 v{vLa}, s{sT0}, v{vLa}')
    I(f'v_lshrrev_b32 v{a}, 1, v{q}')
    I(f'v_xor_b32 v{a}, v{a}, v{g}')
    I(f'v_lshlrev_b32 v{a}, 4, v{a}')
    I(f'v_lshl_add_u32 v{a}, v{q}, 7, v{a}')
    I(f's_and_b32 s{sT0}, s{sWave}, 5')
    I(f's_lshl_b32 s{sT0}, s{sT0}, 11')
    I(f's_add_u32 s{sT0}, s{sT0}, s{sXm}')
    I(f'v_add_u32 v{vXr}, s{sT0}, v{a}')
    I(f'v_xor_b32 v{vXr+1}, 64, v{vXr}')

def setup2(out):
    a, b, c = vT[2], vT[3], vT[4]
    g = vT[1]
    A = lambda s: out.append(lambda: I(s))
    A(f'v_cmp_gt_u32 vcc, 3, v{g}')
    A(f'v_cndmask_b32 v{vPad}, 0, -1, vcc')
    A(f'v_lshrrev_b32 v{a}, 3, v{vLane}')
    A(f'v_mul_u32_u24 v{a}, 896, v{a}')
    A(f'v_lshlrev_b32 v{b}, 1, v{g}')
    A(f'v_and_b32 v{c}, 7, v{vLane}')
    A(f'v_xor_b32 v{b}, v{b}, v{c}')
    A(f'v_lshl_add_u32 v{vWo}, v{b}, 4, v{a}')
    def w3():
        I(f's_lshr_b32 s{sT1}, s{sR}, 2')
        I(f's_lshl_b32 s{sT1}, s{sT1}, 7')
        I(f's_cmp_ge_u32 s{sR}, 28')
        I(f's_cselect_b32 s{sT1}, 0x80000000, s{sT1}')
        I(f'v_add_u32 v{vWo}, s{sT1}, v{vWo}')
    out.append(w3)

def wo_init():
    I(f's_and_b32 s{sT0}, s{sR}, 3')
    I(f's_lshl_b32 s{sT0}, s{sT0}, 4')
    I(f's_add_u32 s{sT0}, s{sT0}, s{sWave}')
    I(f's_lshl_b32 s{sLo2}, s{sT0}, 10')
    I(f's_mul_i32 s{sSo2}, s{sLo2}, 7')

def wo_ops(halves=(0, 1)):
    ops = []
    for half in halves:
        for qq in range(7):
            def f(half=half):
                I(f's_add_u32 m0, s{sLo2}, {half*57344}')
                tg = I(f'buffer_load_dwordx4 v{vWo}, {srd(SWOA if half == 0 else SWOB)}, s{sSo2} offen lds')
                I(f's_add_u32 s{sLo2}, s{sLo2}, 8192')
                I(f's_cmp_ge_u32 s{sLo2}, 57344')
                I(f's_cselect_b32 s{sTb}, 57344, 0')
                I(f's_sub_u32 s{sLo2}, s{sLo2}, s{sTb}')
                I(f's_mul_i32 s{sSo2}, s{sLo2}, 7')
                return tg
            ops.append(f)
    return ops

def spread(ops, ts):
    n = len(ts)
    return {t: ops[len(ops) * k // n: len(ops) * (k + 1) // n] for k, t in enumerate(ts)}

def xlane(op, m, m2, out):
    out.append(lambda: I(f'v_mov_b32 v{m2}, v{m}'))
    out.append(lambda: I(f'v_permlane16_swap_b32 v{m}, v{m2}'))
    out.append(lambda: I(f'{op} v{m}, v{m}, v{m2}'))
    out.append(lambda: I(f'v_mov_b32 v{m2}, v{m}'))
    out.append(lambda: I(f'v_permlane32_swap_b32 v{m}, v{m2}'))
    out.append(lambda: I(f'{op} v{m}, v{m}, v{m2}'))

def interleave(lists):
    out = []
    for k in range(max(len(l) for l in lists)):
        for l in lists:
            if k < len(l): out.append(l[k])
    return out

sO = [94, 95]
def o_offsets():
    I(f's_lshl_b32 s{sT0}, s{sI}, 3')
    I(f's_and_b32 s{sT1}, s{sWave}, 5')
    I(f's_add_u32 s{sT0}, s{sT0}, s{sT1}')
    I(f's_lshl_b32 s{sT0}, s{sT0}, 5')
    I(f's_lshl_b32 s{sT1}, s{sType}, 4')
    I(f's_add_u32 s{sT0}, s{sT0}, s{sT1}')
    I(f's_lshl_b32 s{sT1}, s{sJ}, 1')
    I(f's_add_u32 s{sT0}, s{sT0}, s{sT1}')
    I(f's_add_u32 s{sT0}, s{sT0}, s{sH}')
    I(f's_lshl_b32 s{sO[0]}, s{sT0}, 10')
    I(f's_add_u32 s{sO[1]}, s{sO[0]}, 65536')

def pack_T(out, dst, acc0, acc1):
    out.append(lambda: I(f'v_cvt_pk_bf16_f32 v{dst}, v{acc0}, v{acc0+1}'))
    out.append(lambda: I(f'v_cvt_pk_bf16_f32 v{dst+1}, v{acc0+2}, v{acc0+3}'))
    out.append(lambda: I(f'v_cvt_pk_bf16_f32 v{dst+2}, v{acc1}, v{acc1+1}'))
    out.append(lambda: I(f'v_cvt_pk_bf16_f32 v{dst+3}, v{acc1+2}, v{acc1+3}'))
    out.append(lambda: I(f'v_and_b32 v{dst+2}, v{vPad}, v{dst+2}'))
    out.append(lambda: I(f'v_and_b32 v{dst+3}, v{vPad}, v{dst+3}'))

def Oacc(T, dt): return vO + (T * 2 + dt) * 4
def o_finish(T, inv):
    d = vOp + 4 * T
    for dt in range(2):
        a = Oacc(T, dt)
        for r in range(4): I(f'v_mul_f32 v{a+r}, v{inv}, v{a+r}')
        I(f'v_cvt_pk_bf16_f32 v{d+2*dt}, v{a}, v{a+1}')
        I(f'v_cvt_pk_bf16_f32 v{d+2*dt+1}, v{a+2}, v{a+3}')
    I(f'v_and_b32 v{d+2}, v{vPad}, v{d+2}')
    I(f'v_and_b32 v{d+3}, v{vPad}, v{d+3}')
    I(f'buffer_store_dwordx4 {v4(d)}, v{vL16}, {srd(SWS)}, s{sO[T]} offen sc1')

def cnt_add(sreg_off, lab):
    I(f's_cmp_lg_u32 s{sWave}, 0')
    I(f's_cbranch_scc1 {lab}')
    I(f'v_mov_b32 v{vFlag}, 1')
    I('s_mov_b64 exec, 1')
    e.Ix(f'buffer_atomic_add v{vFlag}, off, {srd(SWS)}, s{sreg_off}')
    I('s_mov_b64 exec, -1')
    e.label(lab)

def poll(sreg_off, n, lab):
    I('s_mov_b64 exec, 1')
    I(f's_mov_b32 s{sSpin}, 0')
    e.label(lab)
    e.Ix(f'buffer_load_dword v{vFlag}, off, {srd(SWS)}, s{sreg_off} sc1')
    I(f's_add_u32 s{sSpin}, s{sSpin}, 1')
    I('s_waitcnt vmcnt(0)')
    I(f'v_readfirstlane_b32 s{sT3}, v{vFlag}')
    I(f's_cmp_ge_u32 s{sT3}, {n}')
    I(f's_cbranch_scc1 {lab}_k')
    I(f's_cmp_ge_u32 s{sSpin}, {SPIN_MAX}')
    I(f's_cbranch_scc1 {lab}_k')
    I('s_sleep 1')
    I(f's_branch {lab}')
    e.label(lab + '_k')
    I('s_mov_b64 exec, -1')

def cnt_wait(sreg_off, n, lab, wv=1):
    I(f's_cmp_lg_u32 s{sWave}, {wv}')
    I(f's_cbranch_scc1 {lab}_d')
    poll(sreg_off, n, lab)
    e.label(lab + '_d')
    I('s_barrier')


I(f's_cmp_lg_u32 s{sType}, 0')
I('s_cbranch_scc1 L_typeB')
STATE = ('t', 'w', 'cread', 'stread', 'vm_issued', 'vm_done', 'lg_issued', 'lg_done')
snap = copy.deepcopy({k: getattr(e, k) for k in STATE})
ISS = {1: -1, 2: 0}
for si in range(3, 7): ISS[si] = (2 * si - 5, 2 * si - 4)
if OPT.get('iss') == 'late':
    for si in range(2, 7): ISS[si] = (2 * si - 4, 2 * si - 3)

cur = 'A'
I(f's_add_u32 s{sT0}, s{sWave}, 1')
I(f's_sub_u32 s{sT1}, s{sWave}, 6')
I(f's_add_u32 s{sT2}, s{sJb}, 896')
I(f's_add_u32 s{sT3}, s{sJb}, 1792')
I(f's_cmp_ge_u32 s{sWave}, 6')
I(f's_cselect_b32 s{sT0}, s{sT1}, s{sT0}')
I(f's_cselect_b32 s{sT2}, s{sT3}, s{sT2}')
I(f's_lshl_b32 s{sT0}, s{sT0}, 6')
woff(vWs + 1, sT0, sT2)
I(f's_add_u32 m0, s{sM0a}, 8192')
I(f'buffer_load_dwordx4 v{vWs+1}, {srd(SW)}, s{sWo} offen lds')
I(f's_add_u32 s{sT0}, s{sWave}, 2')
I(f's_min_u32 s{sT0}, s{sT0}, 6')
I(f's_lshl_b32 s{sT0}, s{sT0}, 6')
woff(vWs + 2, sT0, sT3)
I(f's_sub_u32 s{sT1}, s{sWave}, 5')
I(f's_cmp_ge_u32 s{sWave}, 5')
I(f's_cselect_b32 s{sTb}, s{sT1}, 3')
I(f's_cselect_b32 s{sSel}, 0, 1')
I(f's_cselect_b64 s[{sSave}:{sSave+1}], -1, 0')
I(f's_cselect_b32 s{SX3}, s{SX}, s{SW}')
I(f's_cselect_b32 s{SX3+1}, s{SX+1}, s{SW+1}')
I(f's_cselect_b32 s{SX3+2}, s{SX+2}, s{SW+2}')
I(f's_mov_b32 s{SX3+3}, 0x20000')
I(f's_and_b32 s{sT1}, s{sTb}, 2')
I(f's_lshl_b32 s{sT1}, s{sT1}, 5')
I(f's_and_b32 s{sT2}, s{sTb}, 1')
I(f's_add_u32 s{sT1}, s{sT1}, s{sT2}')
I(f's_lshl_b32 s{sT0}, s{sI}, 7')
I(f's_add_u32 s{sT1}, s{sT1}, s{sT0}')
I(f'v_lshl_add_u32 v{vT[2]}, v{vT[0]}, 1, s{sT1}')
I(f'v_mul_u32_u24 v{vT[2]}, 896, v{vT[2]}')
I(f'v_and_b32 v{vT[4]}, 6, v{vT[0]}')
I(f'v_xor_b32 v{vT[4]}, v{vT[6]}, v{vT[4]}')
I(f'v_lshl_add_u32 v{vHd}, v{vT[4]}, 4, v{vT[2]}')
I(f'v_add_u32 v{vHd}, 0xffffc800, v{vHd}')
I(f'v_cndmask_b32 v{vWs+2}, v{vWs+2}, v{vHd}, s[{sSave}:{sSave+1}]')
sHm = sLo2
I(f's_lshl_b32 s{sTb}, s{sTb}, 10')
I(f's_add_u32 s{sHm}, s{sTb}, {HRA}')
I(f's_add_u32 s{sM0c}, s{sM0a}, 16384')
I(f's_cmp_eq_u32 s{sSel}, 0')
I(f's_cselect_b32 s{sM0c}, s{sHm}, s{sM0c}')
def opsA(si, first=False):
    base = WA + (si & 3) * 21504; hr = (si & 3) * 4096
    def fh():
        nlab[0] += 1
        I(f's_cmp_lg_u32 s{sWave}, 4')
        I(f's_cbranch_scc1 L_nh{nlab[0]}')
        I(f's_add_u32 m0, s{sHm}, {hr}')
        e.Ix(f'buffer_load_dwordx4 v{vHd}, {srd(SX)}, s{sXo+si} offen lds')
        e.label(f'L_nh{nlab[0]}')
    def fk(k):
        I(f's_add_u32 m0, s{sM0a}, {base + 8192 * k}')
        return I(f'buffer_load_dwordx4 v{vWs+k}, {srd(SW)}, s{sWo+si} offen lds')
    def f2():
        I(f's_mul_i32 m0, s{sSel}, {(base - hr) & 0xffffffff}')
        I(f's_cmp_lg_u32 s{sSel}, 0')
        I(f's_cselect_b32 s{sTa}, s{sWo+si}, s{sXo+si}')
        I(f's_add_u32 m0, m0, s{sM0c}')
        if hr: I(f's_add_u32 m0, m0, {hr}')
        return I(f'buffer_load_dwordx4 v{vWs+2}, {srd(SX3)}, s{sTa} offen lds')
    if first: return [fh, f2]
    return [fh, lambda: fk(0), lambda: fk(1), f2, lambda: x_op(si, 0), lambda: x_op(si, 1)]
for o in opsA(0, True): tagA0 = o()
late_prologue()
stamp('ld0')
def setupA():
    touch_prefetch()
    zero_duty()
    lane_addrs()
    q, g, c, d = vT[0], vT[1], vT[2], vT[3]
    I(f'v_add_u32 v{vLa2}, 43008, v{vLa}')
    I(f'v_and_b32 v{c}, 6, v{q}')
    I(f'v_xor_b32 v{c}, v{c}, v{g}')
    I(f'v_lshlrev_b32 v{c}, 4, v{c}')
    I(f'v_and_b32 v{d}, 7, v{q}')
    I(f'v_lshl_add_u32 v{c}, v{d}, 7, v{c}')
    I(f's_lshl_b32 s{sT0}, s{sU}, 1')
    I(f's_add_u32 s{sT0}, s{sT0}, s{sP}')
    I(f's_lshl_b32 s{sT0}, s{sT0}, 10')
    I(f's_add_u32 s{sT0}, s{sT0}, {HRA}')
    I(f'v_add_u32 v{vHr}, s{sT0}, v{c}')
    I(f'v_xor_b32 v{vHr+1}, 64, v{vHr}')
def setupA2(out):
    q, g, c, d = vT[0], vT[1], vT[2], vT[3]
    A = lambda s: out.append(lambda: I(s))
    A(f'v_mov_b32 v{vT[5]}, 0xff800000')
    A(f's_or_b32 s{sT2}, s{sI}, s{sU}')
    for r in range(4):
        A(f'v_lshl_add_u32 v{c}, v{g}, 2, {r}')
        A(f'v_cmp_le_u32 s[{sCur+2*r}:{sCur+2*r+1}], v{c}, v{q}')
        A(f'v_sub_u32 v{d}, v{q}, v{c}')
        A(f'v_and_b32 v{d}, 15, v{d}')
        A(f'v_cmp_gt_u32 vcc, 8, v{d}')
        A(f'v_cndmask_b32 v{vBias+r}, v{vT[5]}, 0, vcc')
        def blk(r=r):
            I(f's_and_b64 s[{sSave}:{sSave+1}], vcc, s[{sCur+2*r}:{sCur+2*r+1}]')
            I(f's_cmp_eq_u32 s{sT2}, 0')
            I(f's_cselect_b64 s[{sSave}:{sSave+1}], s[{sSave}:{sSave+1}], vcc')
        out.append(blk)
        A(f'v_cndmask_b32 v{vBias0+r}, v{vT[5]}, 0, s[{sSave}:{sSave+1}]')
    for (mc, mp, r) in ((vMC01, vMP01, 0), (vMC23, vMP23, 2)):
        A(f'v_mov_b32 v{c}, 0xffff')
        A(f'v_cndmask_b32 v{mc}, 0, v{c}, s[{sCur+2*r}:{sCur+2*r+1}]')
        A(f'v_mov_b32 v{c}, 0xffff0000')
        A(f'v_cndmask_b32 v{d}, 0, v{c}, s[{sCur+2*r+2}:{sCur+2*r+3}]')
        A(f'v_or_b32 v{mc}, v{mc}, v{d}')
        A(f'v_not_b32 v{mp}, v{mc}')
    A(f's_mov_b32 s{sScale}, 0x{f32(28 ** -0.5 * math.log2(math.e)):08x}')


def afr(t, f): return ((t & 1) * 6 + f) * 4
def axr(t, T): return 48 + ((t & 1) * 3 + T) * 4
def fragA(t, f):
    si, ks = t >> 1, t & 1
    off = (si & 1) * 21504 + (f >> 1) * 7168 + ks * 3584 + (f & 1) * 32
    va = vLa2 if si & 2 else vLa
    r = afr(t, f)
    I(f'ds_read_b64_tr_b16 a[{r}:{r+1}], v{va} offset:{off}')
    return I(f'ds_read_b64_tr_b16 a[{r+2}:{r+3}], v{va} offset:{off+112}')
def xrdA(t):
    si, ks = t >> 1, t & 1
    for T in range(2): I(f'ds_read_b128 {a4(axr(t, T))}, v{vXr+ks} offset:{(si % 3) * 16384 + T * 4096}')
    return I(f'ds_read_b128 {a4(axr(t, 2))}, v{vHr+ks} offset:{(si & 3) * 4096}')
def accQ(T, ct): return 40 + (T * 2 + ct) * 4
def accK(T, ct): return 56 + (T * 2 + ct) * 4
def accV(T, ct): return 80 + (T * 2 + ct) * 4
def mfA(t, f):
    fr = a4(afr(t, f)); ct = f & 1
    if f < 2: return [mf(accQ(T, ct), fr, a4(axr(t, T)), t == 0) for T in range(2)]
    if f < 4: return [mf(accK(T, ct), fr, a4(axr(t, T)), t == 0) for T in range(3)]
    return [mf(accV(T, ct), a4(axr(t, T)), fr, t == 0) for T in range(3)]
fA2 = []
setupA2(fA2); setup2(fA2)
hooksA = {('bar', 2): flag_store_hook, ('pre', 6): flag_load_hook}
run_gemm(7, 6, opsA, fragA, xrdA, mfA, ISS, tagA0, setupA, {1: fA2}, hooksA)
stamp('gend')
def Kp(T): return 104 + 4 * T
def Qp(T): return 116 + 4 * T
def Vp(dt): return 124 + 6 * dt
vS = 40; vPf = 56; vInv = 64; vTm = 68; vO = 80; vOp = 96
def softmax_valu(out, T):
    sc, sp, tm = vS + 8 * T, vS + 8 * T + 4, vTm + 4 * T
    bias = vBias if T == 1 else vBias0
    A = lambda s: out.append(lambda: I(s))
    for r in range(4): A(f'v_cndmask_b32 v{sc+r}, v{sp+r}, v{sc+r}, s[{sCur+2*r}:{sCur+2*r+1}]')
    for r in range(4): A(f'v_fma_f32 v{sc+r}, v{sc+r}, s{sScale}, v{bias+r}')
    m, m2 = tm, tm + 1
    A(f'v_max3_f32 v{m}, v{sc}, v{sc+1}, v{sc+2}')
    A(f'v_max_f32 v{m}, v{m}, v{sc+3}')
    xlane('v_max_f32', m, m2, out)
    for r in range(4): A(f'v_sub_f32 v{sc+r}, v{sc+r}, v{m}')
    for r in range(4): A(f'v_exp_f32 v{sc+r}, v{sc+r}')
    A(f'v_add_f32 v{m}, v{sc}, v{sc+1}')
    A(f'v_add_f32 v{m2}, v{sc+2}, v{sc+3}')
    A(f'v_cvt_pk_bf16_f32 v{tm+2}, v{sc}, v{sc+1}')
    A(f'v_add_f32 v{m}, v{m}, v{m2}')
    A(f'v_cvt_pk_bf16_f32 v{tm+3}, v{sc+2}, v{sc+3}')
    xlane('v_add_f32', m, m2, out)
    pf = vPf + 4 * T
    A(f'v_and_b32 v{pf}, v{vMP01}, v{tm+2}')
    A(f'v_and_b32 v{pf+1}, v{vMP23}, v{tm+3}')
    A(f'v_and_b32 v{pf+2}, v{vMC01}, v{tm+2}')
    A(f'v_and_b32 v{pf+3}, v{vMC23}, v{tm+3}')
    A(f'v_rcp_f32 v{vInv+T}, v{m}')

flag_check_hook()
wo_init()
I('s_barrier')
wl = wo_ops((1,))
l = []
for T in (0, 2, 1): pack_T(l, Kp(T), accK(T, 0), accK(T, 1))
for T in range(2): pack_T(l, Qp(T), accQ(T, 0), accQ(T, 1))
for T in range(2):
    sc, sp = vS + 8 * T, vS + 8 * T + 4
    l.append(lambda sc=sc, T=T: I(mf(sc, v4(Kp(T)), v4(Qp(T)), True)))
    l.append(lambda sp=sp, T=T: I(mf(sp, v4(Kp(0) if T == 1 else Kp(2)), v4(Qp(T)), True)))
for dt in range(2):
    for T in (2, 0, 1):
        a = accV(T, dt); d = Vp(dt) + (0 if T == 2 else 2 + 2 * T)
        l.append(lambda a=a, d=d: I(f'v_cvt_pk_bf16_f32 v{d}, v{a}, v{a+1}'))
        l.append(lambda a=a, d=d: I(f'v_cvt_pk_bf16_f32 v{d+1}, v{a+2}, v{a+3}'))
vl = []
for T in range(2):
    x = []; softmax_valu(x, T); vl.append(x)
l += interleave(vl)
for k, x in enumerate(l):
    x()
    if k % 6 == 0 and wl: wl.pop(0)()
for T in range(2):
    for dt in range(2): I(mf(Oacc(T, dt), v4(Vp(dt) + 2 * T), v4(vPf + 4 * T), True))
while wl: wl.pop(0)()
o_offsets()
for T in range(2): o_finish(T, vInv + T)
I('s_branch L_publish')

for k, v in copy.deepcopy(snap).items(): setattr(e, k, v)
cur = 'B'
e.label('L_typeB')
late_prologue()
stamp('ld0')
vGa = 20; vKm = 21; vOne = 26; vG = [124, 128]
sOne = 90; sKVc = 92; sGt = 93
SECB = [896, 1792, 0]
def opsB(si):
    pos = si % 7
    def fw():
        I(f's_mul_i32 m0, s{sSel}, {unitB(si)}')
        sec = SECB[si // 7]
        if sec: I(f's_add_u32 s{sTa}, s{sWo+pos}, {sec}')
        I(f's_add_u32 m0, m0, s{sM0c}')
        return I(f'buffer_load_dwordx4 v{vWs}, {srd(SW)}, s{sTa if sec else sWo+pos} offen lds')
    if si < 7: return [fw, lambda: x_op(si, 0), lambda: x_op(si, 1)]
    return [fw]
def setupB():
    touch_prefetch()
    zero_duty()
    I(f's_cmp_lg_u32 s{sWave}, 0')
    I('s_cbranch_scc1 L_nogw')
    I(f's_mov_b32 exec_hi, 0xffffff')
    I(f's_mov_b32 m0, {GW}')
    e.Ix(f'buffer_load_dwordx4 v{vL16}, {srd(SGW)}, 0 offen lds')
    I(f's_mov_b32 m0, {GW+896}')
    e.Ix(f'buffer_load_dwordx4 v{vL16}, {srd(SGW)}, 0 offen lds')
    I(f's_mov_b64 exec, -1')
    e.label('L_nogw')
    lane_addrs()
fB2 = []
def setupB2(out):
    q, g = vT[0], vT[1]
    A = lambda s: out.append(lambda: I(s))
    A(f'v_cmp_gt_u32 vcc, 12, v{q}')
    A(f'v_cndmask_b32 v{vKm}, 0, -1, vcc')
    A(f'v_cmp_eq_u32 s[{sOne}:{sOne+1}], 12, v{q}')
    A(f'v_mov_b32 v{vOne}, 0x3f803f80')
    A(f'v_lshlrev_b32 v{vGa}, 4, v{g}')
    A(f'v_add_u32 v{vGa}, s{sXo}, v{vGa}')
    A(f'v_add_u32 v{vGa}, {GW}, v{vGa}')
    def gs():
        I(f's_add_u32 s{sGt}, s{sH}, 1')
        I(f's_cmp_eq_u32 s{sWave}, s{sJ}')
        I(f's_cselect_b32 s{sGt}, s{sGt}, 0')
    out.append(gs)
    A(f's_mov_b32 s{sScale}, 0x{f32(math.log2(math.e)):08x}')
    A(f's_mov_b32 s{sScale+1}, 0x{f32(1e-6):08x}')
setupB2(fB2); setup2(fB2)
def xreg(T, t): return (T * 14 + t) * 4
class LB: base = 0
def bfr(t, f): return vF + ((t & 1) * 2 + f) * 4
def fragB(t, f):
    si, ks = t >> 1, t & 1
    off = unitB(si) + ks * 3584 + f * 32
    if off >= WT and LB.base == 0:
        I(f'v_add_u32 v{vLa}, {WT}, v{vLa}')
        LB.base = WT
    o = off - LB.base
    r = bfr(t, f)
    I(f'ds_read_b64_tr_b16 {v2(r)}, v{vLa} offset:{o}')
    return I(f'ds_read_b64_tr_b16 {v2(r+2)}, v{vLa} offset:{o+112}')
def xrdB(t):
    if t >= 14: return None
    si, ks = t >> 1, t & 1
    for T in range(2): tag = I(f'ds_read_b128 {a4(xreg(T, t))}, v{vXr+ks} offset:{(si % 3) * 16384 + T * 4096}')
    return tag
def baccK(T, ct): return 56 + (T * 2 + ct) * 4
def baccV(T, ct): return 72 + (T * 2 + ct) * 4
def baccQ(T, ct): return 88 + (T * 2 + ct) * 4
baccG = 104
def mfB(t, f):
    seg, tt = divmod(t, 14)
    fr = v4(bfr(t, f))
    if seg < 2:
        acc = baccK if seg == 0 else baccV
        return [mf(acc(T, f), a4(xreg(T, tt)), fr, tt == 0) for T in range(2)]
    return [mf(baccQ(T, f), fr, a4(xreg(T, tt)), tt == 0) for T in range(2)]
gmark = {}
def gate_step(t):
    if t < 27: return
    nlab[0] += 1; L = nlab[0]
    I(f's_cmp_eq_u32 s{sGt}, 0')
    I(f's_cbranch_scc1 L_g{L}')
    if t >= 28:
        I(f's_waitcnt lgkmcnt({min(15, e.lg_issued - gmark[t])})')
        I(f's_cmp_eq_u32 s{sGt}, 1')
        I(f's_cbranch_scc1 L_g{L}a')
        I(mf(baccG, v4(vG[t & 1]), a4(xreg(1, t - 28)), t == 28))
        I(f's_branch L_g{L}b')
        e.label(f'L_g{L}a')
        I(mf(baccG, v4(vG[t & 1]), a4(xreg(0, t - 28)), t == 28))
        e.label(f'L_g{L}b')
    if t < 41:
        e.Ix(f'ds_read_b128 {v4(vG[(t + 1) & 1])}, v{vGa} offset:{(t + 1 - 28) * 64}')
        gmark[t + 1] = e.lg_issued
    e.label(f'L_g{L}')
def phi(out, a, tmp):
    A = lambda s: out.append(lambda: I(s))
    for r in range(4): A(f'v_mul_f32 v{tmp+r}, s{sScale}, v{a+r}')
    for r in range(4): A(f'v_exp_f32 v{tmp+r}, -|v{tmp+r}|')
    for r in range(4): A(f'v_add_f32 v{a+r}, 1.0, v{a+r}')
    for r in range(4): A(f'v_max_f32 v{a+r}, v{a+r}, v{tmp+r}')
    for r in range(4): A(f'v_add_f32 v{a+r}, s{sScale+1}, v{a+r}')
vPK = 108; vVV = 116; vKV = 56; vRd = 72
bt = {}
fB14, fB28, fB30 = [], [], []
def mkB():
    A = lambda s: fB14.append(lambda: I(s))
    for ct in range(2):
        for T in range(2): phi(fB14, baccK(T, ct), vT[0] if T == 0 else vT[4])
        for T in range(2):
            a = baccK(T, ct); d = vPK + 4 * ct + 2 * T
            A(f'v_cvt_pk_bf16_f32 v{d}, v{a}, v{a+1}')
            A(f'v_cvt_pk_bf16_f32 v{d+1}, v{a+2}, v{a+3}')
    for k in range(4): A(f'v_and_b32 v{vPK+4+k}, v{vKm}, v{vPK+4+k}')
    A(f's_lshl_b32 s{sT0}, s{sU}, 1')
    A(f's_add_u32 s{sT0}, s{sT0}, s{sP}')
    A(f's_lshl_b32 s{sT0}, s{sT0}, 13')
    A(f's_lshl_b32 s{sT1}, s{sH}, 12')
    A(f's_add_u32 s{sT0}, s{sT0}, s{sT1}')
    A(f'v_add_u32 v{vMisc+1}, s{sT0}, v{vL16}')
    A(f's_lshl_b32 s{sT0}, s{sWave}, 10')
    A(f'v_lshlrev_b32 v{vMisc+2}, 2, v{vLane}')
    A(f'v_add_u32 v{vMisc+2}, s{sT0}, v{vMisc+2}')
    A(f's_lshl_b32 s{sT1}, s{sJ}, 13')
    A(f's_add_u32 s{sT1}, s{sT1}, {WS_KV}')
    A(f's_lshl_b32 s{sKVc}, s{sJ}, 10')
    A(f's_add_u32 s{sKVc}, s{sKVc}, {WS_CNT}')
    A = lambda s: fB28.append(lambda: I(s))
    for c in (1, 0):
        for T in range(2):
            a = baccV(T, c); d = vVV + 4 * c + 2 * T
            A(f'v_cvt_pk_bf16_f32 v{d}, v{a}, v{a+1}')
            A(f'v_cvt_pk_bf16_f32 v{d+1}, v{a+2}, v{a+3}')
        if c:
            for k in range(4): A(f'v_cndmask_b32 v{vVV+4+k}, v{vVV+4+k}, v{vOne}, s[{sOne}:{sOne+1}]')
    for c in range(2):
        for a in range(2): A(mf(vKV + 4 * (c * 2 + a), v4(vPK + 4 * a), v4(vVV + 4 * c), True))
    for k in range(4):
        def w(k=k): bt['tw'] = I(f'ds_write_b128 v{vMisc+1}, {v4(vKV+4*k)} offset:{k*1024}')
        fB28.append(w)
    rt = {}
    for m in range(4):
        for src in range(4):
            def rd(m=m, src=src): rt[(m, src)] = I(f'ds_read_b32 v{vRd + m * 4 + src}, v{vMisc+2} offset:{src*8192 + m*256}')
            fB30.append(rd)
    for m in range(4): fB30.append(lambda m=m: red(m, rt))
    fB30.append(lambda: stamp('kvend'))
def red(m, rt):
    b = vRd + m * 4
    e.need_lg(rt[(m, 3)])
    I(f'v_add_f32 v{b}, v{b}, v{b+1}')
    I(f'v_add_f32 v{b+2}, v{b+2}, v{b+3}')
    I(f'v_add_f32 v{b}, v{b}, v{b+2}')
    bt['at'] = I(f'buffer_atomic_add_f32 v{b}, v{vMisc+2}, {srd(SWS)}, s{sT1} offen offset:{m*256}')
mkB()
def B_img():
    stamp('vend')
    for x in fB28: x()
    flag_check_hook()
    e.need_lg(bt['tw'])
    I('s_barrier')
    for x in fB30: x()
def B_sig0(): e.need_vm(bt['at'])
def B_sig1(): cnt_add(sKVc, 'L_kvadd')
SIGB = int(OPT.get('sigb', 17))
issB = dict(ISS)
issB.update({7: 9, 8: 9, 9: 10, 10: 10, 11: 11, 12: 12, 13: 13})
issB.update({14: 14, 15: 15, 16: 16, 17: 17, 18: 18, 19: 32, 20: 32})
QD = int(OPT.get('qd', 0))
if QD: issB.update({14: QD, 15: QD, 16: QD + 1, 17: QD + 2, 18: QD + 3})
hooksB = {('bar', 2): flag_store_hook, ('pre', 6): flag_load_hook, ('post', 13): lambda: stamp('kend'), ('pre', 14): wo_init,
          ('post', 27): B_img, ('prebar', SIGB): B_sig0, ('bar', SIGB): B_sig1}
xv = spread(wo_ops((1,)), list(range(int(OPT.get('wo1', 19)), int(OPT.get('wo1', 19)) + int(OPT.get('wo1n', 7)))))
_w0 = spread(wo_ops((0,)), list(range(int(OPT.get('wo0', 33)), int(OPT.get('wo0', 33)) + 7)))
for _k, _v in _w0.items(): xv[_k] = xv.get(_k, []) + _v
run_gemm(21, 2, opsB, fragB, xrdB, mfB, issB, TAG0, setupB, {1: fB2, 14: fB14}, hooksB, gate_step, extra_vm=xv,
         fill_rate=int(OPT.get('fillB', 3)), skip=eval(OPT.get('skipB', '(9,11,12,13,15,16,18,20)')))
stamp('gend')
vPQ = 40
def phiQ(T):
    l = []
    for ct in range(2): phi(l, baccQ(T, ct), vT[0] if ct == 0 else vT[4])
    pack_T(l, vPQ + 4 * T, baccQ(T, 0), baccQ(T, 1))
    for x in l: x()
phiQ(0)
e.all_vm()
cnt_wait(sKVc, 16, 'L_kvwait')
stamp('kvwait')
I(f's_lshl_b32 s{sT1}, s{sJ}, 13')
I(f's_lshl_b32 s{sT2}, s{sH}, 12')
I(f's_add_u32 s{sT1}, s{sT1}, s{sT2}')
I(f's_add_u32 s{sT1}, s{sT1}, {WS_KV}')
vKVf = 56
kt = {}
for k in range(4):
    kt[k] = I(f'buffer_load_dwordx4 {v4(vKVf+4*k)}, v{vL16}, {srd(SWS)}, s{sT1} offen offset:{k*1024} sc1')
phiQ(1)
I(f'v_lshlrev_b32 v{vMisc}, 2, v{vLane}')
I(f's_cmp_eq_u32 s{sGt}, 0')
I('s_cbranch_scc1 L_nog')
a = baccG
I(f'v_mul_f32 v{a}, s{sScale}, v{a}')
I(f'v_exp_f32 v{a}, -v{a}')
I(f's_lshl_b32 s{sT0}, s{sI}, 3')
I(f'v_add_f32 v{a}, 1.0, v{a}')
I(f's_add_u32 s{sT0}, s{sT0}, s{sJ}')
I(f'v_rcp_f32 v{a}, v{a}')
I(f's_lshl_b32 s{sT0}, s{sT0}, 6')
I(f's_add_u32 s{sT0}, s{sT0}, {WS_G}')
I('s_mov_b64 exec, 0xffff')
e.Ix(f'buffer_store_dword v{a}, v{vMisc}, {srd(SWS)}, s{sT0} offen sc1')
I('s_mov_b64 exec, -1')
e.label('L_nog')
stamp('phiq')
o_offsets()
vAf = 48; vZf = 108; vDen = 112; vO = 72; vOp = 120
for c in range(2):
    for a in range(2):
        k = c * 2 + a
        e.need_vm(kt[k])
        d = vAf + c * 4 + 2 * a
        I(f'v_cvt_pk_bf16_f32 v{d}, v{vKVf+4*k}, v{vKVf+4*k+1}')
        I(f'v_cvt_pk_bf16_f32 v{d+1}, v{vKVf+4*k+2}, v{vKVf+4*k+3}')
for k in range(4):
    I(f'v_mov_b32_dpp v{vZf+k}, v{vAf+4+k} row_newbcast:12 row_mask:0xf bank_mask:0xf')
for T in range(2):
    pq = v4(vPQ + 4 * T)
    I(mf(vDen + 4 * T, v4(vZf), pq, True))
    for c in range(2): I(mf(Oacc(T, c), v4(vAf + c * 4), pq, True))
for T in range(2):
    dn = vDen + 4 * T
    I(f'v_add_f32 v{dn}, s{sScale+1}, v{dn}')
    I(f'v_rcp_f32 v{dn}, v{dn}')
    o_finish(T, dn)

e.label('L_publish')
e.fence(2)
stamp('ost')
sR2, sN, sCn, sOb, sLh = 64, 65, 66, 68, 69
I(f's_lshr_b32 s{sT0}, s{sI}, 1')
I(f's_lshl_b32 s{sT0}, s{sT0}, 10')
I(f's_and_b32 s{sT1}, s{sI}, 1')
I(f's_lshl_b32 s{sT2}, s{sType}, 1')
I(f's_add_u32 s{sT1}, s{sT1}, s{sT2}')
I(f's_lshl_b32 s{sT1}, s{sT1}, 7')
I(f's_add_u32 s{sTa}, s{sT0}, s{sT1}')
I(f's_add_u32 s{sTa}, s{sTa}, {WS_CNT+128}')
I(f's_and_b32 s{sT0}, s{sR}, 3')
I(f's_and_b32 s{sR2}, s2, 7')
I(f's_lshl_b32 s{sR2}, s{sR2}, 2')
I(f's_add_u32 s{sR2}, s{sR2}, s{sT0}')
I(f's_lshr_b32 s{sN}, s{sR}, 2')
I(f's_lshl_b32 s{sN}, s{sN}, 1')
vP2 = 10; vQ2 = 18; vOut = 22; vGg = 23; vSw = 24; vSr = 25; vCm = 26
gq, rr = vT[1], vT[2]
I(f'v_lshrrev_b32 v{gq}, 4, v{vLane}')
I(f'v_bfe_u32 v{rr}, v{vLane}, 2, 2')
I(f'v_lshl_add_u32 v{vT[3]}, v{gq}, 2, v{rr}')
I(f'v_bfe_u32 v{vT[4]}, v{vT[3]}, 1, 2')
I(f'v_lshlrev_b32 v{vT[3]}, 7, v{vT[3]}')
I(f'v_and_b32 v{vT[5]}, 3, v{vLane}')
I(f'v_lshl_add_u32 v{vT[3]}, v{vT[5]}, 3, v{vT[3]}')
for t in range(4):
    I(f'v_xor_b32 v{vT[5]}, {t}, v{vT[4]}')
    I(f'v_lshl_add_u32 v{vP2+t}, v{vT[5]}, 5, v{vT[3]}')
I(f's_and_b32 s{sT3}, s{sWave}, 3')
I(f'v_and_b32 v{vT[5]}, 15, v{vLane}')
I(f's_lshl_b32 s{sT0}, s{sT3}, 11')
I(f's_add_u32 s{sT0}, s{sT0}, {STG}')
I(f'v_lshrrev_b32 v{vT[6]}, 1, v{gq}')
I(f'v_and_b32 v{vT[7]}, 7, v{vT[5]}')
I(f'v_xor_b32 v{vT[6]}, v{vT[6]}, v{vT[7]}')
I(f'v_lshlrev_b32 v{vT[6]}, 4, v{vT[6]}')
I(f'v_lshl_add_u32 v{vT[6]}, v{vT[5]}, 7, v{vT[6]}')
I(f'v_and_b32 v{vT[7]}, 1, v{gq}')
I(f'v_lshl_add_u32 v{vT[6]}, v{vT[7]}, 3, v{vT[6]}')
I(f'v_add_u32 v{vSw}, s{sT0}, v{vT[6]}')
I(f'v_lshrrev_b32 v{vT[6]}, 3, v{vLane}')
I(f'v_and_b32 v{vT[7]}, 7, v{vLane}')
I(f'v_xor_b32 v{vT[4]}, v{vT[7]}, v{vT[6]}')
I(f'v_lshlrev_b32 v{vT[4]}, 4, v{vT[4]}')
I(f'v_lshl_add_u32 v{vT[4]}, v{vT[6]}, 7, v{vT[4]}')
I(f'v_add_u32 v{vSr}, s{sT0}, v{vT[4]}')
I(f's_lshl_b32 s{sT0}, s{sT3}, 12')
I(f's_add_u32 s{sT0}, s{sT0}, {CMB}')
I(f'v_add_u32 v{vCm}, s{sT0}, v{vL16}')
I(f's_lshl_b32 s{sT0}, s{sR2}, 6')
I(f's_lshl_b32 s{sT1}, s{sH}, 5')
I(f's_add_u32 s{sT0}, s{sT0}, s{sT1}')
I(f's_add_u32 s{sT0}, s{sT0}, s{sP}')
I(f'v_lshl_add_u32 v{vT[6]}, v{vT[6]}, 1, s{sT0}')
I(f'v_mul_u32_u24 v{vT[6]}, 896, v{vT[6]}')
I(f'v_lshl_add_u32 v{vOut}, v{vT[7]}, 4, v{vT[6]}')
I(f's_lshl_b32 s{sT1}, s{sN}, 6')
I(f'v_add_u32 v{vOut}, s{sT1}, v{vOut}')
I(f'v_lshlrev_b32 v{vGg}, 2, v{vT[5]}')
I(f's_lshr_b32 s{sT0}, s{sR2}, 2')
I(f's_lshl_b32 s{sT0}, s{sT0}, 10')
I(f's_bfe_u32 s{sT1}, s{sR2}, 0x10001')
I(f's_lshl_b32 s{sT1}, s{sT1}, 7')
I(f's_add_u32 s{sCn}, s{sT0}, s{sT1}')
I(f's_add_u32 s{sCn}, s{sCn}, {WS_CNT+128}')
I(f's_lshl_b32 s{sOb}, s{sR2}, 2')
I(f's_add_u32 s{sOb}, s{sOb}, s{sT3}')
I(f's_lshl_b32 s{sT2}, s{sOb}, 6')
I(f's_add_u32 s{sT2}, s{sT2}, {WS_G}')
I(f'v_add_u32 v{vGg}, s{sT2}, v{vGg}')
I(f's_lshl_b32 s{sOb}, s{sOb}, 15')
I(f's_lshl_b32 s{sT1}, s{sU}, 3')
I(f's_add_u32 s{sN}, s{sN}, s{sT1}')
I(f's_add_u32 s{sLh}, s{sCn}, 256')
vAcc = 104
def wfr(pos, t):
    return ('a', 32 + (pos * 4 + t) * 4) if pos < 5 else ('v', 56 + ((pos - 5) * 4 + t) * 4)
def p2_addr(half, pos):
    I(f's_add_u32 s{sT2}, s{sN}, {pos}')
    I(f's_and_b32 s{sT2}, s{sT2}, 15')
    I(f's_mul_i32 s{sT2}, s{sT2}, 3584')
    if half: I(f's_add_u32 s{sT2}, s{sT2}, 57344')
    for t in range(4): I(f'v_add_u32 v{vQ2+t}, s{sT2}, v{vP2 + (t ^ (2 * (pos & 1)))}')
def p2_frags(half, pos):
    p2_addr(half, pos)
    for t in range(4):
        c, r = wfr(pos, t)
        I(f'ds_read_b64_tr_b16 {c}[{r}:{r+1}], v{vQ2+t}')
        I(f'ds_read_b64_tr_b16 {c}[{r+2}:{r+3}], v{vQ2+t} offset:2048')
I(f's_cmp_eq_u32 s{sType}, 0')
I('s_cbranch_scc1 L_pubA')
NP0 = 8
MERGE = 'nomerge' not in OPT
if MERGE:
    I(f's_cmp_lg_u32 s{sWave}, 1')
    I('s_cbranch_scc1 L_pw_d')
    I(f's_cmp_ge_u32 s{sR}, 28')
    I('s_cbranch_scc1 L_pw_d')
    poll(sCn, 8, 'L_pw')
    e.label('L_pw_d')
for pos in range(NP0): p2_frags(0, pos)
e.all_vm()
I('s_barrier')
cnt_add(sTa, 'L_oaddB')
stamp('pub')
I(f's_cmp_ge_u32 s{sR}, 28')
I('s_cbranch_scc1 L_fin')
I('s_branch L_p2b' if MERGE else 's_branch L_p2')
e.label('L_pubA')
e.all_vm()
e.all_lg()
I('s_barrier')
cnt_add(sTa, 'L_oaddA')
stamp('pub')
I(f's_cmp_ge_u32 s{sR}, 28')
I('s_cbranch_scc1 L_fin')
for op in wo_ops((0,)): op()
e.all_vm()
I('s_barrier')
stamp('wo')
for pos in range(NP0): p2_frags(0, pos)
e.label('L_p2')
stamp('pre0')
for half in range(2):
    if half == 0:
        I(f's_cmp_lg_u32 s{sWave}, 1')
        I('s_cbranch_scc1 L_wait0_d')
        poll(sCn, 8, 'L_wait0')
        e.label('L_wait0_d')
        for pos in range(NP0, 8): p2_frags(0, pos)
        I('s_barrier')
        e.label('L_p2b')
    else:
        cnt_wait(sLh, 8, 'L_wait1', 2)
    stamp(f'wait{half}')
    otag = {}
    for pos in range(8):
        I(f's_add_u32 s{sT1}, s{sN}, {pos}')
        I(f's_and_b32 s{sT1}, s{sT1}, 15')
        I(f's_lshl_b32 s{sT1}, s{sT1}, 10')
        I(f's_add_u32 s{sT1}, s{sT1}, s{sOb}')
        otag[pos] = I(f'buffer_load_dwordx4 {a4(pos*4)}, v{vL16}, {srd(SWS)}, s{sT1} offen{" offset:0" if half == 0 else ""} sc1')
    if half == 0: I(f's_add_u32 s{sOb}, s{sOb}, 16384')
    else: gtag = I(f'buffer_load_dword v{vGg}, v{vGg}, {srd(SWS)}, 0 offen sc1')
    e.all_lg()
    for pos in range(8):
        e.need_vm(otag[pos])
        if pos == 0: stamp(f'h{half}p0')
        for t in range(4):
            c, r = wfr(pos, t)
            I(mf(vAcc + (half * 4 + t) * 4, f'{c}[{r}:{r+3}]', a4(pos * 4), pos == 0))
        if half == 0: p2_frags(1, pos)
    stamp(f'half{half}')
I(f's_lshl_b32 s{sT0}, s{sU}, 14')
I(f'v_add_u32 v{vT[4]}, s{sT0}, v{vCm}')
I(f'v_xor_b32 v{vT[5]}, 16384, v{vT[4]}')
vRx = 72
I(f's_cmp_lg_u32 s{sU}, 0')
I('s_cbranch_scc1 L_x1')
def xch(keep, give, lab):
    for k, t in enumerate(give):
        I(f'ds_write_b128 v{vT[4]}, {v4(vAcc+4*t)} offset:{k*2048}')
        I(f'ds_write_b128 v{vT[4]}, {v4(vAcc+16+4*t)} offset:{k*2048+1024}')
    e.all_lg()
    I('s_barrier')
    for k in range(4): rt_ = I(f'ds_read_b128 {v4(vRx+4*k)}, v{vT[5]} offset:{k*1024}')
    e.need_vm(gtag)
    for k, t in enumerate(keep):
        a, b = vAcc + 4 * t, vAcc + 16 + 4 * t
        e.need_lg(rt_ - 2 + 2 * k)
        for r in range(4): I(f'v_add_f32 v{a+r}, v{a+r}, v{vRx+8*k+r}')
        for r in range(4): I(f'v_add_f32 v{b+r}, v{b+r}, v{vRx+8*k+4+r}')
        for r in range(4): I(f'v_sub_f32 v{a+r}, v{a+r}, v{b+r}')
        for r in range(4): I(f'v_fma_f32 v{a+r}, v{a+r}, v{vGg}, v{b+r}')
        I(f'v_cvt_pk_bf16_f32 v{b}, v{a}, v{a+1}')
        I(f'v_cvt_pk_bf16_f32 v{b+1}, v{a+2}, v{a+3}')
        I(f'v_xor_b32 v{vT[k]}, {32*t}, v{vSw}')
        I(f'ds_write_b64 v{vT[k]}, {v2(b)}')
st_ = copy.deepcopy({k: getattr(e, k) for k in STATE})
xch((0, 1), (2, 3), 'a')
I('s_branch L_x2')
for k, v in copy.deepcopy(st_).items(): setattr(e, k, v)
e.label('L_x1')
xch((2, 3), (0, 1), 'b')
e.label('L_x2')
e.all_lg()
I('s_barrier')
I(f's_lshl_b32 s{sT0}, s{sU}, 10')
I(f'v_add_u32 v{vSr}, s{sT0}, v{vSr}')
tr = I(f'ds_read_b128 {v4(vF)}, v{vSr}')
I(f's_mul_i32 s{sT0}, s{sU}, 14336')
e.need_lg(tr)
I(f'buffer_store_dwordx4 {v4(vF)}, v{vOut}, {srd(SOUT)}, s{sT0} offen')
e.label('L_fin')
if DEBUG and 'hdbg' in OPT:
    stamp('end')
    I('s_memrealtime s[96:97]')
    I('s_waitcnt vmcnt(0) lgkmcnt(0)')
    wg, wv = OPT['hdbg'].split(':')
    I(f's_cmp_lg_u32 s2, {wg}')
    I('s_cbranch_scc1 L_end')
    I(f's_cmp_lg_u32 s{sWave}, {wv}')
    I('s_cbranch_scc1 L_end')
    I('s_mov_b64 exec, 1')
    I(f's_sub_u32 s96, s96, s{sStamp+1}')
    I(f'v_mov_b32 v2, s96')
    I(f'buffer_store_dword v2, off, {srd(SDBG)}, 0 offset:32')
    for k in range(1, 8):
        I(f's_sub_u32 s96, s{sStamp+2*k}, s{sStamp}')
        I(f'v_mov_b32 v2, s96')
        I(f'buffer_store_dword v2, off, {srd(SDBG)}, 0 offset:{32+4*k}')
elif DEBUG:
    stamp('end')
    I('s_waitcnt vmcnt(0) lgkmcnt(0)')
    I(f's_lshl_b32 s{sT0}, s2, 3')
    I(f's_add_u32 s{sT0}, s{sT0}, s{sWave}')
    I(f's_lshl_b32 s{sT0}, s{sT0}, 7')
    I(f's_add_u32 s{sT0}, s{sT0}, {WS_DBG}')
    I('s_mov_b64 exec, 1')
    for k in range(8):
        I(f'v_mov_b32 v2, s{sStamp+2*k}')
        I(f'buffer_store_dword v2, off, {srd(SWS)}, s{sT0} offset:{4*k}')
    I(f's_getreg_b32 s{sT1}, hwreg(HW_REG_XCC_ID)')
    I(f'v_mov_b32 v2, s{sT1}')
    I(f'buffer_store_dword v2, off, {srd(SWS)}, s{sT0} offset:40')
    I(f'v_mov_b32 v2, s{sType}')
    I(f'buffer_store_dword v2, off, {srd(SWS)}, s{sT0} offset:44')
    I(f'v_mov_b32 v2, s{sStamp+1}')
    I(f'buffer_store_dword v2, off, {srd(SWS)}, s{sT0} offset:48')
    I('s_memrealtime s[96:97]')
    I('s_waitcnt lgkmcnt(0)')
    I(f'v_mov_b32 v2, s96')
    I(f'buffer_store_dword v2, off, {srd(SWS)}, s{sT0} offset:52')
e.label('L_end')
I('s_endpgm')
e.raw(f""".section .rodata,"a"
.p2align 6
.amdhsa_kernel {KNAME}
  .amdhsa_next_free_vgpr 256
  .amdhsa_next_free_sgpr 102
  .amdhsa_accum_offset {NV}
  .amdhsa_group_segment_fixed_size 0
  .amdhsa_kernarg_size 80
  .amdhsa_user_sgpr_count 2
  .amdhsa_user_sgpr_kernarg_segment_ptr 1
  .amdhsa_system_sgpr_workgroup_id_x 1
.end_amdhsa_kernel""")
open(OUT, 'w').write(e.text())
print('instructions', e.ninstr, 'nop states', e.nnop, file=sys.stderr)
```

```python
import sys, copy, math, struct
sys.path.insert(0, 'work')
from asmlib import Em

KNAME = 'gated_mix__sliding_local_dilated__linear_attn_block__prompt_kernel'
OPT = {a.split('=')[0][2:]: (a.split('=')[1] if '=' in a else True) for a in sys.argv[1:] if a.startswith('--')}
DEBUG = 'dbg' in OPT
OUT = [a for a in sys.argv[1:] if not a.startswith('--')][0]

def f32(x): return struct.unpack('<I', struct.pack('<f', x))[0]

WS_KV = 4 << 20
WS_CNT = WS_KV + 65536
WS_G = WS_KV + 131072
WS_DBG = 6 << 20
WS_SIZE = 8 << 20
LDS_SIZE = 163840
WA = 0; XRA = 86016; HRA = 135168
WB = 0; XRB = 57344; WT = 114688; DUMMY = 150528; GW = 159744
CMB = 131072; STG = 118784
def unitB(u): return WB + (u & 7) * 7168 if u < 14 else WT + ((u - 14) % 5) * 7168
sSpin = 3
SX, SW, SWS, SWOA, SWOB, SOUT, SDBG, SGW = 4, 8, 12, 16, 20, 24, 28, 32
sStamp = 36
SX3 = 52
sType, sI, sJ, sWave, sSel, sP, sU, sH = 56, 57, 58, 59, 60, 61, 62, 63
sWo = 64; sXo = 71
sR, sM0a, sM0c, sXm = 78, 79, 80, 81
sTa, sTb = 82, 83
sSo2, sLo2 = 84, 85
sT0, sT1, sT2, sT3 = 86, 87, 88, 89
sCur = 90
sScale = 98
sSave = 100
SPIN_MAX = 1 << 19

def srd(n): return f's[{n}:{n+3}]'
def v4(n): return f'v[{n}:{n+3}]'
def v2(n): return f'v[{n}:{n+1}]'
def a4(n): return f'a[{n}:{n+3}]'

NV = 136
vLane = 1
vT = [2, 3, 4, 5, 6, 7, 8, 9]
vWs = 10
vHd = 13
vXd = 14
vWo = 16
vLa = 17
vXr = 18
vHr = 20
vBias = 22; vBias0 = 26
vMC01, vMC23, vMP01, vMP23, vPad = 30, 31, 32, 33, 34
vL16 = 35
vFlag = 36
vMisc = 37
vLa2 = 39
vF = 40

e = Em()
I = e.I
cur = 'A'
SEL = OPT['stamps'].split(',') if 'stamps' in OPT else ['kend', 'vend', 'gend', 'pub', 'wait1', 'half1', 'end']
def stamp(name):
    if DEBUG and name in SEL:
        k = 1 + SEL.index(name)
        assert k < 8
        e.Ix(f's_memtime s[{sStamp+2*k}:{sStamp+2*k+1}]')

e.raw(f"""; fused gated-mix kernel: QKV GEMM + local attention / linear attention + out projection
; @launch grid=(256,1,1) block=(512,1,1) lds={LDS_SIZE}
.amdgcn_target "amdgcn-amd-amdhsa--gfx950"
.text
.globl {KNAME}
.p2align 8
.type {KNAME},@function
{KNAME}:""")
I('s_cmp_ge_u32 s2, 0x100')
I('s_cbranch_scc1 L_end')
if DEBUG: I('s_memtime s[98:99]')
if DEBUG: I('s_memrealtime s[96:97]')
I('s_load_dwordx16 s[36:51], s[0:1], 0')
I('s_load_dwordx4 s[92:95], s[0:1], 64')
def code_pf():
    I('s_getpc_b64 s[90:91]')
    e.label('L_pc')
    I('v_lshlrev_b32 v133, 7, v0')
    I('v_min_u32 v133, L_end-L_pc, v133')
    e.Ix('global_load_dword v135, v133, s[90:91]')
if OPT.get('cpf', 'early') == 'early': code_pf()
I(f'v_and_b32 v{vLane}, 63, v0')
I(f'v_lshrrev_b32 v2, 6, v0')
sC = sT3
I(f's_and_b32 s{sC}, s2, 7')
I(f's_lshr_b32 s{sR}, s2, 3')
I(f'v_readfirstlane_b32 s{sWave}, v2')
sRot = sTa
I(f's_and_b32 s{sType}, s{sC}, 1')
I(f's_lshr_b32 s{sT0}, s{sC}, 2')
I(f's_lshl_b32 s{sI}, s{sT0}, 3')
I(f's_and_b32 s{sT1}, s{sR}, 7')
I(f's_add_u32 s{sI}, s{sI}, s{sT1}')
I(f's_bfe_u32 s{sT0}, s{sC}, 0x10001')
I(f's_lshl_b32 s{sJ}, s{sT0}, 2')
I(f's_lshr_b32 s{sT2}, s{sR}, 3')
I(f's_add_u32 s{sJ}, s{sJ}, s{sT2}')
I(f's_lshl_b32 s{sT2}, s{sT2}, 1')
I(f's_add_u32 s{sRot}, s{sT1}, s{sT2}')
I(f's_and_b32 s{sT0}, s{sC}, 3')
I(f's_add_u32 s{sRot}, s{sRot}, s{sT0}')
if OPT.get('rot') == 'none': I(f's_mov_b32 s{sRot}, 0')
if OPT.get('rot') == 'i': I(f's_mov_b32 s{sRot}, s{sT1}')
if OPT.get('rot') == 'noc': I(f's_sub_u32 s{sRot}, s{sRot}, s{sT0}')
for _ in range(2):
    I(f's_sub_u32 s{sT0}, s{sRot}, 7')
    I(f's_cmp_ge_u32 s{sRot}, 7')
    I(f's_cselect_b32 s{sRot}, s{sT0}, s{sRot}')
I(f's_and_b32 s{sP}, s{sWave}, 1')
I(f's_bfe_u32 s{sH}, s{sWave}, 0x10001')
I(f's_lshr_b32 s{sU}, s{sWave}, 2')
I(f's_lshl_b32 s{sXo}, s{sRot}, 7')
I(f's_mul_i32 s{sWo}, s{sXo}, 1344')
q, g = vT[0], vT[1]
I(f'v_lshrrev_b32 v{q}, 3, v{vLane}')
I(f'v_lshrrev_b32 v{g}, 4, v{vLane}')
I(f'v_and_b32 v{vT[6]}, 7, v{vLane}')
I(f's_lshl_b32 s{sT0}, s{sI}, 7')
I(f's_lshr_b32 s{sT2}, s{sWave}, 1')
I(f's_lshl_b32 s{sT1}, s{sT2}, 5')
I(f's_add_u32 s{sT1}, s{sT1}, s{sT0}')
I(f's_add_u32 s{sT1}, s{sT1}, s{sP}')
I(f'v_lshl_add_u32 v{vT[2]}, v{q}, 1, s{sT1}')
I(f'v_mul_u32_u24 v{vT[2]}, 896, v{vT[2]}')
I(f'v_xor_b32 v{vT[4]}, v{vT[6]}, v{g}')
I(f'v_lshl_add_u32 v{vXd}, v{vT[4]}, 4, v{vT[2]}')
I(f'v_xor_b32 v{vXd+1}, 64, v{vXd}')
I(f'v_add_u32 v{vXd+1}, 14336, v{vXd+1}')
I(f's_mul_i32 s{sXm}, s{sType}, {(XRB - XRA) & 0xffffffff}')
I(f's_add_u32 s{sXm}, s{sXm}, {XRA}')
I(f's_lshl_b32 s{sT1}, s{sWave}, 11')
I(f's_add_u32 s{sSo2}, s{sXm}, s{sT1}')
sXw = sSo2
I(f'v_mov_b32 v{vT[7]}, 2688')
def woff(dst, s_u0, s_base):
    a, b, c, d = vT[2], vT[3], vT[4], vT[5]
    I(f'v_add_u32 v{a}, s{s_u0}, v{vLane}')
    I(f'v_mul_u32_u24 v{b}, 9363, v{a}')
    I(f'v_lshrrev_b32 v{b}, 16, v{b}')
    I(f'v_mad_i32_i24 v{a}, v{b}, -7, v{a}')
    I(f'v_bfe_u32 v{c}, v{b}, 1, 2')
    I(f'v_and_b32 v{d}, 1, v{b}')
    I(f'v_lshl_or_b32 v{c}, v{d}, 2, v{c}')
    I(f'v_and_or_b32 v{c}, v{b}, 56, v{c}')
    I(f'v_mad_u32_u24 v{c}, v{c}, v{vT[7]}, s{s_base}')
    I(f'v_lshl_add_u32 v{dst}, v{a}, 4, v{c}')
sJb = sLo2
I(f's_mul_i32 s{sJb}, s{sJ}, 112')
I(f's_lshl_b32 s{sT0}, s{sWave}, 6')
I(f's_lshl_b32 s{sM0a}, s{sWave}, 10')
I(f's_lshl_b32 s{sT2}, s{sType}, 31')
I(f's_add_u32 s{sT2}, s{sT2}, 896')
I(f's_add_u32 s{sT2}, s{sT2}, s{sJb}')
I(f's_cmp_eq_u32 s{sWave}, 7')
I(f's_cselect_b32 s{sT0}, 0, s{sT0}')
I(f's_cselect_b32 s{sT1}, s{sT2}, s{sJb}')
I(f's_cselect_b32 s{sT2}, s{sType}, 0')
woff(vWs, sT0, sT1)
I(f's_cmp_eq_u32 s{sT2}, 1')
I(f's_cselect_b32 s{sM0c}, {DUMMY}, s{sM0a}')
I(f's_cselect_b32 s{sSel}, 0, 1')
I(f's_mul_i32 s{sTa}, s{sType}, 896')
I(f's_add_u32 s{sTa}, s{sTa}, s{sWo}')
I(f'v_lshlrev_b32 v{vL16}, 4, v{vLane}')
I('s_waitcnt lgkmcnt(0)')
def mksrd(n, lo, size):
    I(f's_mov_b32 s{n}, s{lo}'); I(f's_mov_b32 s{n+1}, s{lo+1}'); I(f's_mov_b32 s{n+2}, {size}'); I(f's_mov_b32 s{n+3}, 0x20000')
mksrd(SX, 36, 1835008)
def x_op(si, hq):
    I(f's_add_u32 m0, s{sXw}, {(si % 3) * 16384 + hq * 1024}')
    return I(f'buffer_load_dwordx4 v{vXd+hq}, {srd(SX)}, s{sXo+si} offen lds')
x_op(0, 0); x_op(0, 1)
I(f's_cmp_eq_u32 s{sType}, 0')
I(f's_cselect_b32 s{SW}, s38, s44')
I(f's_cselect_b32 s{SW+1}, s39, s45')
I(f's_mov_b32 s{SW+2}, 1204224'); I(f's_mov_b32 s{SW+3}, 0x20000')
I(f's_mov_b32 m0, s{sM0c}')
TAG0 = I(f'buffer_load_dwordx4 v{vWs}, {srd(SW)}, s{sTa} offen lds')
if OPT.get('cpf') == 'mid': code_pf()

def late_prologue():
    for p in range(1, 7):
        I(f's_add_u32 s{sXo+p}, s{sXo+p-1}, 128')
        I(f's_cmp_eq_u32 s{sXo+p}, 896')
        I(f's_cselect_b32 s{sXo+p}, 0, s{sXo+p}')
        I(f's_mul_i32 s{sWo+p}, s{sXo+p}, 1344')
    mksrd(SWS, 94, WS_SIZE); mksrd(SDBG, 92, 256)
    mksrd(SWOA, 40, 401408); mksrd(SWOB, 46, 401408); mksrd(SOUT, 50, 1835008); mksrd(SGW, 48, 896)
    if DEBUG:
        for k in range(16): I(f's_mov_b32 s{sStamp+k}, s98')
        I(f's_mov_b32 s{sStamp+1}, s96')

def touch_prefetch():
    if 'touch' not in OPT: return
    L = 'L_tp' + cur
    I(f's_cmp_ge_u32 s{sWave}, 4')
    I(f's_cbranch_scc1 {L}w')
    I(f's_and_b32 s{sT0}, s{sR}, 15')
    I(f's_mul_i32 s{sT0}, s{sT0}, 25088')
    I(f'v_lshlrev_b32 v{vT[3]}, 7, v0')
    I(f's_cmp_ge_u32 s{sR}, 16')
    I(f's_cbranch_scc1 {L}b')
    e.Ix(f'buffer_load_dword v134, v{vT[3]}, {srd(SWOA)}, s{sT0} offen')
    I(f's_branch {L}e')
    e.label(L + 'b')
    e.Ix(f'buffer_load_dword v134, v{vT[3]}, {srd(SWOB)}, s{sT0} offen')
    I(f's_branch {L}e')
    e.label(L + 'w')
    if cur == 'B':
        I(f's_mul_i32 s{sT0}, s{sJ}, 112')
        I(f's_mul_i32 s{sT1}, s{sP}, 108')
        I(f's_add_u32 s{sT0}, s{sT0}, s{sT1}')
        I(f's_add_u32 s{sT1}, s{sT0}, 1792')
        I(f's_cmp_eq_u32 s{sH}, 0')
        I(f's_cselect_b32 s{sT0}, s{sT1}, s{sT0}')
        I(f's_add_u32 s{sT0}, s{sT0}, s{sWo}')
        I(f'v_mul_u32_u24 v{vT[3]}, 2688, v{vLane}')
        e.Ix(f'buffer_load_dword v134, v{vT[3]}, {srd(SW)}, s{sT0} offen')
    e.label(L + 'e')

def zero_duty():
    I('s_cmp_ge_u32 s2, 8')
    I('s_cbranch_scc1 L_nozero' + cur)
    for k in range(4): I(f'v_mov_b32 v{104+k}, 0')
    I(f'v_lshlrev_b32 v{vT[2]}, 4, v0')
    I(f's_lshl_b32 s{sT0}, s2, 13')
    I(f's_add_u32 s{sT0}, s{sT0}, {WS_KV}')
    e.Ix(f'buffer_store_dwordx4 {v4(104)}, v{vT[2]}, {srd(SWS)}, s{sT0} offen sc1')
    I(f's_cmp_lg_u32 s{sWave}, 0')
    I('s_cbranch_scc1 L_nozero' + cur)
    I(f's_lshl_b32 s{sT0}, s2, 10')
    I(f's_add_u32 s{sT0}, s{sT0}, {WS_CNT}')
    e.Ix(f'buffer_store_dwordx4 {v4(104)}, v{vT[2]}, {srd(SWS)}, s{sT0} offen sc1')
    e.label('L_nozero' + cur)

nlab = [0]
def run_gemm(NS, nf, ops_of, frag, xrd, mfmas, issue_at, tag0, setup, fillers, hooks, extra=None, extra_vm=None, fill_rate=2, skip=()):
    NT = 2 * NS
    tags = {0: tag0}
    for si in range(1, NS):
        if isinstance(issue_at[si], int) and issue_at[si] < 0:
            for o in ops_of(si):
                tg = o()
                if tg is not None: tags[si] = tg
    setup()
    stamp('setup')
    e.need_vm(tags[0])
    I('s_barrier')
    stamp('b0')
    ftag, xtag = {}, {}
    for t in (0,1):
        xtag[t] = xrd(t)
        for f in range(nf): ftag[(t, f)] = frag(t, f)
    fq = []
    for t in range(NT):
        si, ks = t >> 1, t & 1
        more = t + 2 < NT
        if ('pre', t) in hooks: hooks[('pre', t)]()
        if ks == 0 and si + 1 < NS and (si + 1) not in skip:
            b = si + 1
            if ('prebar', b) in hooks: hooks[('prebar', b)]()
            bb = b
            while bb + 1 in skip: bb += 1
            e.need_vm(max(tags[x] for x in range(b, bb + 1)))
            I('s_barrier')
            stamp(f'b{b}')
            if ('bar', b) in hooks: hooks[('bar', b)]()
        vops = []
        for sj in range(1, NS):
            if issue_at[sj] == t:
                vops += [(sj, o) for o in ops_of(sj)]
            elif isinstance(issue_at[sj], tuple) and t in issue_at[sj]:
                ops = ops_of(sj)
                n = len(issue_at[sj]); k = issue_at[sj].index(t)
                lo, hi = len(ops) * k // n, len(ops) * (k + 1) // n
                vops += [(sj, o) for o in ops[lo:hi]]
        if extra_vm and t in extra_vm: vops += [(None, o) for o in extra_vm[t]]
        fq += fillers.get(t, [])
        e.need_lg(xtag.get(t))
        for f in range(nf):
            e.need_lg(ftag[(t, f)])
            for m in mfmas(t, f):
                I(m)
                for _ in range(fill_rate):
                    if fq: fq.pop(0)()
            if more: ftag[(t + 2, f)] = frag(t + 2, f)
            nv = (len(vops) + nf - f - 1) // (nf - f)
            for _ in range(nv):
                sj, o = vops.pop(0); tg = o()
                if sj is not None and tg is not None: tags[sj] = tg
        if more: xtag[t + 2] = xrd(t + 2)
        if extra: extra(t)
        if ('post', t) in hooks:
            while fq: fq.pop(0)()
            hooks[('post', t)]()
    while fq: fq.pop(0)()

def mf(d, a, b, first):
    return f'v_mfma_f32_16x16x32_bf16 {v4(d)}, {a}, {b}, {"0" if first else v4(d)}'

def flag_store_hook():
    I('s_cmp_ge_u32 s2, 8')
    I('s_cbranch_scc1 L_nf' + cur)
    I(f's_cmp_lg_u32 s{sWave}, 0')
    I('s_cbranch_scc1 L_nf' + cur)
    I(f's_lshl_b32 s{sT0}, s2, 2')
    I(f'v_mov_b32 v{vFlag}, 1')
    I(f's_mov_b64 exec, 1')
    e.Ix(f'buffer_store_dword v{vFlag}, off, {srd(SDBG)}, s{sT0} sc1')
    I(f's_mov_b64 exec, -1')
    e.label('L_nf' + cur)

def flag_load_hook():
    I(f'v_lshlrev_b32 v{vMisc}, 2, v{vLane}')
    I(f's_cmp_lg_u32 s{sWave}, 0')
    I('s_cbranch_scc1 L_nl' + cur)
    I(f's_mov_b64 exec, 0xff')
    e.Ix(f'buffer_load_dword v{vFlag}, v{vMisc}, {srd(SDBG)}, 0 offen sc1')
    I(f's_mov_b64 exec, -1')
    e.label('L_nl' + cur)

def flag_check_hook():
    I(f's_cmp_lg_u32 s{sWave}, 0')
    I('s_cbranch_scc1 L_nc' + cur)
    I(f's_mov_b64 exec, 0xff')
    I(f's_mov_b32 s{sSpin}, 0')
    e.label('L_fc' + cur)
    I(f'v_cmp_eq_u32 vcc, 0, v{vFlag}')
    e.nop(4)
    I('s_cbranch_vccz L_fok' + cur)
    I(f's_add_u32 s{sSpin}, s{sSpin}, 1')
    I(f's_cmp_ge_u32 s{sSpin}, {SPIN_MAX}')
    I('s_cbranch_scc1 L_fok' + cur)
    I('s_sleep 2')
    e.Ix(f'buffer_load_dword v{vFlag}, v{vMisc}, {srd(SDBG)}, 0 offen sc1')
    I('s_waitcnt vmcnt(0)')
    I('s_branch L_fc' + cur)
    e.label('L_fok' + cur)
    I(f's_mov_b64 exec, -1')
    e.label('L_nc' + cur)

def lane_addrs():
    a, b, c = vT[2], vT[3], vT[4]
    q, g = vT[0], vT[1]
    I(f'v_and_b32 v{q}, 15, v{vLane}')
    I(f'v_lshrrev_b32 v{g}, 4, v{vLane}')
    I(f'v_bfe_u32 v{a}, v{vLane}, 2, 2')
    I(f'v_lshl_add_u32 v{a}, v{g}, 2, v{a}')
    I(f'v_mul_u32_u24 v{a}, 224, v{a}')
    I(f'v_and_b32 v{b}, 3, v{vLane}')
    I(f'v_lshl_add_u32 v{vLa}, v{b}, 3, v{a}')
    I(f's_mul_i32 s{sT0}, s{sH}, 56')
    I(f'v_add_u32 v{vLa}, s{sT0}, v{vLa}')
    I(f'v_lshrrev_b32 v{a}, 1, v{q}')
    I(f'v_xor_b32 v{a}, v{a}, v{g}')
    I(f'v_lshlrev_b32 v{a}, 4, v{a}')
    I(f'v_lshl_add_u32 v{a}, v{q}, 7, v{a}')
    I(f's_and_b32 s{sT0}, s{sWave}, 5')
    I(f's_lshl_b32 s{sT0}, s{sT0}, 11')
    I(f's_add_u32 s{sT0}, s{sT0}, s{sXm}')
    I(f'v_add_u32 v{vXr}, s{sT0}, v{a}')
    I(f'v_xor_b32 v{vXr+1}, 64, v{vXr}')

def setup2(out):
    a, b, c = vT[2], vT[3], vT[4]
    g = vT[1]
    A = lambda s: out.append(lambda: I(s))
    A(f'v_cmp_gt_u32 vcc, 3, v{g}')
    A(f'v_cndmask_b32 v{vPad}, 0, -1, vcc')
    A(f'v_lshrrev_b32 v{a}, 3, v{vLane}')
    A(f'v_mul_u32_u24 v{a}, 896, v{a}')
    A(f'v_lshlrev_b32 v{b}, 1, v{g}')
    A(f'v_and_b32 v{c}, 7, v{vLane}')
    A(f'v_xor_b32 v{b}, v{b}, v{c}')
    A(f'v_lshl_add_u32 v{vWo}, v{b}, 4, v{a}')
    def w3():
        I(f's_lshr_b32 s{sT1}, s{sR}, 2')
        I(f's_lshl_b32 s{sT1}, s{sT1}, 7')
        I(f's_cmp_ge_u32 s{sR}, 28')
        I(f's_cselect_b32 s{sT1}, 0x80000000, s{sT1}')
        I(f'v_add_u32 v{vWo}, s{sT1}, v{vWo}')
    out.append(w3)

def wo_init():
    I(f's_and_b32 s{sT0}, s{sR}, 3')
    I(f's_lshl_b32 s{sT0}, s{sT0}, 4')
    I(f's_add_u32 s{sT0}, s{sT0}, s{sWave}')
    I(f's_lshl_b32 s{sLo2}, s{sT0}, 10')
    I(f's_mul_i32 s{sSo2}, s{sLo2}, 7')

def wo_ops(halves=(0, 1)):
    ops = []
    for half in halves:
        for qq in range(7):
            def f(half=half):
                I(f's_add_u32 m0, s{sLo2}, {half*57344}')
                tg = I(f'buffer_load_dwordx4 v{vWo}, {srd(SWOA if half == 0 else SWOB)}, s{sSo2} offen lds')
                I(f's_add_u32 s{sLo2}, s{sLo2}, 8192')
                I(f's_cmp_ge_u32 s{sLo2}, 57344')
                I(f's_cselect_b32 s{sTb}, 57344, 0')
                I(f's_sub_u32 s{sLo2}, s{sLo2}, s{sTb}')
                I(f's_mul_i32 s{sSo2}, s{sLo2}, 7')
                return tg
            ops.append(f)
    return ops

def spread(ops, ts):
    n = len(ts)
    return {t: ops[len(ops) * k // n: len(ops) * (k + 1) // n] for k, t in enumerate(ts)}

def xlane(op, m, m2, out):
    out.append(lambda: I(f'v_mov_b32 v{m2}, v{m}'))
    out.append(lambda: I(f'v_permlane16_swap_b32 v{m}, v{m2}'))
    out.append(lambda: I(f'{op} v{m}, v{m}, v{m2}'))
    out.append(lambda: I(f'v_mov_b32 v{m2}, v{m}'))
    out.append(lambda: I(f'v_permlane32_swap_b32 v{m}, v{m2}'))
    out.append(lambda: I(f'{op} v{m}, v{m}, v{m2}'))

def interleave(lists):
    out = []
    for k in range(max(len(l) for l in lists)):
        for l in lists:
            if k < len(l): out.append(l[k])
    return out

sO = [94, 95]
def o_offsets():
    I(f's_lshl_b32 s{sT0}, s{sI}, 3')
    I(f's_and_b32 s{sT1}, s{sWave}, 5')
    I(f's_add_u32 s{sT0}, s{sT0}, s{sT1}')
    I(f's_lshl_b32 s{sT0}, s{sT0}, 5')
    I(f's_lshl_b32 s{sT1}, s{sType}, 4')
    I(f's_add_u32 s{sT0}, s{sT0}, s{sT1}')
    I(f's_lshl_b32 s{sT1}, s{sJ}, 1')
    I(f's_add_u32 s{sT0}, s{sT0}, s{sT1}')
    I(f's_add_u32 s{sT0}, s{sT0}, s{sH}')
    I(f's_lshl_b32 s{sO[0]}, s{sT0}, 10')
    I(f's_add_u32 s{sO[1]}, s{sO[0]}, 65536')

def pack_T(out, dst, acc0, acc1):
    out.append(lambda: I(f'v_cvt_pk_bf16_f32 v{dst}, v{acc0}, v{acc0+1}'))
    out.append(lambda: I(f'v_cvt_pk_bf16_f32 v{dst+1}, v{acc0+2}, v{acc0+3}'))
    out.append(lambda: I(f'v_cvt_pk_bf16_f32 v{dst+2}, v{acc1}, v{acc1+1}'))
    out.append(lambda: I(f'v_cvt_pk_bf16_f32 v{dst+3}, v{acc1+2}, v{acc1+3}'))
    out.append(lambda: I(f'v_and_b32 v{dst+2}, v{vPad}, v{dst+2}'))
    out.append(lambda: I(f'v_and_b32 v{dst+3}, v{vPad}, v{dst+3}'))

def Oacc(T, dt): return vO + (T * 2 + dt) * 4
def o_finish(T, inv):
    d = vOp + 4 * T
    for dt in range(2):
        a = Oacc(T, dt)
        for r in range(4): I(f'v_mul_f32 v{a+r}, v{inv}, v{a+r}')
        I(f'v_cvt_pk_bf16_f32 v{d+2*dt}, v{a}, v{a+1}')
        I(f'v_cvt_pk_bf16_f32 v{d+2*dt+1}, v{a+2}, v{a+3}')
    I(f'v_and_b32 v{d+2}, v{vPad}, v{d+2}')
    I(f'v_and_b32 v{d+3}, v{vPad}, v{d+3}')
    I(f'buffer_store_dwordx4 {v4(d)}, v{vL16}, {srd(SWS)}, s{sO[T]} offen sc1')

def cnt_add(sreg_off, lab):
    I(f's_cmp_lg_u32 s{sWave}, 0')
    I(f's_cbranch_scc1 {lab}')
    I(f'v_mov_b32 v{vFlag}, 1')
    I('s_mov_b64 exec, 1')
    e.Ix(f'buffer_atomic_add v{vFlag}, off, {srd(SWS)}, s{sreg_off}')
    I('s_mov_b64 exec, -1')
    e.label(lab)

def poll(sreg_off, n, lab):
    I('s_mov_b64 exec, 1')
    I(f's_mov_b32 s{sSpin}, 0')
    e.label(lab)
    e.Ix(f'buffer_load_dword v{vFlag}, off, {srd(SWS)}, s{sreg_off} sc1')
    I(f's_add_u32 s{sSpin}, s{sSpin}, 1')
    I('s_waitcnt vmcnt(0)')
    I(f'v_readfirstlane_b32 s{sT3}, v{vFlag}')
    I(f's_cmp_ge_u32 s{sT3}, {n}')
    I(f's_cbranch_scc1 {lab}_k')
    I(f's_cmp_ge_u32 s{sSpin}, {SPIN_MAX}')
    I(f's_cbranch_scc1 {lab}_k')
    I('s_sleep 1')
    I(f's_branch {lab}')
    e.label(lab + '_k')
    I('s_mov_b64 exec, -1')

def cnt_wait(sreg_off, n, lab, wv=1):
    I(f's_cmp_lg_u32 s{sWave}, {wv}')
    I(f's_cbranch_scc1 {lab}_d')
    poll(sreg_off, n, lab)
    e.label(lab + '_d')
    I('s_barrier')


I(f's_cmp_lg_u32 s{sType}, 0')
I('s_cbranch_scc1 L_typeB')
STATE = ('t', 'w', 'cread', 'stread', 'vm_issued', 'vm_done', 'lg_issued', 'lg_done')
snap = copy.deepcopy({k: getattr(e, k) for k in STATE})
ISS = {1: -1, 2: 0}
for si in range(3, 7): ISS[si] = (2 * si - 5, 2 * si - 4)
if OPT.get('iss') == 'late':
    for si in range(2, 7): ISS[si] = (2 * si - 4, 2 * si - 3)

cur = 'A'
I(f's_add_u32 s{sT0}, s{sWave}, 1')
I(f's_sub_u32 s{sT1}, s{sWave}, 6')
I(f's_add_u32 s{sT2}, s{sJb}, 896')
I(f's_add_u32 s{sT3}, s{sJb}, 1792')
I(f's_cmp_ge_u32 s{sWave}, 6')
I(f's_cselect_b32 s{sT0}, s{sT1}, s{sT0}')
I(f's_cselect_b32 s{sT2}, s{sT3}, s{sT2}')
I(f's_lshl_b32 s{sT0}, s{sT0}, 6')
woff(vWs + 1, sT0, sT2)
I(f's_add_u32 m0, s{sM0a}, 8192')
I(f'buffer_load_dwordx4 v{vWs+1}, {srd(SW)}, s{sWo} offen lds')
I(f's_add_u32 s{sT0}, s{sWave}, 2')
I(f's_min_u32 s{sT0}, s{sT0}, 6')
I(f's_lshl_b32 s{sT0}, s{sT0}, 6')
woff(vWs + 2, sT0, sT3)
I(f's_sub_u32 s{sT1}, s{sWave}, 5')
I(f's_cmp_ge_u32 s{sWave}, 5')
I(f's_cselect_b32 s{sTb}, s{sT1}, 3')
I(f's_cselect_b32 s{sSel}, 0, 1')
I(f's_cselect_b64 s[{sSave}:{sSave+1}], -1, 0')
I(f's_cselect_b32 s{SX3}, s{SX}, s{SW}')
I(f's_cselect_b32 s{SX3+1}, s{SX+1}, s{SW+1}')
I(f's_cselect_b32 s{SX3+2}, s{SX+2}, s{SW+2}')
I(f's_mov_b32 s{SX3+3}, 0x20000')
I(f's_and_b32 s{sT1}, s{sTb}, 2')
I(f's_lshl_b32 s{sT1}, s{sT1}, 5')
I(f's_and_b32 s{sT2}, s{sTb}, 1')
I(f's_add_u32 s{sT1}, s{sT1}, s{sT2}')
I(f's_lshl_b32 s{sT0}, s{sI}, 7')
I(f's_add_u32 s{sT1}, s{sT1}, s{sT0}')
I(f'v_lshl_add_u32 v{vT[2]}, v{vT[0]}, 1, s{sT1}')
I(f'v_mul_u32_u24 v{vT[2]}, 896, v{vT[2]}')
I(f'v_and_b32 v{vT[4]}, 6, v{vT[0]}')
I(f'v_xor_b32 v{vT[4]}, v{vT[6]}, v{vT[4]}')
I(f'v_lshl_add_u32 v{vHd}, v{vT[4]}, 4, v{vT[2]}')
I(f'v_add_u32 v{vHd}, 0xffffc800, v{vHd}')
I(f'v_cndmask_b32 v{vWs+2}, v{vWs+2}, v{vHd}, s[{sSave}:{sSave+1}]')
sHm = sLo2
I(f's_lshl_b32 s{sTb}, s{sTb}, 10')
I(f's_add_u32 s{sHm}, s{sTb}, {HRA}')
I(f's_add_u32 s{sM0c}, s{sM0a}, 16384')
I(f's_cmp_eq_u32 s{sSel}, 0')
I(f's_cselect_b32 s{sM0c}, s{sHm}, s{sM0c}')
def opsA(si, first=False):
    base = WA + (si & 3) * 21504; hr = (si & 3) * 4096
    def fh():
        nlab[0] += 1
        I(f's_cmp_lg_u32 s{sWave}, 4')
        I(f's_cbranch_scc1 L_nh{nlab[0]}')
        I(f's_add_u32 m0, s{sHm}, {hr}')
        e.Ix(f'buffer_load_dwordx4 v{vHd}, {srd(SX)}, s{sXo+si} offen lds')
        e.label(f'L_nh{nlab[0]}')
    def fk(k):
        I(f's_add_u32 m0, s{sM0a}, {base + 8192 * k}')
        return I(f'buffer_load_dwordx4 v{vWs+k}, {srd(SW)}, s{sWo+si} offen lds')
    def f2():
        I(f's_mul_i32 m0, s{sSel}, {(base - hr) & 0xffffffff}')
        I(f's_cmp_lg_u32 s{sSel}, 0')
        I(f's_cselect_b32 s{sTa}, s{sWo+si}, s{sXo+si}')
        I(f's_add_u32 m0, m0, s{sM0c}')
        if hr: I(f's_add_u32 m0, m0, {hr}')
        return I(f'buffer_load_dwordx4 v{vWs+2}, {srd(SX3)}, s{sTa} offen lds')
    if first: return [fh, f2]
    return [fh, lambda: fk(0), lambda: fk(1), f2, lambda: x_op(si, 0), lambda: x_op(si, 1)]
for o in opsA(0, True): tagA0 = o()
late_prologue()
stamp('ld0')
def setupA():
    touch_prefetch()
    zero_duty()
    lane_addrs()
    q, g, c, d = vT[0], vT[1], vT[2], vT[3]
    I(f'v_add_u32 v{vLa2}, 43008, v{vLa}')
    I(f'v_and_b32 v{c}, 6, v{q}')
    I(f'v_xor_b32 v{c}, v{c}, v{g}')
    I(f'v_lshlrev_b32 v{c}, 4, v{c}')
    I(f'v_and_b32 v{d}, 7, v{q}')
    I(f'v_lshl_add_u32 v{c}, v{d}, 7, v{c}')
    I(f's_lshl_b32 s{sT0}, s{sU}, 1')
    I(f's_add_u32 s{sT0}, s{sT0}, s{sP}')
    I(f's_lshl_b32 s{sT0}, s{sT0}, 10')
    I(f's_add_u32 s{sT0}, s{sT0}, {HRA}')
    I(f'v_add_u32 v{vHr}, s{sT0}, v{c}')
    I(f'v_xor_b32 v{vHr+1}, 64, v{vHr}')
def setupA2(out):
    q, g, c, d = vT[0], vT[1], vT[2], vT[3]
    A = lambda s: out.append(lambda: I(s))
    A(f'v_mov_b32 v{vT[5]}, 0xff800000')
    A(f's_or_b32 s{sT2}, s{sI}, s{sU}')
    for r in range(4):
        A(f'v_lshl_add_u32 v{c}, v{g}, 2, {r}')
        A(f'v_cmp_le_u32 s[{sCur+2*r}:{sCur+2*r+1}], v{c}, v{q}')
        A(f'v_sub_u32 v{d}, v{q}, v{c}')
        A(f'v_and_b32 v{d}, 15, v{d}')
        A(f'v_cmp_gt_u32 vcc, 8, v{d}')
        A(f'v_cndmask_b32 v{vBias+r}, v{vT[5]}, 0, vcc')
        def blk(r=r):
            I(f's_and_b64 s[{sSave}:{sSave+1}], vcc, s[{sCur+2*r}:{sCur+2*r+1}]')
            I(f's_cmp_eq_u32 s{sT2}, 0')
            I(f's_cselect_b64 s[{sSave}:{sSave+1}], s[{sSave}:{sSave+1}], vcc')
        out.append(blk)
        A(f'v_cndmask_b32 v{vBias0+r}, v{vT[5]}, 0, s[{sSave}:{sSave+1}]')
    for (mc, mp, r) in ((vMC01, vMP01, 0), (vMC23, vMP23, 2)):
        A(f'v_mov_b32 v{c}, 0xffff')
        A(f'v_cndmask_b32 v{mc}, 0, v{c}, s[{sCur+2*r}:{sCur+2*r+1}]')
        A(f'v_mov_b32 v{c}, 0xffff0000')
        A(f'v_cndmask_b32 v{d}, 0, v{c}, s[{sCur+2*r+2}:{sCur+2*r+3}]')
        A(f'v_or_b32 v{mc}, v{mc}, v{d}')
        A(f'v_not_b32 v{mp}, v{mc}')
    A(f's_mov_b32 s{sScale}, 0x{f32(28 ** -0.5 * math.log2(math.e)):08x}')


def afr(t, f): return ((t & 1) * 6 + f) * 4
def axr(t, T): return 48 + ((t & 1) * 3 + T) * 4
def fragA(t, f):
    si, ks = t >> 1, t & 1
    off = (si & 1) * 21504 + (f >> 1) * 7168 + ks * 3584 + (f & 1) * 32
    va = vLa2 if si & 2 else vLa
    r = afr(t, f)
    I(f'ds_read_b64_tr_b16 a[{r}:{r+1}], v{va} offset:{off}')
    return I(f'ds_read_b64_tr_b16 a[{r+2}:{r+3}], v{va} offset:{off+112}')
def xrdA(t):
    si, ks = t >> 1, t & 1
    for T in range(2): I(f'ds_read_b128 {a4(axr(t, T))}, v{vXr+ks} offset:{(si % 3) * 16384 + T * 4096}')
    return I(f'ds_read_b128 {a4(axr(t, 2))}, v{vHr+ks} offset:{(si & 3) * 4096}')
def accQ(T, ct): return 40 + (T * 2 + ct) * 4
def accK(T, ct): return 56 + (T * 2 + ct) * 4
def accV(T, ct): return 80 + (T * 2 + ct) * 4
def mfA(t, f):
    fr = a4(afr(t, f)); ct = f & 1
    if f < 2: return [mf(accQ(T, ct), fr, a4(axr(t, T)), t == 0) for T in range(2)]
    if f < 4: return [mf(accK(T, ct), fr, a4(axr(t, T)), t == 0) for T in range(3)]
    return [mf(accV(T, ct), a4(axr(t, T)), fr, t == 0) for T in range(3)]
fA2 = []
setupA2(fA2); setup2(fA2)
hooksA = {('bar', 2): flag_store_hook, ('pre', 6): flag_load_hook}
run_gemm(7, 6, opsA, fragA, xrdA, mfA, ISS, tagA0, setupA, {1: fA2}, hooksA)
stamp('gend')
def Kp(T): return 104 + 4 * T
def Qp(T): return 116 + 4 * T
def Vp(dt): return 124 + 6 * dt
vS = 40; vPf = 56; vInv = 64; vTm = 68; vO = 80; vOp = 96
def softmax_valu(out, T):
    sc, sp, tm = vS + 8 * T, vS + 8 * T + 4, vTm + 4 * T
    bias = vBias if T == 1 else vBias0
    A = lambda s: out.append(lambda: I(s))
    for r in range(4): A(f'v_cndmask_b32 v{sc+r}, v{sp+r}, v{sc+r}, s[{sCur+2*r}:{sCur+2*r+1}]')
    for r in range(4): A(f'v_fma_f32 v{sc+r}, v{sc+r}, s{sScale}, v{bias+r}')
    m, m2 = tm, tm + 1
    A(f'v_max3_f32 v{m}, v{sc}, v{sc+1}, v{sc+2}')
    A(f'v_max_f32 v{m}, v{m}, v{sc+3}')
    xlane('v_max_f32', m, m2, out)
    for r in range(4): A(f'v_sub_f32 v{sc+r}, v{sc+r}, v{m}')
    for r in range(4): A(f'v_exp_f32 v{sc+r}, v{sc+r}')
    A(f'v_add_f32 v{m}, v{sc}, v{sc+1}')
    A(f'v_add_f32 v{m2}, v{sc+2}, v{sc+3}')
    A(f'v_cvt_pk_bf16_f32 v{tm+2}, v{sc}, v{sc+1}')
    A(f'v_add_f32 v{m}, v{m}, v{m2}')
    A(f'v_cvt_pk_bf16_f32 v{tm+3}, v{sc+2}, v{sc+3}')
    xlane('v_add_f32', m, m2, out)
    pf = vPf + 4 * T
    A(f'v_and_b32 v{pf}, v{vMP01}, v{tm+2}')
    A(f'v_and_b32 v{pf+1}, v{vMP23}, v{tm+3}')
    A(f'v_and_b32 v{pf+2}, v{vMC01}, v{tm+2}')
    A(f'v_and_b32 v{pf+3}, v{vMC23}, v{tm+3}')
    A(f'v_rcp_f32 v{vInv+T}, v{m}')

flag_check_hook()
wo_init()
I('s_barrier')
wl = wo_ops((1,))
l = []
for T in (0, 2, 1): pack_T(l, Kp(T), accK(T, 0), accK(T, 1))
for T in range(2): pack_T(l, Qp(T), accQ(T, 0), accQ(T, 1))
for T in range(2):
    sc, sp = vS + 8 * T, vS + 8 * T + 4
    l.append(lambda sc=sc, T=T: I(mf(sc, v4(Kp(T)), v4(Qp(T)), True)))
    l.append(lambda sp=sp, T=T: I(mf(sp, v4(Kp(0) if T == 1 else Kp(2)), v4(Qp(T)), True)))
for dt in range(2):
    for T in (2, 0, 1):
        a = accV(T, dt); d = Vp(dt) + (0 if T == 2 else 2 + 2 * T)
        l.append(lambda a=a, d=d: I(f'v_cvt_pk_bf16_f32 v{d}, v{a}, v{a+1}'))
        l.append(lambda a=a, d=d: I(f'v_cvt_pk_bf16_f32 v{d+1}, v{a+2}, v{a+3}'))
vl = []
for T in range(2):
    x = []; softmax_valu(x, T); vl.append(x)
l += interleave(vl)
for k, x in enumerate(l):
    x()
    if k % 6 == 0 and wl: wl.pop(0)()
for T in range(2):
    for dt in range(2): I(mf(Oacc(T, dt), v4(Vp(dt) + 2 * T), v4(vPf + 4 * T), True))
while wl: wl.pop(0)()
o_offsets()
for T in range(2): o_finish(T, vInv + T)
I('s_branch L_publish')

for k, v in copy.deepcopy(snap).items(): setattr(e, k, v)
cur = 'B'
e.label('L_typeB')
late_prologue()
stamp('ld0')
vGa = 20; vKm = 21; vOne = 26; vG = [124, 128]
sOne = 90; sKVc = 92; sGt = 93
SECB = [896, 1792, 0]
def opsB(si):
    pos = si % 7
    def fw():
        I(f's_mul_i32 m0, s{sSel}, {unitB(si)}')
        sec = SECB[si // 7]
        if sec: I(f's_add_u32 s{sTa}, s{sWo+pos}, {sec}')
        I(f's_add_u32 m0, m0, s{sM0c}')
        return I(f'buffer_load_dwordx4 v{vWs}, {srd(SW)}, s{sTa if sec else sWo+pos} offen lds')
    if si < 7: return [fw, lambda: x_op(si, 0), lambda: x_op(si, 1)]
    return [fw]
def gw_load():
    I(f's_cmp_lg_u32 s{sWave}, 0')
    I('s_cbranch_scc1 L_nogw')
    I(f's_mov_b32 exec_hi, 0xffffff')
    I(f's_mov_b32 m0, {GW}')
    e.Ix(f'buffer_load_dwordx4 v{vL16}, {srd(SGW)}, 0 offen lds')
    I(f's_mov_b32 m0, {GW+896}')
    e.Ix(f'buffer_load_dwordx4 v{vL16}, {srd(SGW)}, 0 offen lds')
    I(f's_mov_b64 exec, -1')
    e.label('L_nogw')
def setupB():
    touch_prefetch()
    zero_duty()
    if 'gwearly' in OPT: gw_load()
    lane_addrs()
fB2 = []
def setupB2(out):
    q, g = vT[0], vT[1]
    A = lambda s: out.append(lambda: I(s))
    A(f'v_cmp_gt_u32 vcc, 12, v{q}')
    A(f'v_cndmask_b32 v{vKm}, 0, -1, vcc')
    A(f'v_cmp_eq_u32 s[{sOne}:{sOne+1}], 12, v{q}')
    A(f'v_mov_b32 v{vOne}, 0x3f803f80')
    A(f'v_lshlrev_b32 v{vGa}, 4, v{g}')
    A(f'v_add_u32 v{vGa}, s{sXo}, v{vGa}')
    A(f'v_add_u32 v{vGa}, {GW}, v{vGa}')
    def gs():
        I(f's_add_u32 s{sGt}, s{sH}, 1')
        I(f's_cmp_eq_u32 s{sWave}, s{sJ}')
        I(f's_cselect_b32 s{sGt}, s{sGt}, 0')
    out.append(gs)
    A(f's_mov_b32 s{sScale}, 0x{f32(math.log2(math.e)):08x}')
    A(f's_mov_b32 s{sScale+1}, 0x{f32(1e-6):08x}')
setupB2(fB2); setup2(fB2)
def xreg(T, t): return (T * 14 + t) * 4
class LB: base = 0
def bfr(t, f): return vF + ((t & 1) * 2 + f) * 4
def fragB(t, f):
    si, ks = t >> 1, t & 1
    off = unitB(si) + ks * 3584 + f * 32
    if off >= WT and LB.base == 0:
        I(f'v_add_u32 v{vLa}, {WT}, v{vLa}')
        LB.base = WT
    o = off - LB.base
    r = bfr(t, f)
    I(f'ds_read_b64_tr_b16 {v2(r)}, v{vLa} offset:{o}')
    return I(f'ds_read_b64_tr_b16 {v2(r+2)}, v{vLa} offset:{o+112}')
def xrdB(t):
    if t >= 14: return None
    si, ks = t >> 1, t & 1
    for T in range(2): tag = I(f'ds_read_b128 {a4(xreg(T, t))}, v{vXr+ks} offset:{(si % 3) * 16384 + T * 4096}')
    return tag
def baccK(T, ct): return 56 + (T * 2 + ct) * 4
def baccV(T, ct): return 72 + (T * 2 + ct) * 4
def baccQ(T, ct): return 88 + (T * 2 + ct) * 4
baccG = 104
def mfB(t, f):
    seg, tt = divmod(t, 14)
    fr = v4(bfr(t, f))
    if seg < 2:
        acc = baccK if seg == 0 else baccV
        return [mf(acc(T, f), a4(xreg(T, tt)), fr, tt == 0) for T in range(2)]
    return [mf(baccQ(T, f), fr, a4(xreg(T, tt)), tt == 0) for T in range(2)]
gmark = {}
def gate_step(t):
    if t < 27: return
    nlab[0] += 1; L = nlab[0]
    I(f's_cmp_eq_u32 s{sGt}, 0')
    I(f's_cbranch_scc1 L_g{L}')
    if t >= 28:
        I(f's_waitcnt lgkmcnt({min(15, e.lg_issued - gmark[t])})')
        I(f's_cmp_eq_u32 s{sGt}, 1')
        I(f's_cbranch_scc1 L_g{L}a')
        I(mf(baccG, v4(vG[t & 1]), a4(xreg(1, t - 28)), t == 28))
        I(f's_branch L_g{L}b')
        e.label(f'L_g{L}a')
        I(mf(baccG, v4(vG[t & 1]), a4(xreg(0, t - 28)), t == 28))
        e.label(f'L_g{L}b')
    if t < 41:
        e.Ix(f'ds_read_b128 {v4(vG[(t + 1) & 1])}, v{vGa} offset:{(t + 1 - 28) * 64}')
        gmark[t + 1] = e.lg_issued
    e.label(f'L_g{L}')
def phi(out, a, tmp):
    A = lambda s: out.append(lambda: I(s))
    for r in range(4): A(f'v_mul_f32 v{tmp+r}, s{sScale}, v{a+r}')
    for r in range(4): A(f'v_exp_f32 v{tmp+r}, -|v{tmp+r}|')
    for r in range(4): A(f'v_add_f32 v{a+r}, 1.0, v{a+r}')
    for r in range(4): A(f'v_max_f32 v{a+r}, v{a+r}, v{tmp+r}')
    for r in range(4): A(f'v_add_f32 v{a+r}, s{sScale+1}, v{a+r}')
vPK = 108; vVV = 116; vKV = 56; vRd = 72
bt = {}
fB14, fB28, fB30 = [], [], []
def mkB():
    A = lambda s: fB14.append(lambda: I(s))
    for ct in range(2):
        for T in range(2): phi(fB14, baccK(T, ct), vT[0] if T == 0 else vT[4])
        for T in range(2):
            a = baccK(T, ct); d = vPK + 4 * ct + 2 * T
            A(f'v_cvt_pk_bf16_f32 v{d}, v{a}, v{a+1}')
            A(f'v_cvt_pk_bf16_f32 v{d+1}, v{a+2}, v{a+3}')
    for k in range(4): A(f'v_and_b32 v{vPK+4+k}, v{vKm}, v{vPK+4+k}')
    A(f's_lshl_b32 s{sT0}, s{sU}, 1')
    A(f's_add_u32 s{sT0}, s{sT0}, s{sP}')
    A(f's_lshl_b32 s{sT0}, s{sT0}, 13')
    A(f's_lshl_b32 s{sT1}, s{sH}, 12')
    A(f's_add_u32 s{sT0}, s{sT0}, s{sT1}')
    A(f'v_add_u32 v{vMisc+1}, s{sT0}, v{vL16}')
    A(f's_lshl_b32 s{sT0}, s{sWave}, 10')
    A(f'v_lshlrev_b32 v{vMisc+2}, 2, v{vLane}')
    A(f'v_add_u32 v{vMisc+2}, s{sT0}, v{vMisc+2}')
    A(f's_lshl_b32 s{sT1}, s{sJ}, 13')
    A(f's_add_u32 s{sT1}, s{sT1}, {WS_KV}')
    A(f's_lshl_b32 s{sKVc}, s{sJ}, 10')
    A(f's_add_u32 s{sKVc}, s{sKVc}, {WS_CNT}')
    A = lambda s: fB28.append(lambda: I(s))
    for c in (1, 0):
        for T in range(2):
            a = baccV(T, c); d = vVV + 4 * c + 2 * T
            A(f'v_cvt_pk_bf16_f32 v{d}, v{a}, v{a+1}')
            A(f'v_cvt_pk_bf16_f32 v{d+1}, v{a+2}, v{a+3}')
        if c:
            for k in range(4): A(f'v_cndmask_b32 v{vVV+4+k}, v{vVV+4+k}, v{vOne}, s[{sOne}:{sOne+1}]')
    for c in range(2):
        for a in range(2): A(mf(vKV + 4 * (c * 2 + a), v4(vPK + 4 * a), v4(vVV + 4 * c), True))
    for k in range(4):
        def w(k=k): bt['tw'] = I(f'ds_write_b128 v{vMisc+1}, {v4(vKV+4*k)} offset:{k*1024}')
        fB28.append(w)
    rt = {}
    for m in range(4):
        for src in range(4):
            def rd(m=m, src=src): rt[(m, src)] = I(f'ds_read_b32 v{vRd + m * 4 + src}, v{vMisc+2} offset:{src*8192 + m*256}')
            fB30.append(rd)
    for m in range(4): fB30.append(lambda m=m: red(m, rt))
    fB30.append(lambda: stamp('kvend'))
def red(m, rt):
    b = vRd + m * 4
    e.need_lg(rt[(m, 3)])
    I(f'v_add_f32 v{b}, v{b}, v{b+1}')
    I(f'v_add_f32 v{b+2}, v{b+2}, v{b+3}')
    I(f'v_add_f32 v{b}, v{b}, v{b+2}')
    bt['at'] = I(f'buffer_atomic_add_f32 v{b}, v{vMisc+2}, {srd(SWS)}, s{sT1} offen offset:{m*256}')
mkB()
def B_img():
    stamp('vend')
    for x in fB28: x()
    flag_check_hook()
    e.need_lg(bt['tw'])
    I('s_barrier')
    for x in fB30: x()
def B_sig0(): e.need_vm(bt['at'])
def B_sig1(): cnt_add(sKVc, 'L_kvadd')
SIGB = int(OPT.get('sigb', 17))
issB = dict(ISS)
issB.update({7: 9, 8: 9, 9: 10, 10: 10, 11: 11, 12: 12, 13: 13})
issB.update({14: 14, 15: 15, 16: 16, 17: 17, 18: 18, 19: 32, 20: 32})
QD = int(OPT.get('qd', 0))
if QD: issB.update({14: QD, 15: QD, 16: QD + 1, 17: QD + 2, 18: QD + 3})
hooksB = {('pre', 5): (lambda: None) if 'gwearly' in OPT else gw_load, ('bar', 2): flag_store_hook, ('pre', 6): flag_load_hook, ('post', 13): lambda: stamp('kend'), ('pre', 14): wo_init,
          ('post', 27): B_img, ('prebar', SIGB): B_sig0, ('bar', SIGB): B_sig1}
xv = spread(wo_ops((1,)), list(range(int(OPT.get('wo1', 19)), int(OPT.get('wo1', 19)) + int(OPT.get('wo1n', 7)))))
_w0 = spread(wo_ops((0,)), list(range(int(OPT.get('wo0', 33)), int(OPT.get('wo0', 33)) + 7)))
for _k, _v in _w0.items(): xv[_k] = xv.get(_k, []) + _v
run_gemm(21, 2, opsB, fragB, xrdB, mfB, issB, TAG0, setupB, {1: fB2, 14: fB14}, hooksB, gate_step, extra_vm=xv,
         fill_rate=int(OPT.get('fillB', 3)), skip=eval(OPT.get('skipB', '(9,11,12,13,15,16,18,20)')))
stamp('gend')
vPQ = 40
def phiQ(T):
    l = []
    for ct in range(2): phi(l, baccQ(T, ct), vT[0] if ct == 0 else vT[4])
    pack_T(l, vPQ + 4 * T, baccQ(T, 0), baccQ(T, 1))
    for x in l: x()
phiQ(0)
e.all_vm()
cnt_wait(sKVc, 16, 'L_kvwait')
stamp('kvwait')
I(f's_lshl_b32 s{sT1}, s{sJ}, 13')
I(f's_lshl_b32 s{sT2}, s{sH}, 12')
I(f's_add_u32 s{sT1}, s{sT1}, s{sT2}')
I(f's_add_u32 s{sT1}, s{sT1}, {WS_KV}')
vKVf = 56
kt = {}
for k in range(4):
    kt[k] = I(f'buffer_load_dwordx4 {v4(vKVf+4*k)}, v{vL16}, {srd(SWS)}, s{sT1} offen offset:{k*1024} sc1')
phiQ(1)
I(f'v_lshlrev_b32 v{vMisc}, 2, v{vLane}')
I(f's_cmp_eq_u32 s{sGt}, 0')
I('s_cbranch_scc1 L_nog')
a = baccG
I(f'v_mul_f32 v{a}, s{sScale}, v{a}')
I(f'v_exp_f32 v{a}, -v{a}')
I(f's_lshl_b32 s{sT0}, s{sI}, 3')
I(f'v_add_f32 v{a}, 1.0, v{a}')
I(f's_add_u32 s{sT0}, s{sT0}, s{sJ}')
I(f'v_rcp_f32 v{a}, v{a}')
I(f's_lshl_b32 s{sT0}, s{sT0}, 6')
I(f's_add_u32 s{sT0}, s{sT0}, {WS_G}')
I('s_mov_b64 exec, 0xffff')
e.Ix(f'buffer_store_dword v{a}, v{vMisc}, {srd(SWS)}, s{sT0} offen sc1')
I('s_mov_b64 exec, -1')
e.label('L_nog')
stamp('phiq')
o_offsets()
vAf = 48; vZf = 108; vDen = 112; vO = 72; vOp = 120
for c in range(2):
    for a in range(2):
        k = c * 2 + a
        e.need_vm(kt[k])
        d = vAf + c * 4 + 2 * a
        I(f'v_cvt_pk_bf16_f32 v{d}, v{vKVf+4*k}, v{vKVf+4*k+1}')
        I(f'v_cvt_pk_bf16_f32 v{d+1}, v{vKVf+4*k+2}, v{vKVf+4*k+3}')
for k in range(4):
    I(f'v_mov_b32_dpp v{vZf+k}, v{vAf+4+k} row_newbcast:12 row_mask:0xf bank_mask:0xf')
for T in range(2):
    pq = v4(vPQ + 4 * T)
    I(mf(vDen + 4 * T, v4(vZf), pq, True))
    for c in range(2): I(mf(Oacc(T, c), v4(vAf + c * 4), pq, True))
for T in range(2):
    dn = vDen + 4 * T
    I(f'v_add_f32 v{dn}, s{sScale+1}, v{dn}')
    I(f'v_rcp_f32 v{dn}, v{dn}')
    o_finish(T, dn)

e.label('L_publish')
e.fence(2)
stamp('ost')
sR2, sN, sCn, sOb, sLh = 64, 65, 66, 68, 69
I(f's_lshr_b32 s{sT0}, s{sI}, 1')
I(f's_lshl_b32 s{sT0}, s{sT0}, 10')
I(f's_and_b32 s{sT1}, s{sI}, 1')
I(f's_lshl_b32 s{sT2}, s{sType}, 1')
I(f's_add_u32 s{sT1}, s{sT1}, s{sT2}')
I(f's_lshl_b32 s{sT1}, s{sT1}, 7')
I(f's_add_u32 s{sTa}, s{sT0}, s{sT1}')
I(f's_add_u32 s{sTa}, s{sTa}, {WS_CNT+128}')
I(f's_and_b32 s{sT0}, s{sR}, 3')
I(f's_and_b32 s{sR2}, s2, 7')
I(f's_lshl_b32 s{sR2}, s{sR2}, 2')
I(f's_add_u32 s{sR2}, s{sR2}, s{sT0}')
I(f's_lshr_b32 s{sN}, s{sR}, 2')
I(f's_lshl_b32 s{sN}, s{sN}, 1')
vP2 = 10; vQ2 = 18; vOut = 22; vGg = 23; vSw = 24; vSr = 25; vCm = 26
gq, rr = vT[1], vT[2]
I(f'v_lshrrev_b32 v{gq}, 4, v{vLane}')
I(f'v_bfe_u32 v{rr}, v{vLane}, 2, 2')
I(f'v_lshl_add_u32 v{vT[3]}, v{gq}, 2, v{rr}')
I(f'v_bfe_u32 v{vT[4]}, v{vT[3]}, 1, 2')
I(f'v_lshlrev_b32 v{vT[3]}, 7, v{vT[3]}')
I(f'v_and_b32 v{vT[5]}, 3, v{vLane}')
I(f'v_lshl_add_u32 v{vT[3]}, v{vT[5]}, 3, v{vT[3]}')
for t in range(4):
    I(f'v_xor_b32 v{vT[5]}, {t}, v{vT[4]}')
    I(f'v_lshl_add_u32 v{vP2+t}, v{vT[5]}, 5, v{vT[3]}')
I(f's_and_b32 s{sT3}, s{sWave}, 3')
I(f'v_and_b32 v{vT[5]}, 15, v{vLane}')
I(f's_lshl_b32 s{sT0}, s{sT3}, 11')
I(f's_add_u32 s{sT0}, s{sT0}, {STG}')
I(f'v_lshrrev_b32 v{vT[6]}, 1, v{gq}')
I(f'v_and_b32 v{vT[7]}, 7, v{vT[5]}')
I(f'v_xor_b32 v{vT[6]}, v{vT[6]}, v{vT[7]}')
I(f'v_lshlrev_b32 v{vT[6]}, 4, v{vT[6]}')
I(f'v_lshl_add_u32 v{vT[6]}, v{vT[5]}, 7, v{vT[6]}')
I(f'v_and_b32 v{vT[7]}, 1, v{gq}')
I(f'v_lshl_add_u32 v{vT[6]}, v{vT[7]}, 3, v{vT[6]}')
I(f'v_add_u32 v{vSw}, s{sT0}, v{vT[6]}')
I(f'v_lshrrev_b32 v{vT[6]}, 3, v{vLane}')
I(f'v_and_b32 v{vT[7]}, 7, v{vLane}')
I(f'v_xor_b32 v{vT[4]}, v{vT[7]}, v{vT[6]}')
I(f'v_lshlrev_b32 v{vT[4]}, 4, v{vT[4]}')
I(f'v_lshl_add_u32 v{vT[4]}, v{vT[6]}, 7, v{vT[4]}')
I(f'v_add_u32 v{vSr}, s{sT0}, v{vT[4]}')
I(f's_lshl_b32 s{sT0}, s{sT3}, 12')
I(f's_add_u32 s{sT0}, s{sT0}, {CMB}')
I(f'v_add_u32 v{vCm}, s{sT0}, v{vL16}')
I(f's_lshl_b32 s{sT0}, s{sR2}, 6')
I(f's_lshl_b32 s{sT1}, s{sH}, 5')
I(f's_add_u32 s{sT0}, s{sT0}, s{sT1}')
I(f's_add_u32 s{sT0}, s{sT0}, s{sP}')
I(f'v_lshl_add_u32 v{vT[6]}, v{vT[6]}, 1, s{sT0}')
I(f'v_mul_u32_u24 v{vT[6]}, 896, v{vT[6]}')
I(f'v_lshl_add_u32 v{vOut}, v{vT[7]}, 4, v{vT[6]}')
I(f's_lshl_b32 s{sT1}, s{sN}, 6')
I(f'v_add_u32 v{vOut}, s{sT1}, v{vOut}')
I(f'v_lshlrev_b32 v{vGg}, 2, v{vT[5]}')
I(f's_lshr_b32 s{sT0}, s{sR2}, 2')
I(f's_lshl_b32 s{sT0}, s{sT0}, 10')
I(f's_bfe_u32 s{sT1}, s{sR2}, 0x10001')
I(f's_lshl_b32 s{sT1}, s{sT1}, 7')
I(f's_add_u32 s{sCn}, s{sT0}, s{sT1}')
I(f's_add_u32 s{sCn}, s{sCn}, {WS_CNT+128}')
I(f's_lshl_b32 s{sOb}, s{sR2}, 2')
I(f's_add_u32 s{sOb}, s{sOb}, s{sT3}')
I(f's_lshl_b32 s{sT2}, s{sOb}, 6')
I(f's_add_u32 s{sT2}, s{sT2}, {WS_G}')
I(f'v_add_u32 v{vGg}, s{sT2}, v{vGg}')
I(f's_lshl_b32 s{sOb}, s{sOb}, 15')
I(f's_lshl_b32 s{sT1}, s{sU}, 3')
I(f's_add_u32 s{sN}, s{sN}, s{sT1}')
I(f's_add_u32 s{sLh}, s{sCn}, 256')
vAcc = 104
def wfr(pos, t):
    return ('a', 32 + (pos * 4 + t) * 4) if pos < 5 else ('v', 56 + ((pos - 5) * 4 + t) * 4)
def p2_addr(half, pos):
    I(f's_add_u32 s{sT2}, s{sN}, {pos}')
    I(f's_and_b32 s{sT2}, s{sT2}, 15')
    I(f's_mul_i32 s{sT2}, s{sT2}, 3584')
    if half: I(f's_add_u32 s{sT2}, s{sT2}, 57344')
    for t in range(4): I(f'v_add_u32 v{vQ2+t}, s{sT2}, v{vP2 + (t ^ (2 * (pos & 1)))}')
def p2_frags(half, pos):
    p2_addr(half, pos)
    for t in range(4):
        c, r = wfr(pos, t)
        I(f'ds_read_b64_tr_b16 {c}[{r}:{r+1}], v{vQ2+t}')
        I(f'ds_read_b64_tr_b16 {c}[{r+2}:{r+3}], v{vQ2+t} offset:2048')
I(f's_cmp_eq_u32 s{sType}, 0')
I('s_cbranch_scc1 L_pubA')
NP0 = 8
MERGE = 'nomerge' not in OPT
if MERGE:
    I(f's_cmp_lg_u32 s{sWave}, 1')
    I('s_cbranch_scc1 L_pw_d')
    I(f's_cmp_ge_u32 s{sR}, 28')
    I('s_cbranch_scc1 L_pw_d')
    poll(sCn, 8, 'L_pw')
    e.label('L_pw_d')
for pos in range(NP0): p2_frags(0, pos)
e.all_vm()
I('s_barrier')
cnt_add(sTa, 'L_oaddB')
stamp('pub')
I(f's_cmp_ge_u32 s{sR}, 28')
I('s_cbranch_scc1 L_fin')
I('s_branch L_p2b' if MERGE else 's_branch L_p2')
e.label('L_pubA')
e.all_vm()
e.all_lg()
I('s_barrier')
cnt_add(sTa, 'L_oaddA')
stamp('pub')
I(f's_cmp_ge_u32 s{sR}, 28')
I('s_cbranch_scc1 L_fin')
for op in wo_ops((0,)): op()
e.all_vm()
I('s_barrier')
stamp('wo')
for pos in range(NP0): p2_frags(0, pos)
e.label('L_p2')
stamp('pre0')
for half in range(2):
    if half == 0:
        I(f's_cmp_lg_u32 s{sWave}, 1')
        I('s_cbranch_scc1 L_wait0_d')
        poll(sCn, 8, 'L_wait0')
        e.label('L_wait0_d')
        for pos in range(NP0, 8): p2_frags(0, pos)
        I('s_barrier')
        e.label('L_p2b')
    else:
        cnt_wait(sLh, 8, 'L_wait1', 2)
    stamp(f'wait{half}')
    otag = {}
    for pos in range(8):
        I(f's_add_u32 s{sT1}, s{sN}, {pos}')
        I(f's_and_b32 s{sT1}, s{sT1}, 15')
        I(f's_lshl_b32 s{sT1}, s{sT1}, 10')
        I(f's_add_u32 s{sT1}, s{sT1}, s{sOb}')
        otag[pos] = I(f'buffer_load_dwordx4 {a4(pos*4)}, v{vL16}, {srd(SWS)}, s{sT1} offen{" offset:0" if half == 0 else ""} sc1')
    if half == 0: I(f's_add_u32 s{sOb}, s{sOb}, 16384')
    else: gtag = I(f'buffer_load_dword v{vGg}, v{vGg}, {srd(SWS)}, 0 offen sc1')
    e.all_lg()
    for pos in range(8):
        e.need_vm(otag[pos])
        if pos == 0: stamp(f'h{half}p0')
        for t in range(4):
            c, r = wfr(pos, t)
            I(mf(vAcc + (half * 4 + t) * 4, f'{c}[{r}:{r+3}]', a4(pos * 4), pos == 0))
        if half == 0: p2_frags(1, pos)
    stamp(f'half{half}')
I(f's_lshl_b32 s{sT0}, s{sU}, 14')
I(f'v_add_u32 v{vT[4]}, s{sT0}, v{vCm}')
I(f'v_xor_b32 v{vT[5]}, 16384, v{vT[4]}')
vRx = 72
I(f's_cmp_lg_u32 s{sU}, 0')
I('s_cbranch_scc1 L_x1')
def xch(keep, give, lab):
    for k, t in enumerate(give):
        I(f'ds_write_b128 v{vT[4]}, {v4(vAcc+4*t)} offset:{k*2048}')
        I(f'ds_write_b128 v{vT[4]}, {v4(vAcc+16+4*t)} offset:{k*2048+1024}')
    e.all_lg()
    I('s_barrier')
    for k in range(4): rt_ = I(f'ds_read_b128 {v4(vRx+4*k)}, v{vT[5]} offset:{k*1024}')
    e.need_vm(gtag)
    for k, t in enumerate(keep):
        a, b = vAcc + 4 * t, vAcc + 16 + 4 * t
        e.need_lg(rt_ - 2 + 2 * k)
        for r in range(4): I(f'v_add_f32 v{a+r}, v{a+r}, v{vRx+8*k+r}')
        for r in range(4): I(f'v_add_f32 v{b+r}, v{b+r}, v{vRx+8*k+4+r}')
        for r in range(4): I(f'v_sub_f32 v{a+r}, v{a+r}, v{b+r}')
        for r in range(4): I(f'v_fma_f32 v{a+r}, v{a+r}, v{vGg}, v{b+r}')
        I(f'v_cvt_pk_bf16_f32 v{b}, v{a}, v{a+1}')
        I(f'v_cvt_pk_bf16_f32 v{b+1}, v{a+2}, v{a+3}')
        I(f'v_xor_b32 v{vT[k]}, {32*t}, v{vSw}')
        I(f'ds_write_b64 v{vT[k]}, {v2(b)}')
st_ = copy.deepcopy({k: getattr(e, k) for k in STATE})
xch((0, 1), (2, 3), 'a')
I('s_branch L_x2')
for k, v in copy.deepcopy(st_).items(): setattr(e, k, v)
e.label('L_x1')
xch((2, 3), (0, 1), 'b')
e.label('L_x2')
e.all_lg()
I('s_barrier')
I(f's_lshl_b32 s{sT0}, s{sU}, 10')
I(f'v_add_u32 v{vSr}, s{sT0}, v{vSr}')
tr = I(f'ds_read_b128 {v4(vF)}, v{vSr}')
I(f's_mul_i32 s{sT0}, s{sU}, 14336')
e.need_lg(tr)
I(f'buffer_store_dwordx4 {v4(vF)}, v{vOut}, {srd(SOUT)}, s{sT0} offen')
e.label('L_fin')
if DEBUG and 'hdbg' in OPT:
    stamp('end')
    I('s_memrealtime s[96:97]')
    I('s_waitcnt vmcnt(0) lgkmcnt(0)')
    wg, wv = OPT['hdbg'].split(':')
    I(f's_cmp_lg_u32 s2, {wg}')
    I('s_cbranch_scc1 L_end')
    I(f's_cmp_lg_u32 s{sWave}, {wv}')
    I('s_cbranch_scc1 L_end')
    I('s_mov_b64 exec, 1')
    I(f's_sub_u32 s96, s96, s{sStamp+1}')
    I(f'v_mov_b32 v2, s96')
    I(f'buffer_store_dword v2, off, {srd(SDBG)}, 0 offset:32')
    for k in range(1, 8):
        I(f's_sub_u32 s96, s{sStamp+2*k}, s{sStamp}')
        I(f'v_mov_b32 v2, s96')
        I(f'buffer_store_dword v2, off, {srd(SDBG)}, 0 offset:{32+4*k}')
elif DEBUG:
    stamp('end')
    I('s_waitcnt vmcnt(0) lgkmcnt(0)')
    I(f's_lshl_b32 s{sT0}, s2, 3')
    I(f's_add_u32 s{sT0}, s{sT0}, s{sWave}')
    I(f's_lshl_b32 s{sT0}, s{sT0}, 7')
    I(f's_add_u32 s{sT0}, s{sT0}, {WS_DBG}')
    I('s_mov_b64 exec, 1')
    for k in range(8):
        I(f'v_mov_b32 v2, s{sStamp+2*k}')
        I(f'buffer_store_dword v2, off, {srd(SWS)}, s{sT0} offset:{4*k}')
    I(f's_getreg_b32 s{sT1}, hwreg(HW_REG_XCC_ID)')
    I(f'v_mov_b32 v2, s{sT1}')
    I(f'buffer_store_dword v2, off, {srd(SWS)}, s{sT0} offset:40')
    I(f'v_mov_b32 v2, s{sType}')
    I(f'buffer_store_dword v2, off, {srd(SWS)}, s{sT0} offset:44')
    I(f'v_mov_b32 v2, s{sStamp+1}')
    I(f'buffer_store_dword v2, off, {srd(SWS)}, s{sT0} offset:48')
    I('s_memrealtime s[96:97]')
    I('s_waitcnt lgkmcnt(0)')
    I(f'v_mov_b32 v2, s96')
    I(f'buffer_store_dword v2, off, {srd(SWS)}, s{sT0} offset:52')
e.label('L_end')
I('s_endpgm')
e.raw(f""".section .rodata,"a"
.p2align 6
.amdhsa_kernel {KNAME}
  .amdhsa_next_free_vgpr 256
  .amdhsa_next_free_sgpr 102
  .amdhsa_accum_offset {NV}
  .amdhsa_group_segment_fixed_size 0
  .amdhsa_kernarg_size 80
  .amdhsa_user_sgpr_count 2
  .amdhsa_user_sgpr_kernarg_segment_ptr 1
  .amdhsa_system_sgpr_workgroup_id_x 1
.end_amdhsa_kernel""")
open(OUT, 'w').write(e.text())
print('instructions', e.ninstr, 'nop states', e.nnop, file=sys.stderr)
```
